```python
import torch

def _softmax(x, axis=-1):
    return torch.softmax(x, dim=axis)
def _gelu(x):
    return torch.nn.functional.gelu(x, approximate="tanh")
def _silu(x):
    return torch.nn.functional.silu(x)
def _sigmoid(x):
    return torch.sigmoid(x)
def _layernorm(x, axis=-1, eps=1e-5):
    m = x.mean(dim=axis, keepdim=True)
    v = x.var(dim=axis, keepdim=True, unbiased=False)
    return (x - m) / torch.sqrt(v + eps)
def _scatter_add(tgt, idx, src, axis=0):
    return tgt.clone().index_add_(axis, idx, src)
def _segment_sum(src, seg, n):
    out = torch.zeros((n,) + src.shape[1:], dtype=src.dtype)
    return out.index_add_(0, seg, src)
def _pad(x, pw):
    flat = tuple(v for pair in reversed(pw) for v in pair)
    return torch.nn.functional.pad(x, flat)

kernel_name = 'sequential_preLN__mha_block_cached__swiglu_ffn__decode'

def setup_inputs():

    _w = (lambda a: (lambda t: t.to(torch.bfloat16) if t.is_floating_point() else t)(torch.as_tensor(a)))
    def _A_setup():
        B, Sq, D = 8, 1, 640
        H, Sk, Dh = 32, 4096, 128
        return {
            "x": _w((lambda *s: torch.randn(*s, dtype=torch.bfloat16) * 0.05)(B, Sq, D)),
            "k_cache": _w((lambda *s: torch.randn(*s, dtype=torch.bfloat16) * 3.2)(B, H, Sk, Dh)),
            "v_cache": _w((lambda *s: torch.randn(*s, dtype=torch.bfloat16) * 0.4)(B, H, Sk, Dh)),
            "wq": _w((lambda *s: torch.randn(*s, dtype=torch.bfloat16) * 3.2)(D, H * Dh) * (D ** -0.5)),
            "wo": _w((lambda *s: torch.randn(*s, dtype=torch.bfloat16) * 0.4)(H * Dh, D) * ((H * Dh) ** -0.5)),
        }
    _A_in = _A_setup()

    def _B_setup():
        B, S, D, F = 8, 1, 640, 1728
        return {
            "x": _w((lambda *s: torch.randn(*s, dtype=torch.bfloat16) * 0.05)(B, S, D)),
            "w_gate": _w((lambda *s: torch.randn(*s, dtype=torch.bfloat16) * 0.05)(D, F)),
            "w_up": _w((lambda *s: torch.randn(*s, dtype=torch.bfloat16) * 0.05)(D, F)),
            "w_down": _w((lambda *s: torch.randn(*s, dtype=torch.bfloat16) * 0.05)(F, D)),
        }
    _B_in = _B_setup()

    return {
        "A_x": _A_in["x"],
        "A_k_cache": _A_in["k_cache"],
        "A_v_cache": _A_in["v_cache"],
        "A_wq": _A_in["wq"],
        "A_wo": _A_in["wo"],
        "B_x": _B_in["x"],
        "B_w_gate": _B_in["w_gate"],
        "B_w_up": _B_in["w_up"],
        "B_w_down": _B_in["w_down"],
    }

def reference(A_x, A_k_cache, A_v_cache, A_wq, A_wo, B_x, B_w_gate, B_w_up, B_w_down):
    def _A_ref(x, k_cache, v_cache, wq, wo):
        B, Sq, D = x.shape
        H, Dh = 32, 128
        q = (lambda x, *d: x.permute(*d))((x @ wq).reshape(B, Sq, H, Dh), 0, 2, 1, 3)
        scores = torch.einsum("bhqd,bhkd->bhqk", q, k_cache) * (Dh ** -0.5)
        p = _softmax(scores, axis=-1)
        o = torch.einsum("bhqk,bhkd->bhqd", p, v_cache)
        return (lambda x, *d: x.permute(*d))(o, 0, 2, 1, 3).reshape(B, Sq, H * Dh) @ wo

    def _B_ref(x, w_gate, w_up, w_down):
        g = _silu(x @ w_gate)
        u = x @ w_up
        return (g * u) @ w_down

    x = A_x
    h = x + _A_ref(_layernorm(x, axis=-1), A_k_cache, A_v_cache, A_wq, A_wo)
    h2 = h + _B_ref(_layernorm(h, axis=-1), B_w_gate, B_w_up, B_w_down)
    return h2
```

```python
import sys, struct

NAME = 'sequential_preLN__mha_block_cached__swiglu_ffn__decode'

def f2u(x): return struct.unpack('<I', struct.pack('<f', x))[0]

HEADER = """; Kernarg layout for this problem (96 bytes, ptrs only, base s[0:1]):
"""

WS_P   = 0
WS_H   = 256*2560
WS_ACT = WS_H + 10240
WS_STAMP = 1 << 20

XD  = 0
QP  = 5120
OP  = 7168
ST  = 9216
SC0 = 9344
SCW = 65*64
WOP = SC0 + 4*SCW
XN2 = WOP + 10240
XN2S = 1296
BP  = XN2
IMG = XN2 + 8*XN2S
LDS_BYTES = IMG + 57344

L2E = 1.4426950408889634

class G:
    def __init__(s, D=6, D0=6, HP=2, kvpol='nt', wpol='', fpol='', stamps=False, spin=1<<14, psleep=0, tlbwarm=False, rot=0, hmap=0, nowo=0, noffn=0, klin=0):
        s.hmap=hmap; s.rot=rot; s.nowo=nowo; s.noffn=noffn; s.klin=klin; s.sv=60
        s.L = []; s.D = D; s.D0 = D0; s.HP = HP; s.kvpol = kvpol; s.wpol = wpol; s.fpol = fpol
        s.stamps = stamps; s.spin = spin; s.psleep = psleep; s.nl = 0; s.tlbwarm = tlbwarm
    def a(s, t):
        for line in t.strip('\n').split('\n'): s.L.append('    ' + line.strip() if not line.strip().endswith(':') else line.strip())
    def lab(s, p):
        s.nl += 1; return f'L_{p}_{s.nl}'
    def stamp_reg(s, r):
        if s.stamps: s.a(f's_memrealtime s[{r}:{r+1}]')
    def stamp(s, idx, r=None):
        if not s.stamps: return
        s.a('s_memrealtime s[92:93]' if r is None else 's_nop 0')
        s.a('s_waitcnt lgkmcnt(0)')
        if r is not None: s.a(f's_mov_b32 s92, s{r}')
        s.a(f"""
        s_mov_b64 s[94:95], exec
        s_mov_b64 exec, 1
        s_lshl_b32 s93, s2, 3
        s_add_u32 s93, s93, s3
        s_lshl_b32 s93, s93, 6
        s_add_u32 s93, s93, {WS_STAMP + idx*4}
        v_mov_b32 v{s.sv}, s93
        v_mov_b32 v{s.sv+1}, s92
        global_store_dword v{s.sv}, v{s.sv+1}, s[38:39]
        s_mov_b64 exec, s[94:95]""")

    def wave_sum(s, v, sd):
        for c in ('row_ror:8', 'row_ror:4', 'row_ror:2', 'row_ror:1'):
            s.a(f's_nop 1\nv_add_f32_dpp v{v}, v{v}, v{v} {c} row_mask:0xf bank_mask:0xf')
        s.a(f's_nop 1\nv_add_f32_dpp v{v}, v{v}, v{v} row_bcast:15 row_mask:0xa bank_mask:0xf')
        s.a(f's_nop 1\nv_add_f32_dpp v{v}, v{v}, v{v} row_bcast:31 row_mask:0xc bank_mask:0xf')
        s.a(f's_nop 1\nv_readlane_b32 s{sd}, v{v}, 63')

    def layernorm(s, src, f, t, dup):
        a = s.a
        for i in range(5):
            a(f'v_lshlrev_b32 v{f+2*i}, 16, v{src+i}\nv_and_b32 v{f+2*i+1}, 0xffff0000, v{src+i}')
        a(f'v_add_f32 v{t}, v{f}, v{f+1}')
        for i in range(2, 10): a(f'v_add_f32 v{t}, v{t}, v{f+i}')
        s.wave_sum(t, 60)
        a(f's_mov_b32 s61, {f2u(1.0/640):#x}')
        a(f's_nop 0\nv_mov_b32 v{t}, s60\nv_mul_f32 v{t}, s61, v{t}')
        a(f'v_sub_f32 v{t+1}, v{f}, v{t}\nv_mul_f32 v{t+2}, v{t+1}, v{t+1}')
        for i in range(1, 10):
            a(f'v_sub_f32 v{t+1}, v{f+i}, v{t}\nv_fmac_f32 v{t+2}, v{t+1}, v{t+1}')
        s.wave_sum(t+2, 60)
        a(f'v_cvt_pk_bf16_f32 v{t}, v{t}, v{t}\nv_lshlrev_b32 v{t}, 16, v{t}')
        a(f'v_mov_b32 v{t+2}, s60\nv_mul_f32 v{t+2}, s61, v{t+2}')
        a(f'v_cvt_pk_bf16_f32 v{t+2}, v{t+2}, v{t+2}\nv_lshlrev_b32 v{t+2}, 16, v{t+2}')
        a(f'v_add_f32 v{t+2}, {f2u(1e-5):#x}, v{t+2}')
        a(f'v_cvt_pk_bf16_f32 v{t+2}, v{t+2}, v{t+2}\nv_lshlrev_b32 v{t+2}, 16, v{t+2}')
        a(f'v_sqrt_f32 v{t+2}, v{t+2}\ns_nop 0')
        a(f'v_cvt_pk_bf16_f32 v{t+2}, v{t+2}, v{t+2}\nv_lshlrev_b32 v{t+2}, 16, v{t+2}')
        a(f'v_rcp_f32 v{t+3}, v{t+2}')
        for i in range(10): a(f'v_sub_f32 v{f+i}, v{f+i}, v{t}')
        for i in range(5): a(f'v_cvt_pk_bf16_f32 v{src+i}, v{f+2*i}, v{f+2*i+1}')
        for i in range(5):
            a(f'v_lshlrev_b32 v{f+2*i}, 16, v{src+i}\nv_and_b32 v{f+2*i+1}, 0xffff0000, v{src+i}')
        for i in range(10):
            a(f'v_mul_f32 v{t}, v{f+i}, v{t+3}\nv_fma_f32 v{t+1}, -v{t}, v{t+2}, v{f+i}\nv_fma_f32 v{f+i}, v{t+1}, v{t+3}, v{t}')
        if dup:
            for i in range(10): a(f'v_cvt_pk_bf16_f32 v{f+i}, v{f+i}, v{f+i}')
        else:
            for i in range(5): a(f'v_cvt_pk_bf16_f32 v{src+i}, v{f+2*i}, v{f+2*i+1}')

    def poll(s, loads, regs, t):
        a = s.a
        lp = s.lab('poll'); ld = s.lab('polld')
        a(f's_mov_b64 s[62:63], exec\ns_mov_b32 s64, {s.spin}')
        a(f'{lp}:')
        for l in loads: a(l)
        a('s_waitcnt vmcnt(0)')
        r = list(regs)
        if len(r) == 2: a(f'v_max_u32 v{t}, v{r[0]}, v{r[1]}'); r = []
        else:
            a(f'v_max3_u32 v{t}, v{r[0]}, v{r[1]}, v{r[2]}'); r = r[3:]
        while len(r) >= 2:
            a(f'v_max3_u32 v{t}, v{t}, v{r[0]}, v{r[1]}'); r = r[2:]
        if r: a(f'v_max_u32 v{t}, v{t}, v{r[0]}')
        a(f'v_cmpx_eq_u32 vcc, -1, v{t}')
        a(f's_cbranch_execz {ld}')
        if s.psleep: a(f's_sleep {s.psleep}')
        a(f's_sub_u32 s64, s64, 1\ns_cbranch_scc0 {lp}')
        a(f'{ld}:')
        a('s_mov_b64 exec, s[62:63]\ns_nop 2')

    def gen(s):
        a = s.a; D = s.D
        a(f"""s_cmp_ge_u32 s2, 256
        s_cbranch_scc1 L_end
        s_load_dwordx16 s[16:31], s[0:1], 0
        s_load_dwordx8 s[32:39], s[0:1], 64
        v_lshrrev_b32 v2, 6, v0
        v_and_b32 v1, 63, v0
        v_readfirstlane_b32 s3, v2
        s_lshr_b32 s4, s2, 5
        s_and_b32 s5, s2, 31""")
        if s.hmap:
            a("""s_and_b32 s5, s2, 7
            s_lshl_b32 s5, s5, 2
            s_bfe_u32 s6, s2, 0x20003
            s_add_u32 s5, s5, s6""")
        a("""s_lshl_b32 s65, s4, 5
        s_add_u32 s65, s65, s5
        s_cmp_ge_u32 s3, 4
        s_cbranch_scc1 L_helper""")
        s.streamer()
        s.helper()
        s.tail()
        a('L_end:\ns_endpgm')

    def masks(s):
        s.a("""v_and_b32 v8, 15, v1
        v_and_b32 v9, 1, v1
        v_lshlrev_b32 v9, 4, v9
        v_mov_b32 v10, 0xffff
        v_lshlrev_b32 v10, v9, v10
        v_lshrrev_b32 v11, 1, v8""")
        for m in range(4):
            s.a(f'v_cmp_eq_u32 vcc, {m}, v11\ns_nop 1\nv_cndmask_b32 v{4+m}, 0, v10, vcc')

    def streamer(s):
        a = s.a; D = s.D; R0 = 64
        slot = lambda i: f'v[{R0+4*(i%32)}:{R0+4*(i%32)+3}]'
        def issue(sl, t):
            a(f'buffer_load_dwordx4 {slot(sl)}, v2, s[40:43], s44 offen offset:{t*1024} {s.kvpol}')
            if t == 3: a('s_add_u32 s44, s44, 16384')
        a("""v_bfe_u32 v2, v1, 2, 2
        v_lshlrev_b32 v2, 8, v2
        v_lshrrev_b32 v3, 4, v1
        v_lshl_add_u32 v2, v3, 6, v2
        v_and_b32 v3, 3, v1
        v_lshl_add_u32 v2, v3, 4, v2
        v_lshlrev_b32 v3, 4, v1
        s_lshl_b32 s6, s65, 20
        s_lshl_b32 s44, s3, 12
        s_mov_b32 s42, 0x100000
        s_mov_b32 s43, 0x20000
        s_waitcnt lgkmcnt(0)
        s_add_u32 s40, s18, s6
        s_addc_u32 s41, s19, 0
        s_add_u32 s48, s20, s6
        s_addc_u32 s49, s21, 0""")
        if s.klin: a('v_mov_b32 v2, v3')
        for i in range(s.D0): issue(i, i & 3)
        s.stamp(0)
        nx = 0
        a("""v_lshrrev_b32 v8, 5, v1
        s_lshl_b32 s7, s3, 1
        v_add_u32 v8, s7, v8
        v_min_u32 v8, 4, v8
        v_lshlrev_b32 v8, 3, v8
        s_mul_i32 s7, s4, 1280
        s_mul_i32 s8, s5, 40
        s_add_u32 s7, s7, s8
        v_add_u32 v44, s7, v8
        global_load_dwordx2 v[42:43], v44, s[16:17]""")
        s.masks()
        first = True
        for i in range(s.D0, 31):
            a(f's_waitcnt vmcnt({D-1})')
            issue(i, i & 3)
        a(f"""s_mov_b32 s50, 0xaaaaaaaa
        s_mov_b32 s51, 0xaaaaaaaa
        s_mov_b32 s52, 0xcccccccc
        s_mov_b32 s53, 0xcccccccc
        s_mov_b32 s54, {f2u(128**-0.5):#x}
        s_mov_b32 s55, {f2u(L2E):#x}
        v_mov_b32 v34, 0xff800000
        v_mov_b32 v28, 0xff800000
        v_mov_b32 v29, 0xff800000
        v_mov_b32 v30, 0xff800000
        v_mov_b32 v31, 0xff800000
        s_mul_i32 s7, s3, {SCW}
        s_add_u32 s7, s7, {SC0}
        v_and_b32 v35, 60, v1
        v_add_u32 v35, s7, v35
        v_lshrrev_b32 v8, 4, v1
        v_lshlrev_b32 v8, 2, v8
        v_and_b32 v9, 3, v1
        v_add_u32 v8, v8, v9
        v_lshlrev_b32 v8, 5, v8
        s_barrier""")
        s.stamp(1)
        for w in range(4):
            a(f'ds_read_b128 v[{192+8*w}:{195+8*w}], v8 offset:{QP+w*512}')
            a(f'ds_read_b128 v[{196+8*w}:{199+8*w}], v8 offset:{QP+w*512+16}')
        a('s_waitcnt lgkmcnt(0)')
        for e in range(8):
            a(f'v_add_f32 v{192+e}, v{192+e}, v{200+e}\nv_add_f32 v{208+e}, v{208+e}, v{216+e}')
        for e in range(8): a(f'v_add_f32 v{192+e}, v{192+e}, v{208+e}')
        for m in range(4): a(f'v_cvt_pk_bf16_f32 v{200+m}, v{192+2*m}, v{193+2*m}')
        for t in range(4):
            mk = 0x000f000f << (4*t)
            a(f's_mov_b32 s56, {mk:#x}\ns_mov_b32 s57, {mk:#x}')
            for m in range(4): a(f'v_cndmask_b32 v{8+4*t+m}, 0, v{200+m}, s[56:57]')
        Dreg = lambda g: 24 + 4*(g & 1)
        def post1(g):
            d = Dreg(g)
            a(f"""s_nop 1
            v_cndmask_b32 v32, v{d}, v{d+1}, s[50:51]
            v_cndmask_b32 v33, v{d+2}, v{d+3}, s[50:51]
            v_cndmask_b32 v32, v32, v33, s[52:53]
            s_nop 1
            v_add_f32_dpp v32, v32, v32 quad_perm:[1,0,3,2] row_mask:0xf bank_mask:0xf
            s_nop 1
            v_add_f32_dpp v32, v32, v32 quad_perm:[2,3,0,1] row_mask:0xf bank_mask:0xf""")
        def post2(off):
            a(f"""v_cvt_pk_bf16_f32 v32, v32, v32
            v_lshlrev_b32 v32, 16, v32
            v_mul_f32 v32, s54, v32
            v_cvt_pk_bf16_f32 v32, v32, v32
            v_lshlrev_b32 v32, 16, v32
            v_max_f32 v34, v34, v32
            ds_write_b32 v35, v32 offset:{off}""")
        a('s_mov_b32 s45, 0\ns_nop 0')
        a('L_kloop:')
        for st in range(32):
            gi, t = st >> 2, st & 3
            a(f's_waitcnt vmcnt({D-1})')
            issue(st - 1, (st - 1) & 3)
            if st == 0:
                a("""s_cmp_lg_u32 s45, 7
                s_cbranch_scc1 L_nosw
                s_mov_b32 s40, s48
                s_mov_b32 s41, s49
                s_lshl_b32 s44, s3, 12
                v_mov_b32 v2, v3
                L_nosw:""")
            d = Dreg(gi)
            c = '0' if t == 0 else f'v[{d}:{d+3}]'
            a(f'v_mfma_f32_16x16x32_bf16 v[{d}:{d+3}], {slot(st)}, v[{8+4*t}:{11+4*t}], {c}')
            if t == 2: post1(gi - 1)
            if t == 3: post2(gi * 64)
        a("""v_add_u32 v35, 512, v35
        s_add_u32 s45, s45, 1
        s_cmp_lt_u32 s45, 8
        s_cbranch_scc1 L_kloop
        s_nop 7""")
        post1(7); post2(0)
        a("""s_nop 1
        v_max_f32_dpp v34, v34, v34 row_ror:4 row_mask:0xf bank_mask:0xf
        s_nop 1
        v_max_f32_dpp v34, v34, v34 row_ror:8 row_mask:0xf bank_mask:0xf
        s_nop 1
        v_readlane_b32 s56, v34, 0
        v_readlane_b32 s57, v34, 16
        v_readlane_b32 s58, v34, 32
        v_readlane_b32 s59, v34, 48
        s_nop 0
        v_mov_b32 v34, s56
        v_max_f32 v34, s57, v34
        v_max_f32 v34, s58, v34
        v_max_f32 v34, s59, v34
        v_mul_f32 v41, s55, v34
        v_subrev_u32 v35, 4032, v35
        s_waitcnt lgkmcnt(0)
        ds_read_b32 v39, v35
        v_mov_b32 v36, 0
        v_mov_b32 v28, 0
        v_mov_b32 v29, 0
        v_mov_b32 v30, 0
        v_mov_b32 v31, 0""")
        s.stamp(2)
        def prep(g):
            a(f"""s_waitcnt lgkmcnt(0)
            v_fma_f32 v39, v39, s55, -v41
            v_exp_f32 v39, v39
            s_nop 0
            v_add_f32 v36, v36, v39
            v_cvt_pk_bf16_f32 v{37+(g&1)}, v39, v39""")
        prep(0)
        def vstep(st, last):
            gi, t = st >> 2, st & 3
            if not last or st == 0:
                a(f's_waitcnt vmcnt({D-1})')
                issue(st - 1, (st - 1) & 3)
            elif 31 - st < D:
                a(f's_waitcnt vmcnt({31-st})')
            if t == 0 and not (last and gi == 7): a(f'ds_read_b32 v39, v35 offset:{(gi+1)*64}')
            for m in range(4):
                a(f'v_and_b32_dpp v{24+m}, v{37+(gi&1)}, v{4+m} row_newbcast:{4*t} row_mask:0xf bank_mask:0xf')
            a('s_nop 1')
            a(f'v_mfma_f32_16x16x32_bf16 v[28:31], v[24:27], {slot(st)}, v[28:31]')
            if t == 2 and not (last and gi == 7): prep(gi + 1)
        a('s_mov_b32 s45, 0\ns_nop 0')
        a('L_vloop:')
        for st in range(32): vstep(st, False)
        a("""v_add_u32 v35, 512, v35
        s_add_u32 s45, s45, 1
        s_cmp_lt_u32 s45, 7
        s_cbranch_scc1 L_vloop""")
        for st in range(32): vstep(st, True)
        a(f"""v_add_f32_dpp v36, v36, v36 row_ror:4 row_mask:0xf bank_mask:0xf
        v_and_b32 v8, 15, v1
        v_lshlrev_b32 v8, 5, v8
        v_add_f32_dpp v36, v36, v36 row_ror:8 row_mask:0xf bank_mask:0xf
        v_lshrrev_b32 v9, 4, v1
        v_lshl_add_u32 v8, v9, 4, v8
        v_readlane_b32 s56, v36, 0
        v_readlane_b32 s57, v36, 16
        v_readlane_b32 s58, v36, 32
        v_readlane_b32 s59, v36, 48
        s_lshl_b32 s7, s3, 9
        v_add_u32 v8, s7, v8
        v_mov_b32 v35, s56
        v_add_f32 v35, s57, v35
        v_add_f32 v35, s58, v35
        v_add_f32 v35, s59, v35
        s_lshl_b32 s7, s3, 3
        v_mov_b32 v9, s7
        s_mov_b32 exec_hi, 0
        ds_write_b128 v8, v[28:31] offset:{OP}
        s_mov_b64 exec, 1
        ds_write_b64 v9, v[34:35] offset:{ST}
        s_mov_b64 exec, -1
        s_waitcnt lgkmcnt(0)""")
        s.stamp(3)
        a('s_barrier')
        s.ffn_wregs(streamer=True)
        a(f"""s_mul_i32 s7, s65, 2560
        s_lshl_b32 s8, s3, 10
        s_add_u32 s7, s7, s8
        v_lshl_add_u32 v45, v1, 4, s7
        v_add_u32 v44, {WS_H}, v44
        s_barrier
        s_cmp_eq_u32 s3, 3
        s_cbranch_scc1 L_tail
        s_cmp_lg_u32 s3, 2
        s_cbranch_scc1 L_red_full
        s_mov_b32 exec_hi, 0
        L_red_full:""")
        s.stamp(8)
        s.poll(['global_load_dwordx4 v[24:27], v45, s[38:39] sc1'], [24, 25, 26, 27], 32)
        a('s_mov_b64 exec, -1')
        s.stamp(9)
        for c in ('row_ror:8 row_mask:0xf', 'row_ror:4 row_mask:0xf', 'row_ror:2 row_mask:0xf', 'row_ror:1 row_mask:0xf', 'row_bcast:15 row_mask:0xa'):
            for r in range(24, 28): a(f'v_add_f32_dpp v{r}, v{r}, v{r} {c} bank_mask:0xf')
        a("""v_cvt_pk_bf16_f32 v24, v24, v25
        v_cvt_pk_bf16_f32 v26, v26, v27
        v_lshlrev_b32 v28, 16, v24
        v_and_b32 v29, 0xffff0000, v24
        v_lshlrev_b32 v30, 16, v26
        v_and_b32 v31, 0xffff0000, v26
        v_lshlrev_b32 v24, 16, v42
        v_and_b32 v25, 0xffff0000, v42
        v_lshlrev_b32 v26, 16, v43
        v_and_b32 v27, 0xffff0000, v43
        v_add_f32 v24, v24, v28
        v_add_f32 v25, v25, v29
        v_add_f32 v26, v26, v30
        v_add_f32 v27, v27, v31
        v_cvt_pk_bf16_f32 v24, v24, v25
        v_cvt_pk_bf16_f32 v25, v26, v27
        v_min_u32 v24, -2, v24
        v_min_u32 v25, -2, v25
        s_mov_b32 exec_lo, 0x80000000
        s_cmp_eq_u32 s3, 2
        s_cselect_b32 exec_hi, 0, 0x80000000
        global_store_dwordx2 v44, v[24:25], s[38:39] sc1
        s_mov_b64 exec, -1""")
        s.stamp(5)
        a('s_branch L_tail')

    def ffn_wregs(s, streamer):
        a = s.a
        la = s.lab('wa'); ld = s.lab('wd')
        a(f"""v_lshrrev_b32 v46, 4, v1
        v_lshlrev_b32 v46, 8, v46
        v_bfe_u32 v47, v1, 2, 2
        v_lshl_add_u32 v46, v47, 5, v46
        v_and_b32 v47, 3, v1
        v_lshl_add_u32 v46, v47, 3, v46
        v_add_u32 v46, {IMG}, v46
        s_cmp_lt_u32 s2, 216
        s_cbranch_scc1 {la}
        s_lshl_b32 s7, s3, 10
        v_add_u32 v46, s7, v46""")
        for i in range(7):
            a(f'ds_read_b64_tr_b16 v[{64+4*i}:{65+4*i}], v46 offset:{i*8192}')
            a(f'ds_read_b64_tr_b16 v[{66+4*i}:{67+4*i}], v46 offset:{i*8192+128}')
        a(f's_branch {ld}\n{la}:')
        if streamer:
            a(f's_cmp_lg_u32 s3, 3\ns_cbranch_scc1 {ld}')
            for m in range(20):
                a(f'ds_read_b64_tr_b16 v[{64+4*m}:{65+4*m}], v46 offset:{m*1024}')
                a(f'ds_read_b64_tr_b16 v[{66+4*m}:{67+4*m}], v46 offset:{m*1024+128}')
        a(f'{ld}:')

    def helper(s):
        a = s.a; W0 = 96; s.sv = 92
        wreg = lambda i: f'v[{W0+4*i}:{W0+4*i+3}]'
        a('L_helper:')
        s.stamp_reg(68)
        a(f"""
        s_sub_u32 s9, s3, 4
        v_lshrrev_b32 v2, 4, v1
        v_mul_u32_u24 v2, 40, v2
        s_mul_i32 s7, s9, 160
        v_add_u32 v3, s7, v2
        v_lshlrev_b32 v2, 13, v3
        v_and_b32 v8, 15, v1
        v_lshl_add_u32 v2, v8, 4, v2
        v_lshlrev_b32 v3, 3, v3
        s_mul_i32 s49, s4, 5
        s_lshr_b32 s49, s49, 2
        s_lshl_b32 s49, s49, {4 if s.rot else 31}
        {'' if s.rot else 's_mov_b32 s49, 0'}
        v_add_u32 v3, s49, v3
        v_lshlrev_b32 v8, 4, v1
        v_lshlrev_b32 v9, 2, v1
        s_mul_i32 s7, s4, 1280
        s_lshl_b32 s8, s5, 8
        s_mov_b32 s47, 0x20000
        s_sub_u32 s46, 5242880, s8
        s_lshl_b32 s48, s49, 11
        s_waitcnt lgkmcnt(0)
        s_add_u32 s10, s16, s7
        s_addc_u32 s11, s17, 0
        s_add_u32 s44, s22, s8
        s_addc_u32 s45, s23, 0
        global_load_dwordx4 v[12:15], v8, s[10:11]
        global_load_dword v16, v9, s[10:11] offset:1024""")
        for i in range(40):
            a(f'buffer_load_dwordx4 {wreg(i)}, v2, s[44:47], s48 offen {s.wpol}')
            if i < 39:
                a('s_add_u32 s48, s48, 8192')
                if s.rot and (i & 3) == 3: a(f's_cmp_eq_u32 s48, {40*8192}\ns_cselect_b32 s48, 0, s48')
        s.stamp_reg(70)
        a(f"""v_mov_b32 v20, -1
        v_mov_b32 v21, -1
        v_mov_b32 v22, -1
        v_mov_b32 v23, -1
        s_and_b32 s12, s2, 7
        s_lshr_b32 s13, s2, 3
        s_mul_i32 s14, s12, 27
        s_add_u32 s14, s14, s13
        s_mul_i32 s15, s12, 5
        s_add_u32 s15, s15, s13
        s_sub_u32 s15, s15, 27
        s_cmp_eq_u32 s9, 3
        s_cbranch_scc1 L_clr3
        s_mul_i32 s7, s65, 2560
        s_lshl_b32 s8, s9, 10
        s_add_u32 s7, s7, s8
        v_add_u32 v24, s7, v8
        s_cmp_eq_u32 s9, 2
        s_cselect_b32 exec_hi, 0, -1
        global_store_dwordx4 v24, v[20:23], s[38:39] sc1
        s_branch L_clrd
        L_clr3:
        s_mul_i32 s7, s4, 1280
        s_mul_i32 s8, s5, 40
        s_add_u32 s7, s7, s8
        s_add_u32 s7, s7, {WS_H}
        v_add_u32 v24, s7, v9
        s_lshl_b32 s7, s14, 7
        s_add_u32 s7, s7, {WS_ACT - 128}
        v_add_u32 v25, s7, v9
        v_cmp_lt_u32 vcc, 31, v1
        s_nop 1
        v_cndmask_b32 v24, v24, v25, vcc
        s_mov_b32 exec_lo, 0x3ff
        s_cmp_lt_u32 s2, 216
        s_cselect_b32 exec_hi, -1, 0
        global_store_dword v24, v20, s[38:39] sc1
        L_clrd:
        s_mov_b64 exec, -1""")
        a('v_mov_b32 v26, v8\nv_mov_b32 v27, v9')
        s.masks()
        a('s_waitcnt vmcnt(41)')
        s.stamp_reg(72)
        s.layernorm(12, 28, 40, True)
        s.stamp_reg(74)
        a(f"""v_mul_u32_u24 v8, 52429, v1
        v_lshrrev_b32 v8, 18, v8
        v_mul_u32_u24 v8, 160, v8
        v_lshl_add_u32 v8, v1, 5, v8
        v_add_u32 v9, 256, v1
        v_mul_u32_u24 v10, 52429, v9
        v_lshrrev_b32 v10, 20, v10
        v_mul_u32_u24 v10, 160, v10
        v_lshl_add_u32 v9, v9, 3, v10
        ds_write_b128 v8, v[28:31] offset:{XD}
        ds_write_b128 v8, v[32:35] offset:{XD+16}
        ds_write_b64 v9, v[36:37] offset:{XD}
        ds_write_b128 v8, v[28:31] offset:{XD+160}
        ds_write_b128 v8, v[32:35] offset:{XD+176}
        ds_write_b64 v9, v[36:37] offset:{XD+160}
        s_waitcnt lgkmcnt(0)""")
        for i in range(10): a(f'ds_read_b128 v[{48+4*i}:{51+4*i}], v3 offset:{XD+16*i}')
        a('s_waitcnt lgkmcnt(0)')
        for i in range(40):
            ar = 28 + 4*(i & 1)
            for m in range(4): a(f'v_and_b32 v{ar+m}, v{48+i}, v{4+m}')
            a(f's_waitcnt vmcnt({40-i})')
            if i == 0: s.stamp_reg(76)
            if i == 20: s.stamp_reg(78)
            if i == 0: a('s_nop 0')
            else: a('s_nop 0')
            a(f'v_mfma_f32_16x16x32_bf16 v[20:23], v[{ar}:{ar+3}], {wreg(i)}, ' + ('0' if i == 0 else 'v[20:23]'))
        a(f"""v_and_b32 v8, 15, v1
        v_lshlrev_b32 v8, 5, v8
        v_lshrrev_b32 v9, 4, v1
        v_lshl_add_u32 v17, v9, 4, v8
        s_lshl_b32 s7, s9, 9
        v_add_u32 v8, s7, v17
        s_nop 3
        s_mov_b32 exec_hi, 0
        ds_write_b128 v8, v[20:23] offset:{QP}
        s_mov_b64 exec, -1
        s_waitcnt vmcnt(0) lgkmcnt(0)""")
        s.stamp(1)
        for i, r in enumerate((68, 70, 72, 74, 76, 78)): s.stamp((0,12,13,14,15,11)[i], r)
        a('s_barrier')
        a(f"""s_cmp_lg_u32 s9, 0
        s_cbranch_scc1 L_nocnt
        s_mov_b64 exec, 1
        v_mov_b32 v8, 0
        v_mov_b32 v9, 1
        global_atomic_add v8, v9, s[36:37] sc1
        s_mov_b64 exec, -1
        L_nocnt:""")
        a(f"""s_lshl_b32 s7, s9, 6
        v_add_u32 v18, s7, v1
        {'s_branch L_stD' if s.noffn else ''}
        s_cmp_lt_u32 s2, 216
        s_cbranch_scc0 L_stB
        s_mov_b32 s7, 3456
        v_mul_lo_u32 v8, v18, s7
        s_lshl_b32 s8, s14, 4
        s_add_u32 s44, s28, s8
        s_addc_u32 s45, s29, 0
        s_sub_u32 s46, 2211840, s8
        s_add_u32 s40, s30, s8
        s_addc_u32 s41, s31, 0
        s_mov_b32 s42, s46
        s_mov_b32 s43, 0x20000
        s_mov_b32 s48, {256*3456}
        s_mov_b32 s49, {512*3456}""")
        for i, so in enumerate(('0', 's48', 's49')):
            a(f'buffer_load_dwordx4 v[{48+8*i}:{51+8*i}], v8, s[44:47], {so} offen {s.fpol}')
            a(f'buffer_load_dwordx4 v[{52+8*i}:{55+8*i}], v8, s[40:43], {so} offen {s.fpol}')
        a(f'v_lshlrev_b32 v9, 5, v18\nv_add_u32 v9, {IMG}, v9')
        for i in range(3):
            a(f's_waitcnt vmcnt({4-2*i})')
            for q in range(4):
                a(f'ds_write2_b32 v9, v{48+8*i+q}, v{52+8*i+q} offset0:{2*q} offset1:{2*q+1}')
            if i < 2: a('v_add_u32 v9, 8192, v9')
        a(f"""s_branch L_stD
        L_stB:
        v_lshrrev_b32 v8, 1, v18
        v_mul_u32_u24 v8, 1280, v8
        v_and_b32 v9, 1, v18
        v_lshl_add_u32 v8, v9, 4, v8
        s_lshl_b32 s8, s15, 5
        s_add_u32 s44, s32, s8
        s_addc_u32 s45, s33, 0
        s_sub_u32 s46, 2211840, s8
        s_mov_b32 s48, 0
        v_lshlrev_b32 v9, 4, v18
        v_add_u32 v9, {IMG}, v9""")
        for half in range(2):
            for i in range(7):
                a(f'buffer_load_dwordx4 v[{48+4*i}:{51+4*i}], v8, s[44:47], s48 offen {s.fpol}')
                a(f's_add_u32 s48, s48, {128*1280}')
            for i in range(7):
                a(f's_waitcnt vmcnt({6-i})')
                a(f'ds_write_b128 v9, v[{48+4*i}:{51+4*i}] offset:{(half*7+i)*4096}')
            a('s_waitcnt lgkmcnt(0)')
        a('L_stD:')
        a(f"""v_lshrrev_b32 v8, 4, v1
        v_lshlrev_b32 v8, 3, v8
        s_lshl_b32 s7, s9, 5
        v_add_u32 v19, s7, v8
        v_mul_u32_u24 v8, 1280, v19
        v_and_b32 v9, 15, v1
        v_lshl_add_u32 v8, v9, 4, v8
        s_mul_i32 s8, s5, {128*1280}
        s_add_u32 s44, s24, s8
        s_addc_u32 s45, s25, 0
        s_mov_b32 s46, {128*1280}
        s_mov_b32 s48, 3840
        s_mov_b32 s49, 7680""")
        for i in range(8):
            for n in range(5):
                so = ('0', 's48', 's49')[i // 3]; off = (i % 3)*1280 + n*256
                if s.nowo: continue
                a(f's_waitcnt vmcnt({s.HP-1})')
                a(f'buffer_load_dwordx4 {wreg(i*5+n)}, v8, s[44:47], {so} offen offset:{off} {s.wpol}')
        s.stamp(2)
        a(f"""v_mul_u32_u24 v8, 52429, v18
        v_lshrrev_b32 v8, 18, v8
        v_mul_u32_u24 v9, 5, v8
        v_sub_u32 v9, v18, v9
        v_mul_u32_u24 v8, 2560, v8
        v_lshl_add_u32 v8, v9, 9, v8
        s_mul_i32 s7, s4, {32*2560}
        s_lshl_b32 s8, s5, 4
        s_add_u32 s7, s7, s8
        v_add_u32 v45, s7, v8
        v_lshlrev_b32 v44, 4, v18
        v_lshlrev_b32 v19, 2, v19
        s_mul_i32 s7, s9, 2560
        v_add_u32 v17, s7, v17
        v_mov_b32 v16, 0
        s_mov_b32 s55, {f2u(L2E):#x}""")
        a(f"""s_cmp_lg_u32 s9, 0
        s_cbranch_scc1 L_cntd
        s_mov_b32 s64, {s.spin}
        L_cnt:
        global_load_dword v8, v16, s[36:37] sc1
        s_waitcnt vmcnt(0)
        v_readfirstlane_b32 s7, v8
        s_cmp_ge_u32 s7, 256
        s_cbranch_scc1 L_cntd
        s_sleep 8
        s_sub_u32 s64, s64, 1
        s_cbranch_scc0 L_cnt
        L_cntd:
        s_waitcnt vmcnt(0) lgkmcnt(0)
        s_barrier""")
        s.stamp(3)
        a(f'ds_read_b128 v[8:11], v16 offset:{ST}\nds_read_b128 v[12:15], v16 offset:{ST+16}')
        for w in range(4):
            a(f'ds_read_b128 v[{48+8*w}:{51+8*w}], v19 offset:{OP+w*512}')
            a(f'ds_read_b128 v[{52+8*w}:{55+8*w}], v19 offset:{OP+w*512+16}')
        a("""s_waitcnt lgkmcnt(8)
        v_max_f32 v20, v8, v10
        v_max3_f32 v20, v20, v12, v14
        v_sub_f32 v8, v8, v20
        v_sub_f32 v10, v10, v20
        v_sub_f32 v12, v12, v20
        v_sub_f32 v14, v14, v20
        v_mul_f32 v8, s55, v8
        v_mul_f32 v10, s55, v10
        v_mul_f32 v12, s55, v12
        v_mul_f32 v14, s55, v14
        v_exp_f32 v8, v8
        v_exp_f32 v10, v10
        v_exp_f32 v12, v12
        v_exp_f32 v14, v14
        v_mul_f32 v20, v8, v9
        v_fmac_f32 v20, v10, v11
        v_fmac_f32 v20, v12, v13
        v_fmac_f32 v20, v14, v15
        v_rcp_f32 v20, v20
        s_waitcnt lgkmcnt(0)""")
        for e in range(8): a(f'v_mul_f32 v{48+e}, v8, v{48+e}')
        for w in range(1, 4):
            for e in range(8): a(f'v_fmac_f32 v{48+e}, v{8+2*w}, v{48+8*w+e}')
        for e in range(8): a(f'v_mul_f32 v{48+e}, v20, v{48+e}')
        for e in range(8): a(f'v_cvt_pk_bf16_f32 v{48+e}, v{48+e}, v{48+e}')
        for i in range(8):
            ar = 28 + 4*(i & 1)
            for m in range(4): a(f'v_and_b32 v{ar+m}, v{48+i}, v{4+m}')
            a('s_nop 1')
            for n in range(5):
                a(f'v_mfma_f32_16x16x32_bf16 v[{60+4*n}:{63+4*n}], v[{ar}:{ar+3}], {wreg(i*5+n)}, ' + ('0' if i == 0 else f'v[{60+4*n}:{63+4*n}]'))
        a('s_mov_b32 exec_hi, 0\ns_nop 3')
        for n in range(5): a(f'ds_write_b128 v17, v[{60+4*n}:{63+4*n}] offset:{WOP+n*512}')
        a("""s_mov_b64 exec, -1
        s_waitcnt lgkmcnt(0)
        s_barrier
        s_cmp_eq_u32 s9, 3
        s_cbranch_scc1 L_pubd""")
        for w in range(4): a(f'ds_read_b128 v[{48+4*w}:{51+4*w}], v44 offset:{WOP+w*2560}')
        a('s_waitcnt lgkmcnt(0)')
        for e in range(4): a(f'v_add_f32 v{48+e}, v{48+e}, v{52+e}\nv_add_f32 v{56+e}, v{56+e}, v{60+e}')
        for e in range(4): a(f'v_add_f32 v{48+e}, v{48+e}, v{56+e}')
        for e in range(4): a(f'v_min_u32 v{48+e}, -2, v{48+e}')
        a("""s_cmp_eq_u32 s9, 2
        s_cselect_b32 exec_hi, 0, -1
        global_store_dwordx4 v45, v[48:51], s[38:39] sc1
        s_mov_b64 exec, -1""")
        s.stamp(4)
        a('L_pubd:')
        s.ffn_wregs(streamer=False)

    def tail(s):
        a = s.a; s.sv = 60
        a(f"""L_tail:
        s_and_b32 s12, s2, 7
        s_lshr_b32 s13, s2, 3
        s_cmp_lt_u32 s2, 216
        s_cbranch_scc0 L_tailB
        s_mul_i32 s14, s12, 27
        s_add_u32 s14, s14, s13
        s_mul_i32 s7, s3, 1280
        s_add_u32 s7, s7, {WS_H}
        v_lshl_add_u32 v8, v1, 4, s7
        v_lshl_add_u32 v9, v1, 2, s7
        s_barrier""")
        s.poll(['global_load_dwordx4 v[12:15], v8, s[38:39] sc1', 'global_load_dword v16, v9, s[38:39] offset:1024 sc1'],
               [12, 13, 14, 15, 16], 17)
        s.stamp(6)
        s.layernorm(12, 28, 40, False)
        s.stamp(10)
        a(f"""s_mul_i32 s7, s3, {XN2S}
        v_lshl_add_u32 v8, v1, 4, s7
        v_lshl_add_u32 v9, v1, 2, s7
        ds_write_b128 v8, v[12:15] offset:{XN2}
        ds_write_b32 v9, v16 offset:{XN2+1024}
        v_and_b32 v10, 7, v1
        v_mul_u32_u24 v11, {XN2S}, v10
        v_lshrrev_b32 v17, 4, v1
        v_lshl_add_u32 v11, v17, 4, v11
        s_waitcnt lgkmcnt(0)
        s_barrier
        s_cmp_lg_u32 s3, 3
        s_cbranch_scc1 L_end""")
        for m in range(20): a(f'ds_read_b128 v[{144+4*m}:{147+4*m}], v11 offset:{XN2+m*64}')
        a(f"""v_lshlrev_b32 v10, 4, v10
        v_lshl_add_u32 v10, v17, 2, v10
        s_lshl_b32 s7, s14, 7
        s_add_u32 s7, s7, {WS_ACT}
        v_add_u32 v10, s7, v10
        s_mov_b32 s55, {f2u(-L2E):#x}""")
        for m in range(20):
            a(f's_waitcnt lgkmcnt({min(15, 19-m)})')
            a(f'v_mfma_f32_16x16x32_bf16 v[20:23], v[{64+4*m}:{67+4*m}], v[{144+4*m}:{147+4*m}], ' + ('0' if m == 0 else 'v[20:23]'))
        a("""s_nop 7
        v_cvt_pk_bf16_f32 v20, v20, v21
        v_cvt_pk_bf16_f32 v22, v22, v23
        v_lshlrev_b32 v24, 16, v20
        v_and_b32 v25, 0xffff0000, v20
        v_mul_f32 v26, s55, v24
        v_mul_f32 v27, s55, v25
        v_exp_f32 v26, v26
        v_exp_f32 v27, v27
        v_lshlrev_b32 v28, 16, v22
        v_add_f32 v26, 1.0, v26
        v_add_f32 v27, 1.0, v27
        v_rcp_f32 v26, v26
        v_rcp_f32 v27, v27
        v_and_b32 v29, 0xffff0000, v22
        v_mul_f32 v24, v24, v26
        v_mul_f32 v25, v25, v27
        v_cvt_pk_bf16_f32 v24, v24, v25
        v_lshlrev_b32 v26, 16, v24
        v_and_b32 v27, 0xffff0000, v24
        v_mul_f32 v26, v26, v28
        v_mul_f32 v27, v27, v29
        v_cvt_pk_bf16_f32 v26, v26, v27
        v_min_u32 v26, -2, v26
        s_mov_b32 exec_lo, 0x00ff00ff
        s_mov_b32 exec_hi, 0x00ff00ff
        global_store_dword v10, v26, s[38:39] sc1""")
        s.stamp(7)
        a('s_endpgm')
        a(f"""L_tailB:
        s_mul_i32 s15, s12, 5
        s_add_u32 s15, s15, s13
        s_sub_u32 s15, s15, 27
        v_and_b32 v10, 7, v1
        v_lshrrev_b32 v17, 4, v1
        v_lshlrev_b32 v8, 4, v10
        v_lshl_add_u32 v8, v17, 7, v8
        s_lshl_b32 s7, s3, 9
        s_add_u32 s7, s7, {WS_ACT}
        v_add_u32 v8, s7, v8
        v_add_u32 v9, 0x2000, v8
        v_add_u32 v11, 0x4000, v8
        s_movk_i32 s8, 0x5000
        s_cmp_lt_u32 s3, 6
        s_cselect_b32 s8, 0x6000, s8
        v_add_u32 v12, s8, v8
        v_mul_u32_u24 v13, 1280, v10
        v_lshl_add_u32 v13, v17, 3, v13
        s_lshl_b32 s7, s15, 5
        v_add_u32 v13, s7, v13
        v_add_u32 v14, {WS_H}, v13
        s_barrier
        s_cmp_lg_u32 s3, 3
        s_cbranch_scc1 L_noh""")
        s.poll(['global_load_dwordx2 v[18:19], v14, s[38:39] sc1'], [18, 19], 15)
        a('L_noh:')
        lds = []
        for i in range(7):
            base = (8, 8, 9, 9, 11, 11, 12)[i]; off = 0
            if i < 6 and (i & 1): off = 4096
            lds.append((base, off))
        loads = []
        for i, (base, off) in enumerate(lds):
            if off == 4096:
                loads.append(f'global_load_dwordx4 v[{96+4*i}:{99+4*i}], v{base}, s[66:67] sc1')
            else:
                loads.append(f'global_load_dwordx4 v[{96+4*i}:{99+4*i}], v{base}, s[38:39] sc1')
        a('s_add_u32 s66, s38, 4096\ns_addc_u32 s67, s39, 0')
        s.poll(loads, list(range(96, 124)), 15)
        s.stamp(6)
        a('s_waitcnt lgkmcnt(0)')
        for i in range(7):
            a(f'v_mfma_f32_16x16x32_bf16 v[20:23], v[{64+4*i}:{67+4*i}], v[{96+4*i}:{99+4*i}], ' + ('0' if i == 0 else 'v[20:23]'))
        a(f"""v_lshlrev_b32 v8, 6, v10
        v_lshl_add_u32 v8, v17, 4, v8
        s_lshl_b32 s7, s3, 9
        v_add_u32 v9, s7, v8
        s_mov_b32 exec_lo, 0x00ff00ff
        s_mov_b32 exec_hi, 0x00ff00ff
        s_nop 2
        ds_write_b128 v9, v[20:23] offset:{BP}
        s_waitcnt lgkmcnt(0)
        s_barrier
        s_cmp_lg_u32 s3, 3
        s_cbranch_scc1 L_end""")
        for w in range(8): a(f'ds_read_b128 v[{24+4*w}:{27+4*w}], v8 offset:{BP+w*512}')
        a('s_waitcnt lgkmcnt(0)')
        for step in (16, 8, 4):
            for r in range(step): a(f'v_add_f32 v{24+r}, v{24+r}, v{24+step+r}')
        a("""v_cvt_pk_bf16_f32 v24, v24, v25
        v_cvt_pk_bf16_f32 v26, v26, v27
        v_lshlrev_b32 v28, 16, v24
        v_and_b32 v29, 0xffff0000, v24
        v_lshlrev_b32 v30, 16, v26
        v_and_b32 v31, 0xffff0000, v26
        v_lshlrev_b32 v24, 16, v18
        v_and_b32 v25, 0xffff0000, v18
        v_lshlrev_b32 v26, 16, v19
        v_and_b32 v27, 0xffff0000, v19
        v_add_f32 v24, v24, v28
        v_add_f32 v25, v25, v29
        v_add_f32 v26, v26, v30
        v_add_f32 v27, v27, v31
        v_cvt_pk_bf16_f32 v24, v24, v25
        v_cvt_pk_bf16_f32 v25, v26, v27
        global_store_dwordx2 v13, v[24:25], s[34:35]""")
        s.stamp(7)

    def text(s):
        s.gen()
        body = '\n'.join(s.L)
        k = NAME + '_kernel'
        return f"""{HEADER}; @launch grid=(256,1,1) block=(512,1,1) lds={LDS_BYTES}
.amdgcn_target "amdgcn-amd-amdhsa--gfx950"
.text
.globl {k}
.p2align 8
.type {k},@function
{k}:
{body}
.section .rodata,"a"
.p2align 6
.amdhsa_kernel {k}
  .amdhsa_next_free_vgpr 256
  .amdhsa_next_free_sgpr 102
  .amdhsa_accum_offset 256
  .amdhsa_group_segment_fixed_size 0
  .amdhsa_kernarg_size 96
  .amdhsa_user_sgpr_count 2
  .amdhsa_user_sgpr_kernarg_segment_ptr 1
  .amdhsa_system_sgpr_workgroup_id_x 1
  .amdhsa_float_denorm_mode_32 3
.end_amdhsa_kernel
"""

def parse_kw(args):
    kw = {}
    for x in args:
        k, v = x.split('=')
        try: v = int(v)
        except ValueError: v = v.replace('+', ' ').replace('-', '')
        kw[k] = v
    return kw

if __name__ == '__main__':
    out = sys.argv[1]
    open(out, 'w').write(G(**parse_kw(sys.argv[2:])).text())
```

```python
import sys, struct

NAME = 'sequential_preLN__mha_block_cached__swiglu_ffn__decode'

def f2u(x): return struct.unpack('<I', struct.pack('<f', x))[0]

HEADER = """; Kernarg layout for this problem (96 bytes, ptrs only, base s[0:1]):
"""

WS_P   = 0
WS_H   = 256*2560
WS_ACT = WS_H + 10240
WS_STAMP = 1 << 20

XD  = 0
QP  = 5120
OP  = 7168
ST  = 9216
SC0 = 9344
SCW = 64*64
WOP = SC0 + 4*SCW
XN2 = WOP + 10240
XN2S = 1296
BP  = XN2
IMG = XN2 + 8*XN2S
LDS_BYTES = IMG + 57344

L2E = 1.4426950408889634

class G:
    def __init__(s, D=6, D0=6, HP=2, kvpol='nt', wpol='', fpol='', stamps=False, spin=1<<14, psleep=0, tlbwarm=False, DE=0, NE=4, FQ=16, NP=48, DP=6, N0=12, rot=0, hmap=0, nowo=0, noffn=0, klin=0):
        s.hmap=hmap; s.rot=rot; s.NP=NP; s.FQ=FQ; s.DE=DE or D; s.NE=NE if DE else 0; s.DP=DP; s.N0=N0; s.nowo=nowo; s.noffn=noffn; s.klin=klin; s.sv=60
        s.L = []; s.D = D; s.D0 = D0; s.HP = HP; s.kvpol = kvpol; s.wpol = wpol; s.fpol = fpol
        s.stamps = stamps; s.spin = spin; s.psleep = psleep; s.nl = 0; s.tlbwarm = tlbwarm
    def a(s, t):
        for line in t.strip('\n').split('\n'): s.L.append('    ' + line.strip() if not line.strip().endswith(':') else line.strip())
    def lab(s, p):
        s.nl += 1; return f'L_{p}_{s.nl}'
    def stamp_reg(s, r):
        if s.stamps: s.a(f's_memrealtime s[{r}:{r+1}]')
    def stamp(s, idx, r=None):
        if not s.stamps: return
        s.a('s_memrealtime s[92:93]' if r is None else 's_nop 0')
        s.a('s_waitcnt lgkmcnt(0)')
        if r is not None: s.a(f's_mov_b32 s92, s{r}')
        s.a(f"""
        s_mov_b64 s[94:95], exec
        s_mov_b64 exec, 1
        s_lshl_b32 s93, s2, 3
        s_add_u32 s93, s93, s3
        s_lshl_b32 s93, s93, 6
        s_add_u32 s93, s93, {WS_STAMP + idx*4}
        v_mov_b32 v{s.sv}, s93
        v_mov_b32 v{s.sv+1}, s92
        global_store_dword v{s.sv}, v{s.sv+1}, s[38:39]
        s_mov_b64 exec, s[94:95]""")

    def wave_sum(s, v, sd):
        for c in ('row_ror:8', 'row_ror:4', 'row_ror:2', 'row_ror:1'):
            s.a(f's_nop 1\nv_add_f32_dpp v{v}, v{v}, v{v} {c} row_mask:0xf bank_mask:0xf')
        s.a(f's_nop 1\nv_add_f32_dpp v{v}, v{v}, v{v} row_bcast:15 row_mask:0xa bank_mask:0xf')
        s.a(f's_nop 1\nv_add_f32_dpp v{v}, v{v}, v{v} row_bcast:31 row_mask:0xc bank_mask:0xf')
        s.a(f's_nop 1\nv_readlane_b32 s{sd}, v{v}, 63')

    def layernorm(s, src, f, t, dup):
        a = s.a
        for i in range(5):
            a(f'v_lshlrev_b32 v{f+2*i}, 16, v{src+i}\nv_and_b32 v{f+2*i+1}, 0xffff0000, v{src+i}')
        a(f'v_add_f32 v{t}, v{f}, v{f+1}')
        for i in range(2, 10): a(f'v_add_f32 v{t}, v{t}, v{f+i}')
        s.wave_sum(t, 60)
        a(f's_mov_b32 s61, {f2u(1.0/640):#x}')
        a(f's_nop 0\nv_mov_b32 v{t}, s60\nv_mul_f32 v{t}, s61, v{t}')
        a(f'v_sub_f32 v{t+1}, v{f}, v{t}\nv_mul_f32 v{t+2}, v{t+1}, v{t+1}')
        for i in range(1, 10):
            a(f'v_sub_f32 v{t+1}, v{f+i}, v{t}\nv_fmac_f32 v{t+2}, v{t+1}, v{t+1}')
        s.wave_sum(t+2, 60)
        a(f'v_cvt_pk_bf16_f32 v{t}, v{t}, v{t}\nv_lshlrev_b32 v{t}, 16, v{t}')
        a(f'v_mov_b32 v{t+2}, s60\nv_mul_f32 v{t+2}, s61, v{t+2}')
        a(f'v_cvt_pk_bf16_f32 v{t+2}, v{t+2}, v{t+2}\nv_lshlrev_b32 v{t+2}, 16, v{t+2}')
        a(f'v_add_f32 v{t+2}, {f2u(1e-5):#x}, v{t+2}')
        a(f'v_cvt_pk_bf16_f32 v{t+2}, v{t+2}, v{t+2}\nv_lshlrev_b32 v{t+2}, 16, v{t+2}')
        a(f'v_sqrt_f32 v{t+2}, v{t+2}\ns_nop 0')
        a(f'v_cvt_pk_bf16_f32 v{t+2}, v{t+2}, v{t+2}\nv_lshlrev_b32 v{t+2}, 16, v{t+2}')
        a(f'v_rcp_f32 v{t+3}, v{t+2}')
        for i in range(10): a(f'v_sub_f32 v{f+i}, v{f+i}, v{t}')
        for i in range(5): a(f'v_cvt_pk_bf16_f32 v{src+i}, v{f+2*i}, v{f+2*i+1}')
        for i in range(5):
            a(f'v_lshlrev_b32 v{f+2*i}, 16, v{src+i}\nv_and_b32 v{f+2*i+1}, 0xffff0000, v{src+i}')
        for i in range(10):
            a(f'v_mul_f32 v{t}, v{f+i}, v{t+3}\nv_fma_f32 v{t+1}, -v{t}, v{t+2}, v{f+i}\nv_fma_f32 v{f+i}, v{t+1}, v{t+3}, v{t}')
        if dup:
            for i in range(10): a(f'v_cvt_pk_bf16_f32 v{f+i}, v{f+i}, v{f+i}')
        else:
            for i in range(5): a(f'v_cvt_pk_bf16_f32 v{src+i}, v{f+2*i}, v{f+2*i+1}')

    def poll(s, loads, regs, t):
        a = s.a
        lp = s.lab('poll'); ld = s.lab('polld')
        a(f's_mov_b64 s[62:63], exec\ns_mov_b32 s64, {s.spin}')
        a(f'{lp}:')
        for l in loads: a(l)
        a('s_waitcnt vmcnt(0)')
        r = list(regs)
        if len(r) == 2: a(f'v_max_u32 v{t}, v{r[0]}, v{r[1]}'); r = []
        else:
            a(f'v_max3_u32 v{t}, v{r[0]}, v{r[1]}, v{r[2]}'); r = r[3:]
        while len(r) >= 2:
            a(f'v_max3_u32 v{t}, v{t}, v{r[0]}, v{r[1]}'); r = r[2:]
        if r: a(f'v_max_u32 v{t}, v{t}, v{r[0]}')
        a(f'v_cmpx_eq_u32 vcc, -1, v{t}')
        a(f's_cbranch_execz {ld}')
        if s.psleep: a(f's_sleep {s.psleep}')
        a(f's_sub_u32 s64, s64, 1\ns_cbranch_scc0 {lp}')
        a(f'{ld}:')
        a('s_mov_b64 exec, s[62:63]\ns_nop 2')

    def gen(s):
        a = s.a; D = s.D
        a(f"""s_cmp_ge_u32 s2, 256
        s_cbranch_scc1 L_end
        s_load_dwordx16 s[16:31], s[0:1], 0
        s_load_dwordx8 s[32:39], s[0:1], 64
        v_lshrrev_b32 v2, 6, v0
        v_and_b32 v1, 63, v0
        v_readfirstlane_b32 s3, v2
        s_lshr_b32 s4, s2, 5
        s_and_b32 s5, s2, 31""")
        if s.hmap:
            a("""s_and_b32 s5, s2, 7
            s_lshl_b32 s5, s5, 2
            s_bfe_u32 s6, s2, 0x20003
            s_add_u32 s5, s5, s6""")
        a("""s_lshl_b32 s65, s4, 5
        s_add_u32 s65, s65, s5
        s_cmp_ge_u32 s3, 4
        s_cbranch_scc1 L_helper""")
        s.streamer()
        s.helper()
        s.tail()
        a('L_end:\ns_endpgm')

    def masks(s):
        s.a("""v_and_b32 v8, 15, v1
        v_and_b32 v9, 1, v1
        v_lshlrev_b32 v9, 4, v9
        v_mov_b32 v10, 0xffff
        v_lshlrev_b32 v10, v9, v10
        v_lshrrev_b32 v11, 1, v8""")
        for m in range(4):
            s.a(f'v_cmp_eq_u32 vcc, {m}, v11\ns_nop 1\nv_cndmask_b32 v{4+m}, 0, v10, vcc')

    def streamer(s):
        a = s.a; D = s.D; R0 = 64; NP = s.NP; R = 16
        assert NP % 16 == 0
        phys = lambda i: i if i < NP else i % R
        slot = lambda p: f'v[{R0+4*p}:{R0+4*p+3}]'
        def issue(p, t):
            a(f'buffer_load_dwordx4 {slot(p)}, v2, s[40:43], s44 offen offset:{t*1024} {s.kvpol}')
            if t == 3: a('s_add_u32 s44, s44, 16384')
        a("""v_bfe_u32 v2, v1, 2, 2
        v_lshlrev_b32 v2, 8, v2
        v_lshrrev_b32 v3, 4, v1
        v_lshl_add_u32 v2, v3, 6, v2
        v_and_b32 v3, 3, v1
        v_lshl_add_u32 v2, v3, 4, v2
        v_lshlrev_b32 v3, 4, v1
        s_lshl_b32 s6, s65, 20
        s_lshl_b32 s44, s3, 12
        s_mov_b32 s42, 0x100000
        s_mov_b32 s43, 0x20000
        s_waitcnt lgkmcnt(0)
        s_add_u32 s40, s18, s6
        s_addc_u32 s41, s19, 0
        s_add_u32 s48, s20, s6
        s_addc_u32 s49, s21, 0""")
        for i in range(s.D0): issue(i, i & 3)
        s.stamp(0)
        a("""v_and_b32 v8, 15, v1
        v_lshlrev_b32 v8, 3, v8
        s_min_u32 s8, s5, 9
        s_lshl_b32 s8, s8, 7
        s_mul_i32 s7, s4, 1280
        s_add_u32 s7, s7, s8
        v_add_u32 v44, s7, v8
        global_load_dwordx2 v[42:43], v44, s[16:17]""")
        if s.tlbwarm:
            a('global_load_dword v62, v3, s[48:49]')
        s.masks()
        a(f"""s_mov_b32 s50, 0xaaaaaaaa
        s_mov_b32 s51, 0xaaaaaaaa
        s_mov_b32 s52, 0xcccccccc
        s_mov_b32 s53, 0xcccccccc
        s_mov_b32 s54, {f2u(128**-0.5):#x}
        s_mov_b32 s55, {f2u(L2E):#x}
        v_mov_b32 v34, 0xff800000
        s_mul_i32 s7, s3, {SCW}
        s_add_u32 s7, s7, {SC0}
        v_and_b32 v35, 60, v1
        v_add_u32 v35, s7, v35
        v_lshrrev_b32 v8, 4, v1
        v_lshlrev_b32 v8, 2, v8
        v_and_b32 v9, 3, v1
        v_add_u32 v8, v8, v9
        v_lshlrev_b32 v45, 5, v8""")
        for i in range(s.D0, NP):
            a(f's_waitcnt vmcnt({s.DP-1})')
            issue(i, i & 3)
        s.stamp(4)
        a('s_barrier')
        s.stamp(1)
        a(f"""ds_read_b128 v[46:49], v45 offset:{QP}
        ds_read_b128 v[50:53], v45 offset:{QP+16}
        ds_read_b128 v[54:57], v45 offset:{QP+512}
        ds_read_b128 v[58:61], v45 offset:{QP+512+16}
        ds_read_b128 v[24:27], v45 offset:{QP+1024}
        ds_read_b128 v[28:31], v45 offset:{QP+1024+16}
        ds_read_b128 v[8:11], v45 offset:{QP+1536}
        ds_read_b128 v[12:15], v45 offset:{QP+1536+16}
        s_waitcnt lgkmcnt(0)""")
        for e in range(8):
            a(f'v_add_f32 v{46+e}, v{46+e}, v{54+e}\nv_add_f32 v{24+e}, v{24+e}, v{8+e}')
        for e in range(8): a(f'v_add_f32 v{46+e}, v{46+e}, v{24+e}')
        for m in range(4): a(f'v_cvt_pk_bf16_f32 v{54+m}, v{46+2*m}, v{47+2*m}')
        for t in range(4):
            mk = 0x000f000f << (4*t)
            a(f's_mov_b32 s56, {mk:#x}\ns_mov_b32 s57, {mk:#x}')
            for m in range(4): a(f'v_cndmask_b32 v{8+4*t+m}, 0, v{54+m}, s[56:57]')
        a('s_nop 1')
        Dreg = lambda g: 24 + 4*(g & 1)
        def post1(g):
            d = Dreg(g)
            a(f"""s_nop 1
            v_cndmask_b32 v32, v{d}, v{d+1}, s[50:51]
            v_cndmask_b32 v33, v{d+2}, v{d+3}, s[50:51]
            v_cndmask_b32 v32, v32, v33, s[52:53]
            s_nop 1
            v_add_f32_dpp v32, v32, v32 quad_perm:[1,0,3,2] row_mask:0xf bank_mask:0xf
            s_nop 1
            v_add_f32_dpp v32, v32, v32 quad_perm:[2,3,0,1] row_mask:0xf bank_mask:0xf""")
        def post2(off):
            a(f"""v_cvt_pk_bf16_f32 v32, v32, v32
            v_lshlrev_b32 v32, 16, v32
            v_mul_f32 v32, s54, v32
            v_cvt_pk_bf16_f32 v32, v32, v32
            v_lshlrev_b32 v32, 16, v32
            v_max_f32 v34, v34, v32
            ds_write_b32 v35, v32 offset:{off}""")
        def kcons(p, gi, t, tight=False):
            d = Dreg(gi)
            c = '0' if t == 0 else f'v[{d}:{d+3}]'
            a(f'v_mfma_f32_16x16x32_bf16 v[{d}:{d+3}], {slot(p)}, v[{8+4*t}:{11+4*t}], {c}')
        nis = 0
        per = max(1, (NP - 1) // 15)
        for i in range(NP):
            gi, t = i >> 2, i & 3
            need = (NP + nis - 1) - i
            if i >= NP - s.DP: a(f's_waitcnt vmcnt({min(need, 63)})')
            kcons(i, gi, t)
            if gi > 0 and t == 2: a('s_nop 3'); post1(gi - 1)
            if gi > 0 and t == 3: post2((gi - 1) * 64)
            if nis < 15 and i >= nis and (i + 1) % per == 0:
                a(f's_waitcnt vmcnt({D-1})')
                issue(nis, nis & 3); nis += 1
        assert nis == 15, nis
        g0 = NP // 4
        a(f'v_add_u32 v35, {(g0-1)*64}, v35')
        nk = (256 - NP) // R
        a('s_mov_b32 s45, 0\ns_nop 0')
        a('L_kloop:')
        for st in range(R):
            gi, t = st >> 2, st & 3
            a(f's_waitcnt vmcnt({D-1})')
            issue((st - 1) % R, (st - 1) & 3)
            if st == 0:
                a(f"""s_cmp_lg_u32 s45, {nk-1}
                s_cbranch_scc1 L_nosw
                s_mov_b32 s40, s48
                s_mov_b32 s41, s49
                s_lshl_b32 s44, s3, 12
                v_mov_b32 v2, v3
                L_nosw:""")
            kcons(st, gi, t)
            if t == 2: post1(gi - 1)
            if t == 3: post2(gi * 64)
        a(f"""v_add_u32 v35, {R*16}, v35
        s_add_u32 s45, s45, 1
        s_cmp_lt_u32 s45, {nk}
        s_cbranch_scc1 L_kloop
        s_nop 7""")
        post1(1); post2(0)
        a(f"""s_nop 1
        v_max_f32_dpp v34, v34, v34 row_ror:4 row_mask:0xf bank_mask:0xf
        s_nop 1
        v_max_f32_dpp v34, v34, v34 row_ror:8 row_mask:0xf bank_mask:0xf
        s_nop 1
        v_readlane_b32 s56, v34, 0
        v_readlane_b32 s57, v34, 16
        v_readlane_b32 s58, v34, 32
        v_readlane_b32 s59, v34, 48
        s_nop 0
        v_mov_b32 v34, s56
        v_max_f32 v34, s57, v34
        v_max_f32 v34, s58, v34
        v_max_f32 v34, s59, v34
        v_mul_f32 v41, s55, v34
        v_subrev_u32 v35, {63*64}, v35
        s_waitcnt lgkmcnt(0)
        ds_read_b32 v39, v35
        v_mov_b32 v36, 0
        v_mov_b32 v28, 0
        v_mov_b32 v29, 0
        v_mov_b32 v30, 0
        v_mov_b32 v31, 0""")
        s.stamp(2)
        def prep(g):
            a(f"""s_waitcnt lgkmcnt(0)
            v_fma_f32 v39, v39, s55, -v41
            v_exp_f32 v39, v39
            s_nop 0
            v_add_f32 v36, v36, v39
            v_cvt_pk_bf16_f32 v{37+(g&1)}, v39, v39""")
        prep(0)
        a('s_nop 0')
        def vstep(st, last, Dv):
            gi, t = st >> 2, st & 3
            if not last or st == 0:
                a(f's_waitcnt vmcnt({Dv-1})')
                issue((st - 1) % R, (st - 1) & 3)
            elif R - 1 - st < Dv:
                a(f's_waitcnt vmcnt({R-1-st})')
            fin = last and gi == R//4 - 1
            if t == 0 and not fin: a(f'ds_read_b32 v39, v35 offset:{(gi+1)*64}')
            for m in range(4):
                a(f'v_and_b32_dpp v{24+m}, v{37+(gi&1)}, v{4+m} row_newbcast:{4*t} row_mask:0xf bank_mask:0xf')
            a('s_nop 1')
            a(f'v_mfma_f32_16x16x32_bf16 v[28:31], v[24:27], {slot(st)}, v[28:31]')
            if t == 2 and not fin: prep(gi + 1)
        def vloop(name, n, Dv):
            a(f's_mov_b32 s45, 0\n{name}:')
            for st in range(R): vstep(st, False, Dv)
            a(f"""v_add_u32 v35, {R*16}, v35
            s_add_u32 s45, s45, 1
            s_cmp_lt_u32 s45, {n}
            s_cbranch_scc1 {name}""")
        vloop('L_vloop', 256//R - 1 - s.NE, D)
        if s.NE: vloop('L_vloop2', s.NE, s.DE)
        for st in range(R): vstep(st, True, s.DE)
        a(f"""v_add_f32_dpp v36, v36, v36 row_ror:4 row_mask:0xf bank_mask:0xf
        v_and_b32 v8, 15, v1
        v_lshlrev_b32 v8, 5, v8
        v_add_f32_dpp v36, v36, v36 row_ror:8 row_mask:0xf bank_mask:0xf
        v_lshrrev_b32 v9, 4, v1
        v_lshl_add_u32 v8, v9, 4, v8
        v_readlane_b32 s56, v36, 0
        v_readlane_b32 s57, v36, 16
        v_readlane_b32 s58, v36, 32
        v_readlane_b32 s59, v36, 48
        s_lshl_b32 s7, s3, 9
        v_add_u32 v8, s7, v8
        v_mov_b32 v35, s56
        v_add_f32 v35, s57, v35
        v_add_f32 v35, s58, v35
        v_add_f32 v35, s59, v35
        s_lshl_b32 s7, s3, 3
        v_mov_b32 v9, s7
        s_mov_b32 exec_hi, 0
        ds_write_b128 v8, v[28:31] offset:{OP}
        s_mov_b64 exec, 1
        ds_write_b64 v9, v[34:35] offset:{ST}
        s_mov_b64 exec, -1
        s_waitcnt lgkmcnt(0)""")
        s.stamp(3)
        a('s_barrier')
        s.ffn_wregs(streamer=True)
        a(f"""s_mul_i32 s7, s4, {32*2560}
        s_lshl_b32 s8, s5, 8
        s_add_u32 s7, s7, s8
        v_lshrrev_b32 v8, 4, v1
        v_mul_u32_u24 v8, 2560, v8
        v_and_b32 v9, 15, v1
        v_lshl_add_u32 v8, v9, 4, v8
        v_add_u32 v48, s7, v8""")
        for i in range(1, 8): a(f'v_add_u32 v{48+i}, 10240, v{47+i}')
        a(f"""v_add_u32 v44, {WS_H}, v44
        s_barrier
        s_cmp_lg_u32 s3, 0
        s_cbranch_scc1 L_tail
        s_cmp_ge_u32 s5, 10
        s_cbranch_scc1 L_tail""")
        s.stamp(8)
        s.poll([f'global_load_dwordx4 v[{160+4*i}:{163+4*i}], v{48+i}, s[38:39] sc1' for i in range(8)], list(range(160, 192)), 32)
        s.stamp(9)
        for step in (16, 8, 4):
            for r in range(step): a(f'v_add_f32 v{160+r}, v{160+r}, v{160+step+r}')
        for sw in ('v_permlane16_swap_b32', 'v_permlane32_swap_b32'):
            for r in range(4): a(f'v_mov_b32 v{164+r}, v{160+r}')
            for r in range(4): a(f'{sw} v{160+r}, v{164+r}')
            for r in range(4): a(f'v_add_f32 v{160+r}, v{160+r}, v{164+r}')
        a("""v_cvt_pk_bf16_f32 v24, v160, v161
        v_cvt_pk_bf16_f32 v26, v162, v163
        v_lshlrev_b32 v28, 16, v24
        v_and_b32 v29, 0xffff0000, v24
        v_lshlrev_b32 v30, 16, v26
        v_and_b32 v31, 0xffff0000, v26
        v_lshlrev_b32 v24, 16, v42
        v_and_b32 v25, 0xffff0000, v42
        v_lshlrev_b32 v26, 16, v43
        v_and_b32 v27, 0xffff0000, v43
        v_add_f32 v24, v24, v28
        v_add_f32 v25, v25, v29
        v_add_f32 v26, v26, v30
        v_add_f32 v27, v27, v31
        v_cvt_pk_bf16_f32 v24, v24, v25
        v_cvt_pk_bf16_f32 v25, v26, v27
        v_min_u32 v24, -2, v24
        v_min_u32 v25, -2, v25
        s_mov_b64 exec, 0xffff
        global_store_dwordx2 v44, v[24:25], s[38:39] sc1
        s_mov_b64 exec, -1""")
        s.stamp(5)
        a('s_branch L_tail')

    def ffn_wregs(s, streamer):
        a = s.a
        la = s.lab('wa'); ld = s.lab('wd')
        a(f"""v_lshrrev_b32 v46, 4, v1
        v_lshlrev_b32 v46, 8, v46
        v_bfe_u32 v47, v1, 2, 2
        v_lshl_add_u32 v46, v47, 5, v46
        v_and_b32 v47, 3, v1
        v_lshl_add_u32 v46, v47, 3, v46
        v_add_u32 v46, {IMG}, v46
        s_cmp_lt_u32 s2, 216
        s_cbranch_scc1 {la}
        s_lshl_b32 s7, s3, 10
        v_add_u32 v46, s7, v46""")
        for i in range(7):
            a(f'ds_read_b64_tr_b16 v[{64+4*i}:{65+4*i}], v46 offset:{i*8192}')
            a(f'ds_read_b64_tr_b16 v[{66+4*i}:{67+4*i}], v46 offset:{i*8192+128}')
        a(f's_branch {ld}\n{la}:')
        if streamer:
            a(f's_cmp_lg_u32 s3, 3\ns_cbranch_scc1 {ld}')
            for m in range(20):
                a(f'ds_read_b64_tr_b16 v[{64+4*m}:{65+4*m}], v46 offset:{m*1024}')
                a(f'ds_read_b64_tr_b16 v[{66+4*m}:{67+4*m}], v46 offset:{m*1024+128}')
        a(f'{ld}:')

    def helper(s):
        a = s.a; W0 = 96; s.sv = 92
        wreg = lambda i: f'v[{W0+4*i}:{W0+4*i+3}]'
        a('L_helper:')
        s.stamp_reg(68)
        a(f"""
        s_sub_u32 s9, s3, 4
        v_lshrrev_b32 v2, 4, v1
        v_mul_u32_u24 v2, 40, v2
        s_mul_i32 s7, s9, 160
        v_add_u32 v3, s7, v2
        v_lshlrev_b32 v2, 13, v3
        v_and_b32 v8, 15, v1
        v_lshl_add_u32 v2, v8, 4, v2
        v_lshlrev_b32 v3, 3, v3
        s_mul_i32 s49, s4, 5
        s_lshr_b32 s49, s49, 2
        s_lshl_b32 s49, s49, {4 if s.rot else 31}
        {'' if s.rot else 's_mov_b32 s49, 0'}
        v_add_u32 v3, s49, v3
        v_lshlrev_b32 v8, 4, v1
        v_lshlrev_b32 v9, 2, v1
        s_mul_i32 s7, s4, 1280
        s_lshl_b32 s8, s5, 8
        s_mov_b32 s47, 0x20000
        s_sub_u32 s46, 5242880, s8
        s_lshl_b32 s48, s49, 11
        s_waitcnt lgkmcnt(0)
        s_add_u32 s10, s16, s7
        s_addc_u32 s11, s17, 0
        s_add_u32 s44, s22, s8
        s_addc_u32 s45, s23, 0
        global_load_dwordx4 v[12:15], v8, s[10:11]
        global_load_dword v16, v9, s[10:11] offset:1024""")
        def wq_issue(i):
            a(f'buffer_load_dwordx4 {wreg(i)}, v2, s[44:47], s48 offen {s.wpol}')
            if i < 39:
                a('s_add_u32 s48, s48, 8192')
                if s.rot and (i & 3) == 3: a(f's_cmp_eq_u32 s48, {40*8192}\ns_cselect_b32 s48, 0, s48')
        N0 = s.N0
        for i in range(N0): wq_issue(i)
        s.stamp_reg(70)
        a('v_mov_b32 v26, v8\nv_mov_b32 v27, v9')
        s.masks()
        a(f's_waitcnt vmcnt({N0})')
        s.stamp_reg(72)
        s.layernorm(12, 28, 40, True)
        s.stamp_reg(74)
        a(f"""v_mul_u32_u24 v8, 52429, v1
        v_lshrrev_b32 v8, 18, v8
        v_mul_u32_u24 v8, 160, v8
        v_lshl_add_u32 v8, v1, 5, v8
        v_add_u32 v9, 256, v1
        v_mul_u32_u24 v10, 52429, v9
        v_lshrrev_b32 v10, 20, v10
        v_mul_u32_u24 v10, 160, v10
        v_lshl_add_u32 v9, v9, 3, v10
        ds_write_b128 v8, v[28:31] offset:{XD}
        ds_write_b128 v8, v[32:35] offset:{XD+16}
        ds_write_b64 v9, v[36:37] offset:{XD}
        ds_write_b128 v8, v[28:31] offset:{XD+160}
        ds_write_b128 v8, v[32:35] offset:{XD+176}
        ds_write_b64 v9, v[36:37] offset:{XD+160}
        s_waitcnt lgkmcnt(0)""")
        for i in range(10): a(f'ds_read_b128 v[{48+4*i}:{51+4*i}], v3 offset:{XD+16*i}')
        nis = N0
        for i in range(40):
            for _ in range(2 if i == 0 else 1):
                if nis < 40: wq_issue(nis); nis += 1
            if i == 0: a('s_waitcnt lgkmcnt(0)')
            ar = 28 + 4*(i & 1)
            for m in range(4): a(f'v_and_b32 v{ar+m}, v{48+i}, v{4+m}')
            a(f's_waitcnt vmcnt({nis-1-i})')
            if i == 0: s.stamp_reg(76)
            if i == 20: s.stamp_reg(78)
            a('s_nop 0')
            a(f'v_mfma_f32_16x16x32_bf16 v[20:23], v[{ar}:{ar+3}], {wreg(i)}, ' + ('0' if i == 0 else 'v[20:23]'))
        a(f"""v_and_b32 v8, 15, v1
        v_lshlrev_b32 v8, 5, v8
        v_lshrrev_b32 v9, 4, v1
        v_lshl_add_u32 v17, v9, 4, v8
        s_lshl_b32 s7, s9, 9
        v_add_u32 v8, s7, v17
        s_nop 3
        s_mov_b32 exec_hi, 0
        ds_write_b128 v8, v[20:23] offset:{QP}
        s_mov_b64 exec, -1
        s_waitcnt vmcnt(0) lgkmcnt(0)""")
        s.stamp(1)
        for i, r in enumerate((68, 70, 72, 74, 76, 78)): s.stamp((0,12,13,14,15,11)[i], r)
        a('s_barrier')
        a(f"""v_mov_b32 v20, -1
        v_mov_b32 v21, -1
        v_mov_b32 v22, -1
        v_mov_b32 v23, -1
        s_and_b32 s12, s2, 7
        s_lshr_b32 s13, s2, 3
        s_mul_i32 s14, s12, 27
        s_add_u32 s14, s14, s13
        s_mul_i32 s15, s12, 5
        s_add_u32 s15, s15, s13
        s_sub_u32 s15, s15, 27
        s_mul_i32 s7, s65, 2560
        v_add_u32 v24, s7, v26
        s_lshl_b32 s8, s9, 10
        v_add_u32 v45, s8, v24
        s_cmp_lg_u32 s9, 3
        s_cbranch_scc1 L_clrd
        global_store_dwordx4 v24, v[20:23], s[38:39] sc1
        global_store_dwordx4 v24, v[20:23], s[38:39] offset:1024 sc1
        global_store_dwordx4 v24, v[20:23], s[38:39] offset:1536 sc1
        s_mul_i32 s7, s4, 1280
        s_lshl_b32 s8, s5, 7
        s_add_u32 s7, s7, s8
        s_add_u32 s7, s7, {WS_H}
        v_add_u32 v24, s7, v27
        s_lshl_b32 s7, s14, 7
        s_add_u32 s7, s7, {WS_ACT - 128}
        v_add_u32 v25, s7, v27
        v_cmp_lt_u32 vcc, 31, v1
        s_nop 1
        v_cndmask_b32 v24, v24, v25, vcc
        s_cmp_lt_u32 s5, 10
        s_cselect_b32 exec_lo, -1, 0
        s_cmp_lt_u32 s2, 216
        s_cselect_b32 exec_hi, -1, 0
        s_cbranch_execz L_clrd
        global_store_dword v24, v20, s[38:39] sc1
        L_clrd:
        s_mov_b64 exec, -1""")
        a(f"""s_lshl_b32 s7, s9, 6
        v_add_u32 v18, s7, v1
        {'s_branch L_stD' if s.noffn else ''}
        s_cmp_lt_u32 s2, 216
        s_cbranch_scc0 L_stB
        s_mov_b32 s7, 3456
        v_mul_lo_u32 v8, v18, s7
        s_lshl_b32 s8, s14, 4
        s_add_u32 s44, s28, s8
        s_addc_u32 s45, s29, 0
        s_sub_u32 s46, 2211840, s8
        s_add_u32 s40, s30, s8
        s_addc_u32 s41, s31, 0
        s_mov_b32 s42, s46
        s_mov_b32 s43, 0x20000
        s_mov_b32 s48, {256*3456}
        s_mov_b32 s49, {512*3456}""")
        def split_load(txt, lanes):
            for q in range(64 // lanes):
                m = ((1 << lanes) - 1) << (q * lanes)
                if lanes < 64: a(f's_mov_b32 exec_lo, {m & 0xffffffff:#x}\ns_mov_b32 exec_hi, {m >> 32:#x}')
                a(txt)
                a('s_waitcnt vmcnt(0)')
            a('s_mov_b64 exec, -1')
        a(f'v_lshlrev_b32 v9, 5, v18\nv_add_u32 v9, {IMG}, v9')
        for i, so in enumerate(('0', 's48', 's49')):
            if i == 2: a('s_cmp_ge_u32 s9, 2\ns_cbranch_scc1 L_stD')
            split_load(f'buffer_load_dwordx4 v[48:51], v8, s[44:47], {so} offen {s.fpol}', s.FQ)
            split_load(f'buffer_load_dwordx4 v[52:55], v8, s[40:43], {so} offen {s.fpol}', s.FQ)
            for q in range(4):
                a(f'ds_write2_b32 v9, v{48+q}, v{52+q} offset0:{2*q} offset1:{2*q+1}')
            a('s_waitcnt lgkmcnt(0)')
            if i < 2: a('v_add_u32 v9, 8192, v9')
        a(f"""s_branch L_stD
        L_stB:
        v_lshrrev_b32 v8, 1, v18
        v_mul_u32_u24 v8, 1280, v8
        v_and_b32 v9, 1, v18
        v_lshl_add_u32 v8, v9, 4, v8
        s_lshl_b32 s8, s15, 5
        s_add_u32 s44, s32, s8
        s_addc_u32 s45, s33, 0
        s_sub_u32 s46, 2211840, s8
        s_mov_b32 s48, 0
        v_lshlrev_b32 v9, 4, v18
        v_add_u32 v9, {IMG}, v9""")
        for i in range(14):
            split_load(f'buffer_load_dwordx4 v[48:51], v8, s[44:47], s48 offen {s.fpol}', min(64, 2*s.FQ))
            a(f's_add_u32 s48, s48, {128*1280}')
            a(f'ds_write_b128 v9, v[48:51] offset:{i*4096}')
            a('s_waitcnt lgkmcnt(0)')
        a('L_stD:')
        a(f"""v_lshrrev_b32 v8, 4, v1
        v_lshlrev_b32 v8, 3, v8
        s_lshl_b32 s7, s9, 5
        v_add_u32 v19, s7, v8
        v_mul_u32_u24 v8, 1280, v19
        v_and_b32 v9, 15, v1
        v_lshl_add_u32 v8, v9, 4, v8
        s_mul_i32 s8, s5, {128*1280}
        s_add_u32 s44, s24, s8
        s_addc_u32 s45, s25, 0
        s_mov_b32 s46, {128*1280}
        s_mov_b32 s48, 3840
        s_mov_b32 s49, 7680""")
        for i in range(8):
            for n in range(5):
                so = ('0', 's48', 's49')[i // 3]; off = (i % 3)*1280 + n*256
                if s.nowo: continue
                a(f's_waitcnt vmcnt({s.HP-1})')
                a(f'buffer_load_dwordx4 {wreg(i*5+n)}, v8, s[44:47], {so} offen offset:{off} {s.wpol}')
        s.stamp(2)
        a(f"""v_lshlrev_b32 v44, 4, v18
        v_lshlrev_b32 v19, 2, v19
        s_mul_i32 s7, s9, 2560
        v_add_u32 v17, s7, v17
        v_mov_b32 v16, 0
        s_mov_b32 s55, {f2u(L2E):#x}""")
        a(f"""s_waitcnt vmcnt(0)
        s_cmp_lg_u32 s9, 3
        s_cbranch_scc1 L_cntd
        s_mov_b64 exec, 1
        v_mov_b32 v9, 1
        global_atomic_add v16, v9, s[36:37] sc1
        s_mov_b32 s64, {s.spin}
        L_cnt:
        s_sleep 127
        global_load_dword v8, v16, s[36:37] sc1
        s_waitcnt vmcnt(0)
        v_readfirstlane_b32 s7, v8
        s_cmp_ge_u32 s7, 256
        s_cbranch_scc1 L_cntd
        s_sub_u32 s64, s64, 1
        s_cbranch_scc0 L_cnt
        L_cntd:
        s_mov_b64 exec, -1
        s_waitcnt lgkmcnt(0)
        s_barrier""")
        s.stamp(3)
        a(f'ds_read_b128 v[8:11], v16 offset:{ST}\nds_read_b128 v[12:15], v16 offset:{ST+16}')
        for w in range(4):
            a(f'ds_read_b128 v[{48+8*w}:{51+8*w}], v19 offset:{OP+w*512}')
            a(f'ds_read_b128 v[{52+8*w}:{55+8*w}], v19 offset:{OP+w*512+16}')
        a("""s_waitcnt lgkmcnt(8)
        v_max_f32 v20, v8, v10
        v_max3_f32 v20, v20, v12, v14
        v_sub_f32 v8, v8, v20
        v_sub_f32 v10, v10, v20
        v_sub_f32 v12, v12, v20
        v_sub_f32 v14, v14, v20
        v_mul_f32 v8, s55, v8
        v_mul_f32 v10, s55, v10
        v_mul_f32 v12, s55, v12
        v_mul_f32 v14, s55, v14
        v_exp_f32 v8, v8
        v_exp_f32 v10, v10
        v_exp_f32 v12, v12
        v_exp_f32 v14, v14
        v_mul_f32 v20, v8, v9
        v_fmac_f32 v20, v10, v11
        v_fmac_f32 v20, v12, v13
        v_fmac_f32 v20, v14, v15
        v_rcp_f32 v20, v20
        s_waitcnt lgkmcnt(0)""")
        for e in range(8): a(f'v_mul_f32 v{48+e}, v8, v{48+e}')
        for w in range(1, 4):
            for e in range(8): a(f'v_fmac_f32 v{48+e}, v{8+2*w}, v{48+8*w+e}')
        for e in range(8): a(f'v_mul_f32 v{48+e}, v20, v{48+e}')
        for e in range(8): a(f'v_cvt_pk_bf16_f32 v{48+e}, v{48+e}, v{48+e}')
        for i in range(8):
            ar = 28 + 4*(i & 1)
            for m in range(4): a(f'v_and_b32 v{ar+m}, v{48+i}, v{4+m}')
            a('s_nop 1')
            for n in range(5):
                a(f'v_mfma_f32_16x16x32_bf16 v[{60+4*n}:{63+4*n}], v[{ar}:{ar+3}], {wreg(i*5+n)}, ' + ('0' if i == 0 else f'v[{60+4*n}:{63+4*n}]'))
        a('s_mov_b32 exec_hi, 0\ns_nop 3')
        for n in range(5): a(f'ds_write_b128 v17, v[{60+4*n}:{63+4*n}] offset:{WOP+n*512}')
        a("""s_mov_b64 exec, -1
        s_waitcnt lgkmcnt(0)
        s_barrier
        s_cmp_eq_u32 s9, 3
        s_cbranch_scc1 L_pubd""")
        for w in range(4): a(f'ds_read_b128 v[{48+4*w}:{51+4*w}], v44 offset:{WOP+w*2560}')
        a('s_waitcnt lgkmcnt(0)')
        for e in range(4): a(f'v_add_f32 v{48+e}, v{48+e}, v{52+e}\nv_add_f32 v{56+e}, v{56+e}, v{60+e}')
        for e in range(4): a(f'v_add_f32 v{48+e}, v{48+e}, v{56+e}')
        for e in range(4): a(f'v_min_u32 v{48+e}, -2, v{48+e}')
        a("""s_cmp_eq_u32 s9, 2
        s_cselect_b32 exec_hi, 0, -1
        global_store_dwordx4 v45, v[48:51], s[38:39] sc1
        s_mov_b64 exec, -1""")
        s.stamp(4)
        a('L_pubd:')
        s.ffn_wregs(streamer=False)

    def tail(s):
        a = s.a; s.sv = 60
        a(f"""L_tail:
        s_and_b32 s12, s2, 7
        s_lshr_b32 s13, s2, 3
        s_cmp_lt_u32 s2, 216
        s_cbranch_scc0 L_tailB
        s_mul_i32 s14, s12, 27
        s_add_u32 s14, s14, s13
        s_mul_i32 s7, s3, 1280
        s_add_u32 s7, s7, {WS_H}
        v_lshl_add_u32 v8, v1, 4, s7
        v_lshl_add_u32 v9, v1, 2, s7
        s_barrier""")
        s.poll(['global_load_dwordx4 v[12:15], v8, s[38:39] sc1', 'global_load_dword v16, v9, s[38:39] offset:1024 sc1'],
               [12, 13, 14, 15, 16], 17)
        s.stamp(6)
        s.layernorm(12, 28, 40, False)
        s.stamp(10)
        a(f"""s_mul_i32 s7, s3, {XN2S}
        v_lshl_add_u32 v8, v1, 4, s7
        v_lshl_add_u32 v9, v1, 2, s7
        ds_write_b128 v8, v[12:15] offset:{XN2}
        ds_write_b32 v9, v16 offset:{XN2+1024}
        v_and_b32 v10, 7, v1
        v_mul_u32_u24 v11, {XN2S}, v10
        v_lshrrev_b32 v17, 4, v1
        v_lshl_add_u32 v11, v17, 4, v11
        s_waitcnt lgkmcnt(0)
        s_barrier
        s_cmp_lg_u32 s3, 3
        s_cbranch_scc1 L_end""")
        for m in range(20): a(f'ds_read_b128 v[{144+4*m}:{147+4*m}], v11 offset:{XN2+m*64}')
        a(f"""v_lshlrev_b32 v10, 4, v10
        v_lshl_add_u32 v10, v17, 2, v10
        s_lshl_b32 s7, s14, 7
        s_add_u32 s7, s7, {WS_ACT}
        v_add_u32 v10, s7, v10
        s_mov_b32 s55, {f2u(-L2E):#x}""")
        for m in range(20):
            a(f's_waitcnt lgkmcnt({min(15, 19-m)})')
            a(f'v_mfma_f32_16x16x32_bf16 v[20:23], v[{64+4*m}:{67+4*m}], v[{144+4*m}:{147+4*m}], ' + ('0' if m == 0 else 'v[20:23]'))
        a("""s_nop 7
        v_cvt_pk_bf16_f32 v20, v20, v21
        v_cvt_pk_bf16_f32 v22, v22, v23
        v_lshlrev_b32 v24, 16, v20
        v_and_b32 v25, 0xffff0000, v20
        v_mul_f32 v26, s55, v24
        v_mul_f32 v27, s55, v25
        v_exp_f32 v26, v26
        v_exp_f32 v27, v27
        v_lshlrev_b32 v28, 16, v22
        v_add_f32 v26, 1.0, v26
        v_add_f32 v27, 1.0, v27
        v_rcp_f32 v26, v26
        v_rcp_f32 v27, v27
        v_and_b32 v29, 0xffff0000, v22
        v_mul_f32 v24, v24, v26
        v_mul_f32 v25, v25, v27
        v_cvt_pk_bf16_f32 v24, v24, v25
        v_lshlrev_b32 v26, 16, v24
        v_and_b32 v27, 0xffff0000, v24
        v_mul_f32 v26, v26, v28
        v_mul_f32 v27, v27, v29
        v_cvt_pk_bf16_f32 v26, v26, v27
        v_min_u32 v26, -2, v26
        s_mov_b32 exec_lo, 0x00ff00ff
        s_mov_b32 exec_hi, 0x00ff00ff
        global_store_dword v10, v26, s[38:39] sc1""")
        s.stamp(7)
        a('s_endpgm')
        a(f"""L_tailB:
        s_mul_i32 s15, s12, 5
        s_add_u32 s15, s15, s13
        s_sub_u32 s15, s15, 27
        v_and_b32 v10, 7, v1
        v_lshrrev_b32 v17, 4, v1
        v_lshlrev_b32 v8, 4, v10
        v_lshl_add_u32 v8, v17, 7, v8
        s_lshl_b32 s7, s3, 9
        s_add_u32 s7, s7, {WS_ACT}
        v_add_u32 v8, s7, v8
        v_add_u32 v9, 0x2000, v8
        v_add_u32 v11, 0x4000, v8
        s_movk_i32 s8, 0x5000
        s_cmp_lt_u32 s3, 6
        s_cselect_b32 s8, 0x6000, s8
        v_add_u32 v12, s8, v8
        v_mul_u32_u24 v13, 1280, v10
        v_lshl_add_u32 v13, v17, 3, v13
        s_lshl_b32 s7, s15, 5
        v_add_u32 v13, s7, v13
        v_add_u32 v14, {WS_H}, v13
        s_barrier
        s_cmp_lg_u32 s3, 3
        s_cbranch_scc1 L_noh""")
        s.poll(['global_load_dwordx2 v[18:19], v14, s[38:39] sc1'], [18, 19], 15)
        a('L_noh:')
        lds = []
        for i in range(7):
            base = (8, 8, 9, 9, 11, 11, 12)[i]; off = 0
            if i < 6 and (i & 1): off = 4096
            lds.append((base, off))
        loads = []
        for i, (base, off) in enumerate(lds):
            if off == 4096:
                loads.append(f'global_load_dwordx4 v[{96+4*i}:{99+4*i}], v{base}, s[66:67] sc1')
            else:
                loads.append(f'global_load_dwordx4 v[{96+4*i}:{99+4*i}], v{base}, s[38:39] sc1')
        a('s_add_u32 s66, s38, 4096\ns_addc_u32 s67, s39, 0')
        s.poll(loads, list(range(96, 124)), 15)
        s.stamp(6)
        a('s_waitcnt lgkmcnt(0)')
        for i in range(7):
            a(f'v_mfma_f32_16x16x32_bf16 v[20:23], v[{64+4*i}:{67+4*i}], v[{96+4*i}:{99+4*i}], ' + ('0' if i == 0 else 'v[20:23]'))
        a(f"""v_lshlrev_b32 v8, 6, v10
        v_lshl_add_u32 v8, v17, 4, v8
        s_lshl_b32 s7, s3, 9
        v_add_u32 v9, s7, v8
        s_mov_b32 exec_lo, 0x00ff00ff
        s_mov_b32 exec_hi, 0x00ff00ff
        s_nop 2
        ds_write_b128 v9, v[20:23] offset:{BP}
        s_waitcnt lgkmcnt(0)
        s_barrier
        s_cmp_lg_u32 s3, 3
        s_cbranch_scc1 L_end""")
        for w in range(8): a(f'ds_read_b128 v[{24+4*w}:{27+4*w}], v8 offset:{BP+w*512}')
        a('s_waitcnt lgkmcnt(0)')
        for step in (16, 8, 4):
            for r in range(step): a(f'v_add_f32 v{24+r}, v{24+r}, v{24+step+r}')
        a("""v_cvt_pk_bf16_f32 v24, v24, v25
        v_cvt_pk_bf16_f32 v26, v26, v27
        v_lshlrev_b32 v28, 16, v24
        v_and_b32 v29, 0xffff0000, v24
        v_lshlrev_b32 v30, 16, v26
        v_and_b32 v31, 0xffff0000, v26
        v_lshlrev_b32 v24, 16, v18
        v_and_b32 v25, 0xffff0000, v18
        v_lshlrev_b32 v26, 16, v19
        v_and_b32 v27, 0xffff0000, v19
        v_add_f32 v24, v24, v28
        v_add_f32 v25, v25, v29
        v_add_f32 v26, v26, v30
        v_add_f32 v27, v27, v31
        v_cvt_pk_bf16_f32 v24, v24, v25
        v_cvt_pk_bf16_f32 v25, v26, v27
        global_store_dwordx2 v13, v[24:25], s[34:35]""")
        s.stamp(7)

    def text(s):
        s.gen()
        body = '\n'.join(s.L)
        k = NAME + '_kernel'
        return f"""{HEADER}; @launch grid=(256,1,1) block=(512,1,1) lds={LDS_BYTES}
.amdgcn_target "amdgcn-amd-amdhsa--gfx950"
.text
.globl {k}
.p2align 8
.type {k},@function
{k}:
{body}
.section .rodata,"a"
.p2align 6
.amdhsa_kernel {k}
  .amdhsa_next_free_vgpr 256
  .amdhsa_next_free_sgpr 102
  .amdhsa_accum_offset 256
  .amdhsa_group_segment_fixed_size 0
  .amdhsa_kernarg_size 96
  .amdhsa_user_sgpr_count 2
  .amdhsa_user_sgpr_kernarg_segment_ptr 1
  .amdhsa_system_sgpr_workgroup_id_x 1
  .amdhsa_float_denorm_mode_32 3
.end_amdhsa_kernel
"""

def parse_kw(args):
    kw = {}
    for x in args:
        k, v = x.split('=')
        try: v = int(v)
        except ValueError: v = v.replace('+', ' ').replace('-', '')
        kw[k] = v
    return kw

if __name__ == '__main__':
    out = sys.argv[1]
    open(out, 'w').write(G(**parse_kw(sys.argv[2:])).text())
```

```python
import sys, struct

NAME = 'sequential_preLN__mha_block_cached__swiglu_ffn__decode'

def f2u(x): return struct.unpack('<I', struct.pack('<f', x))[0]

HEADER = """; Kernarg layout for this problem (96 bytes, ptrs only, base s[0:1]):
"""

WS_P   = 0
WS_H   = 256*2560
WS_ACT = WS_H + 10240
WS_STAMP = 1 << 20

XD  = 0
QP  = 5120
OP  = 7168
ST  = 9216
SC0 = 9344
SCW = 64*64
WOP = SC0 + 4*SCW
XN2 = WOP + 10240
XN2S = 1296
BP  = XN2
IMG = XN2 + 8*XN2S
LDS_BYTES = IMG + 57344

L2E = 1.4426950408889634

class G:
    def __init__(s, D=6, D0=6, HP=2, kvpol='nt', wpol='', fpol='', stamps=False, spin=1<<14, psleep=0, tlbwarm=False, fastln=1, PD=1, PS=3, CT=0, C0=0, DH=10, WB=1, opol='', DE=0, NE=4, FQ=16, NP=48, DP=6, N0=12, rot=0, hmap=0, nowo=0, noffn=0, klin=0):
        s.hmap=hmap; s.rot=rot; s.NP=NP; s.FQ=FQ; s.fastln=fastln; s.PD=PD; s.PS=PS; s.CT=CT; s.C0=C0; s.DH=DH; s.WB=WB; s.opol=opol; s.DE=DE or D; s.NE=NE if DE else 0; s.DP=DP; s.N0=N0; s.nowo=nowo; s.noffn=noffn; s.klin=klin; s.sv=60
        s.L = []; s.D = D; s.D0 = D0; s.HP = HP; s.kvpol = kvpol; s.wpol = wpol; s.fpol = fpol
        s.stamps = stamps; s.spin = spin; s.psleep = psleep; s.nl = 0; s.tlbwarm = tlbwarm
    def a(s, t):
        for line in t.strip('\n').split('\n'): s.L.append('    ' + line.strip() if not line.strip().endswith(':') else line.strip())
    def lab(s, p):
        s.nl += 1; return f'L_{p}_{s.nl}'
    def stamp_reg(s, r):
        if s.stamps: s.a(f's_memrealtime s[{r}:{r+1}]')
    def stamp(s, idx, r=None):
        if not s.stamps: return
        s.a('s_memrealtime s[92:93]' if r is None else 's_nop 0')
        s.a('s_waitcnt lgkmcnt(0)')
        if r is not None: s.a(f's_mov_b32 s92, s{r}')
        s.a(f"""
        s_mov_b64 s[94:95], exec
        s_mov_b64 exec, 1
        s_lshl_b32 s93, s2, 3
        s_add_u32 s93, s93, s3
        s_lshl_b32 s93, s93, 6
        s_add_u32 s93, s93, {WS_STAMP + idx*4}
        v_mov_b32 v{s.sv}, s93
        v_mov_b32 v{s.sv+1}, s92
        global_store_dword v{s.sv}, v{s.sv+1}, s[38:39]
        s_mov_b64 exec, s[94:95]""")

    def wave_sum(s, v, sd):
        for c in ('row_ror:8', 'row_ror:4', 'row_ror:2', 'row_ror:1'):
            s.a(f's_nop 1\nv_add_f32_dpp v{v}, v{v}, v{v} {c} row_mask:0xf bank_mask:0xf')
        s.a(f's_nop 1\nv_add_f32_dpp v{v}, v{v}, v{v} row_bcast:15 row_mask:0xa bank_mask:0xf')
        s.a(f's_nop 1\nv_add_f32_dpp v{v}, v{v}, v{v} row_bcast:31 row_mask:0xc bank_mask:0xf')
        s.a(f's_nop 1\nv_readlane_b32 s{sd}, v{v}, 63')

    def layernorm(s, src, f, t, dup, o=None, fast=False):
        a = s.a
        if o is None: o = src
        for i in range(5):
            a(f'v_lshlrev_b32 v{f+2*i}, 16, v{src+i}\nv_and_b32 v{f+2*i+1}, 0xffff0000, v{src+i}')
        a(f's_mov_b32 s61, {f2u(1.0/640):#x}')
        if fast:
            a(f'v_readfirstlane_b32 s59, v{f}')
            a('s_nop 1')
            a(f'v_subrev_f32 v{t}, s59, v{f+1}\nv_mul_f32 v{t+2}, v{t}, v{t}')
            for i in [0] + list(range(2, 10)):
                a(f'v_subrev_f32 v{t+1}, s59, v{f+i}\nv_add_f32 v{t}, v{t}, v{t+1}\nv_fmac_f32 v{t+2}, v{t+1}, v{t+1}')
            for c in ('row_ror:8 row_mask:0xf', 'row_ror:4 row_mask:0xf', 'row_ror:2 row_mask:0xf', 'row_ror:1 row_mask:0xf',
                      'row_bcast:15 row_mask:0xa', 'row_bcast:31 row_mask:0xc'):
                a(f's_nop 0\nv_add_f32_dpp v{t}, v{t}, v{t} {c} bank_mask:0xf\nv_add_f32_dpp v{t+2}, v{t+2}, v{t+2} {c} bank_mask:0xf')
            a(f'v_readlane_b32 s60, v{t}, 63\nv_readlane_b32 s58, v{t+2}, 63\ns_nop 0')
            a(f'v_mov_b32 v{t}, s60\nv_mov_b32 v{t+2}, s58\nv_mul_f32 v{t}, s61, v{t}\nv_mul_f32 v{t+2}, s61, v{t+2}')
            a(f'v_fma_f32 v{t+2}, -v{t}, v{t}, v{t+2}\nv_add_f32 v{t}, s59, v{t}\nv_max_f32 v{t+2}, 0, v{t+2}')
            a(f'v_cvt_pk_bf16_f32 v{t}, v{t}, v{t+2}\nv_and_b32 v{t+2}, 0xffff0000, v{t}\nv_lshlrev_b32 v{t}, 16, v{t}')
        else:
            a(f'v_add_f32 v{t}, v{f}, v{f+1}')
            for i in range(2, 10): a(f'v_add_f32 v{t}, v{t}, v{f+i}')
            s.wave_sum(t, 60)
            a(f's_nop 1\nv_mov_b32 v{t}, s60\nv_mul_f32 v{t}, s61, v{t}')
            a(f'v_sub_f32 v{t+1}, v{f}, v{t}\nv_mul_f32 v{t+2}, v{t+1}, v{t+1}')
            for i in range(1, 10):
                a(f'v_sub_f32 v{t+1}, v{f+i}, v{t}\nv_fmac_f32 v{t+2}, v{t+1}, v{t+1}')
            s.wave_sum(t+2, 60)
            a(f'v_cvt_pk_bf16_f32 v{t}, v{t}, v{t}\nv_lshlrev_b32 v{t}, 16, v{t}')
            a(f'v_mov_b32 v{t+2}, s60\nv_mul_f32 v{t+2}, s61, v{t+2}')
            a(f'v_cvt_pk_bf16_f32 v{t+2}, v{t+2}, v{t+2}\nv_lshlrev_b32 v{t+2}, 16, v{t+2}')
        a(f'v_add_f32 v{t+2}, {f2u(1e-5):#x}, v{t+2}')
        a(f'v_cvt_pk_bf16_f32 v{t+2}, v{t+2}, v{t+2}\nv_lshlrev_b32 v{t+2}, 16, v{t+2}')
        a(f'v_sqrt_f32 v{t+2}, v{t+2}')
        for i in range(10): a(f'v_sub_f32 v{f+i}, v{f+i}, v{t}')
        a(f'v_cvt_pk_bf16_f32 v{t+2}, v{t+2}, v{t+2}\nv_lshlrev_b32 v{t+2}, 16, v{t+2}')
        a(f'v_rcp_f32 v{t+3}, v{t+2}')
        for i in range(5): a(f'v_cvt_pk_bf16_f32 v{o+i}, v{f+2*i}, v{f+2*i+1}')
        for i in range(5):
            a(f'v_lshlrev_b32 v{f+2*i}, 16, v{o+i}\nv_and_b32 v{f+2*i+1}, 0xffff0000, v{o+i}')
        for i in range(10):
            if fast: a(f'v_mul_f32 v{f+i}, v{f+i}, v{t+3}')
            else: a(f'v_mul_f32 v{t}, v{f+i}, v{t+3}\nv_fma_f32 v{t+1}, -v{t}, v{t+2}, v{f+i}\nv_fma_f32 v{f+i}, v{t+1}, v{t+3}, v{t}')
        if dup:
            for i in range(10): a(f'v_cvt_pk_bf16_f32 v{f+i}, v{f+i}, v{f+i}')
        else:
            for i in range(5): a(f'v_cvt_pk_bf16_f32 v{o+i}, v{f+2*i}, v{f+2*i+1}')

    def poll(s, loads, regs, t):
        a = s.a
        lp = s.lab('poll'); ld = s.lab('polld')
        a(f's_mov_b64 s[62:63], exec\ns_mov_b32 s64, {s.spin}')
        for _ in range(s.PD - 1):
            for l in loads: a(l)
            a(f's_sleep {s.PS}')
        a(f'{lp}:')
        for l in loads: a(l)
        a(f's_waitcnt vmcnt({(s.PD-1)*len(loads)})')
        r = list(regs)
        if len(r) == 2: a(f'v_max_u32 v{t}, v{r[0]}, v{r[1]}'); r = []
        else:
            a(f'v_max3_u32 v{t}, v{r[0]}, v{r[1]}, v{r[2]}'); r = r[3:]
        while len(r) >= 2:
            a(f'v_max3_u32 v{t}, v{t}, v{r[0]}, v{r[1]}'); r = r[2:]
        if r: a(f'v_max_u32 v{t}, v{t}, v{r[0]}')
        a(f'v_cmpx_eq_u32 vcc, -1, v{t}')
        a(f's_cbranch_execz {ld}')
        if s.psleep: a(f's_sleep {s.psleep}')
        a(f's_sub_u32 s64, s64, 1\ns_cbranch_scc0 {lp}')
        a(f'{ld}:')
        a('s_mov_b64 exec, s[62:63]\ns_nop 2')

    def gen(s):
        a = s.a; D = s.D
        s.stamp_reg(80)
        a(f"""s_cmp_ge_u32 s2, 256
        s_cbranch_scc1 L_end
        s_load_dwordx16 s[16:31], s[0:1], 0
        s_load_dwordx8 s[32:39], s[0:1], 64
        v_lshrrev_b32 v2, 6, v0
        v_and_b32 v1, 63, v0
        v_readfirstlane_b32 s3, v2
        s_lshr_b32 s4, s2, 5
        s_and_b32 s5, s2, 31""")
        if s.hmap:
            a("""s_and_b32 s5, s2, 7
            s_lshl_b32 s5, s5, 2
            s_bfe_u32 s6, s2, 0x20003
            s_add_u32 s5, s5, s6""")
        a("""s_lshl_b32 s65, s4, 5
        s_add_u32 s65, s65, s5
        s_cmp_ge_u32 s3, 4
        s_cbranch_scc1 L_helper""")
        s.streamer()
        s.helper()
        s.tail()
        a('L_end:\ns_endpgm')

    def masks(s):
        s.a("""v_and_b32 v8, 15, v1
        v_and_b32 v9, 1, v1
        v_lshlrev_b32 v9, 4, v9
        v_mov_b32 v10, 0xffff
        v_lshlrev_b32 v10, v9, v10
        v_lshrrev_b32 v11, 1, v8""")
        for m in range(4):
            s.a(f'v_cmp_eq_u32 vcc, {m}, v11\ns_nop 1\nv_cndmask_b32 v{4+m}, 0, v10, vcc')

    def streamer(s):
        a = s.a; D = s.D; R0 = 64; NP = s.NP; R = 16
        assert NP % 16 == 0
        phys = lambda i: i if i < NP else i % R
        slot = lambda p: f'v[{R0+4*p}:{R0+4*p+3}]'
        def issue(p, t):
            a(f'buffer_load_dwordx4 {slot(p)}, v2, s[40:43], s44 offen offset:{t*1024} {s.kvpol}')
            if t == 3: a('s_add_u32 s44, s44, 16384')
        def pace(Dv):
            if s.CT and Dv == D:
                l = s.lab('pw')
                a(f's_cbranch_vccnz {l}\ns_waitcnt vmcnt({Dv-1})\n{l}:\ns_waitcnt vmcnt({s.DH-1})')
            else: a(f's_waitcnt vmcnt({Dv-1})')
        def ctl_head():
            if s.CT: a('s_memrealtime s[68:69]')
        def ctl_tail():
            if s.CT: a(f's_waitcnt lgkmcnt(0)\ns_add_u32 s70, s70, {s.CT}\ns_sub_u32 s71, s70, s68\ns_ashr_i32 s71, s71, 31\ns_mov_b32 vcc_lo, s71\ns_mov_b32 vcc_hi, s71')
        if s.CT: a('s_memrealtime s[70:71]')
        a("""v_bfe_u32 v2, v1, 2, 2
        v_lshlrev_b32 v2, 8, v2
        v_lshrrev_b32 v3, 4, v1
        v_lshl_add_u32 v2, v3, 6, v2
        v_and_b32 v3, 3, v1
        v_lshl_add_u32 v2, v3, 4, v2
        v_lshlrev_b32 v3, 4, v1
        s_lshl_b32 s6, s65, 20
        s_lshl_b32 s44, s3, 12
        s_mov_b32 s42, 0x100000
        s_mov_b32 s43, 0x20000
        s_waitcnt lgkmcnt(0)
        s_add_u32 s40, s18, s6
        s_addc_u32 s41, s19, 0
        s_add_u32 s48, s20, s6
        s_addc_u32 s49, s21, 0""")
        s.stamp_reg(82)
        for i in range(s.D0): issue(i, i & 3)
        s.stamp(0)
        s.stamp(11, 80)
        s.stamp(12, 82)
        a("""v_and_b32 v8, 15, v1
        v_lshlrev_b32 v8, 3, v8
        s_min_u32 s8, s5, 9
        s_lshl_b32 s8, s8, 7
        s_mul_i32 s7, s4, 1280
        s_add_u32 s7, s7, s8
        v_add_u32 v44, s7, v8
        global_load_dwordx2 v[42:43], v44, s[16:17]""")
        if s.tlbwarm:
            a('global_load_dword v62, v3, s[48:49]')
        s.masks()
        a(f"""s_mov_b32 s50, 0xaaaaaaaa
        s_mov_b32 s51, 0xaaaaaaaa
        s_mov_b32 s52, 0xcccccccc
        s_mov_b32 s53, 0xcccccccc
        s_mov_b32 s54, {f2u(128**-0.5):#x}
        s_mov_b32 s55, {f2u(L2E):#x}
        v_mov_b32 v34, 0xff800000
        s_mul_i32 s7, s3, {SCW}
        s_add_u32 s7, s7, {SC0}
        v_and_b32 v35, 60, v1
        v_add_u32 v35, s7, v35
        v_lshrrev_b32 v8, 4, v1
        v_lshlrev_b32 v8, 2, v8
        v_and_b32 v9, 3, v1
        v_add_u32 v8, v8, v9
        v_lshlrev_b32 v45, 5, v8""")
        for i in range(s.D0, NP):
            a(f's_waitcnt vmcnt({s.DP-1})')
            issue(i, i & 3)
        s.stamp(4)
        a('s_barrier')
        s.stamp(1)
        a(f"""ds_read_b128 v[46:49], v45 offset:{QP}
        ds_read_b128 v[50:53], v45 offset:{QP+16}
        ds_read_b128 v[54:57], v45 offset:{QP+512}
        ds_read_b128 v[58:61], v45 offset:{QP+512+16}
        ds_read_b128 v[24:27], v45 offset:{QP+1024}
        ds_read_b128 v[28:31], v45 offset:{QP+1024+16}
        ds_read_b128 v[8:11], v45 offset:{QP+1536}
        ds_read_b128 v[12:15], v45 offset:{QP+1536+16}
        s_waitcnt lgkmcnt(0)""")
        for e in range(8):
            a(f'v_add_f32 v{46+e}, v{46+e}, v{54+e}\nv_add_f32 v{24+e}, v{24+e}, v{8+e}')
        for e in range(8): a(f'v_add_f32 v{46+e}, v{46+e}, v{24+e}')
        for m in range(4): a(f'v_cvt_pk_bf16_f32 v{54+m}, v{46+2*m}, v{47+2*m}')
        for t in range(4):
            mk = 0x000f000f << (4*t)
            a(f's_mov_b32 s56, {mk:#x}\ns_mov_b32 s57, {mk:#x}')
            for m in range(4): a(f'v_cndmask_b32 v{8+4*t+m}, 0, v{54+m}, s[56:57]')
        a('s_nop 1')
        Dreg = lambda g: 24 + 4*(g & 1)
        def post1(g):
            d = Dreg(g)
            a(f"""s_nop 1
            v_cndmask_b32 v32, v{d}, v{d+1}, s[50:51]
            v_cndmask_b32 v33, v{d+2}, v{d+3}, s[50:51]
            v_cndmask_b32 v32, v32, v33, s[52:53]
            s_nop 1
            v_add_f32_dpp v32, v32, v32 quad_perm:[1,0,3,2] row_mask:0xf bank_mask:0xf
            s_nop 1
            v_add_f32_dpp v32, v32, v32 quad_perm:[2,3,0,1] row_mask:0xf bank_mask:0xf""")
        def post2(off):
            a(f"""v_cvt_pk_bf16_f32 v32, v32, v32
            v_lshlrev_b32 v32, 16, v32
            v_mul_f32 v32, s54, v32
            v_cvt_pk_bf16_f32 v32, v32, v32
            v_lshlrev_b32 v32, 16, v32
            v_max_f32 v34, v34, v32
            ds_write_b32 v35, v32 offset:{off}""")
        def kcons(p, gi, t, tight=False):
            d = Dreg(gi)
            c = '0' if t == 0 else f'v[{d}:{d+3}]'
            a(f'v_mfma_f32_16x16x32_bf16 v[{d}:{d+3}], {slot(p)}, v[{8+4*t}:{11+4*t}], {c}')
        nis = 0
        per = max(1, (NP - 1) // 15)
        for i in range(NP):
            gi, t = i >> 2, i & 3
            need = (NP + nis - 1) - i
            if i >= NP - s.DP: a(f's_waitcnt vmcnt({min(need, 63)})')
            kcons(i, gi, t)
            if gi > 0 and t == 2: a('s_nop 3'); post1(gi - 1)
            if gi > 0 and t == 3: post2((gi - 1) * 64)
            if nis < 15 and i >= nis and (i + 1) % per == 0:
                a(f's_waitcnt vmcnt({D-1})')
                issue(nis, nis & 3); nis += 1
        assert nis == 15, nis
        g0 = NP // 4
        a(f'v_add_u32 v35, {(g0-1)*64}, v35')
        nk = (256 - NP) // R
        a('s_mov_b32 s45, 0\ns_nop 0')
        if s.CT: a(f's_add_u32 s70, s70, {s.C0}\ns_mov_b64 vcc, 0')
        a('L_kloop:')
        ctl_head()
        for st in range(R):
            gi, t = st >> 2, st & 3
            pace(D)
            issue((st - 1) % R, (st - 1) & 3)
            if st == 0:
                a(f"""s_cmp_lg_u32 s45, {nk-1}
                s_cbranch_scc1 L_nosw
                s_mov_b32 s40, s48
                s_mov_b32 s41, s49
                s_lshl_b32 s44, s3, 12
                v_mov_b32 v2, v3
                L_nosw:""")
            kcons(st, gi, t)
            if t == 2: post1(gi - 1)
            if t == 3: post2(gi * 64)
        ctl_tail()
        a(f"""v_add_u32 v35, {R*16}, v35
        s_add_u32 s45, s45, 1
        s_cmp_lt_u32 s45, {nk}
        s_cbranch_scc1 L_kloop
        s_nop 7""")
        post1(1); post2(0)
        a(f"""s_nop 1
        v_max_f32_dpp v34, v34, v34 row_ror:4 row_mask:0xf bank_mask:0xf
        s_nop 1
        v_max_f32_dpp v34, v34, v34 row_ror:8 row_mask:0xf bank_mask:0xf
        s_nop 1
        v_readlane_b32 s56, v34, 0
        v_readlane_b32 s57, v34, 16
        v_readlane_b32 s58, v34, 32
        v_readlane_b32 s59, v34, 48
        s_nop 0
        v_mov_b32 v34, s56
        v_max_f32 v34, s57, v34
        v_max_f32 v34, s58, v34
        v_max_f32 v34, s59, v34
        v_mul_f32 v41, s55, v34
        v_subrev_u32 v35, {63*64}, v35
        s_waitcnt lgkmcnt(0)
        ds_read_b32 v39, v35
        v_mov_b32 v36, 0
        v_mov_b32 v28, 0
        v_mov_b32 v29, 0
        v_mov_b32 v30, 0
        v_mov_b32 v31, 0""")
        s.stamp(2)
        def prep(g):
            a(f"""s_waitcnt lgkmcnt(0)
            v_fma_f32 v39, v39, s55, -v41
            v_exp_f32 v39, v39
            s_nop 0
            v_add_f32 v36, v36, v39
            v_cvt_pk_bf16_f32 v{37+(g&1)}, v39, v39""")
        prep(0)
        a('s_nop 0')
        def vstep(st, last, Dv):
            gi, t = st >> 2, st & 3
            if not last or st == 0:
                if last: a(f's_waitcnt vmcnt({Dv-1})')
                else: pace(Dv)
                issue((st - 1) % R, (st - 1) & 3)
            elif R - 1 - st < Dv:
                a(f's_waitcnt vmcnt({R-1-st})')
            fin = last and gi == R//4 - 1
            if t == 0 and not fin: a(f'ds_read_b32 v39, v35 offset:{(gi+1)*64}')
            for m in range(4):
                a(f'v_and_b32_dpp v{24+m}, v{37+(gi&1)}, v{4+m} row_newbcast:{4*t} row_mask:0xf bank_mask:0xf')
            a('s_nop 1')
            a(f'v_mfma_f32_16x16x32_bf16 v[28:31], v[24:27], {slot(st)}, v[28:31]')
            if t == 2 and not fin: prep(gi + 1)
        def vloop(name, n, Dv):
            a(f's_mov_b32 s45, 0\n{name}:')
            ctl_head()
            for st in range(R): vstep(st, False, Dv)
            ctl_tail()
            a(f"""v_add_u32 v35, {R*16}, v35
            s_add_u32 s45, s45, 1
            s_cmp_lt_u32 s45, {n}
            s_cbranch_scc1 {name}""")
        vloop('L_vloop', 256//R - 1 - s.NE, D)
        if s.NE: vloop('L_vloop2', s.NE, s.DE)
        for st in range(R): vstep(st, True, max(s.DE, s.DH if s.CT else 0))
        a(f"""v_add_f32_dpp v36, v36, v36 row_ror:4 row_mask:0xf bank_mask:0xf
        v_and_b32 v8, 15, v1
        v_lshlrev_b32 v8, 5, v8
        v_add_f32_dpp v36, v36, v36 row_ror:8 row_mask:0xf bank_mask:0xf
        v_lshrrev_b32 v9, 4, v1
        v_lshl_add_u32 v8, v9, 4, v8
        v_readlane_b32 s56, v36, 0
        v_readlane_b32 s57, v36, 16
        v_readlane_b32 s58, v36, 32
        v_readlane_b32 s59, v36, 48
        s_lshl_b32 s7, s3, 9
        v_add_u32 v8, s7, v8
        v_mov_b32 v35, s56
        v_add_f32 v35, s57, v35
        v_add_f32 v35, s58, v35
        v_add_f32 v35, s59, v35
        s_lshl_b32 s7, s3, 3
        v_mov_b32 v9, s7
        s_mov_b32 exec_hi, 0
        ds_write_b128 v8, v[28:31] offset:{OP}
        s_mov_b64 exec, 1
        ds_write_b64 v9, v[34:35] offset:{ST}
        s_mov_b64 exec, -1
        s_waitcnt lgkmcnt(0)""")
        s.stamp(3)
        a('s_barrier')
        s.ffn_wregs(streamer=True)
        a(f"""s_mul_i32 s7, s4, {32*2560}
        s_lshl_b32 s8, s5, 8
        s_add_u32 s7, s7, s8
        v_lshrrev_b32 v8, 4, v1
        v_mul_u32_u24 v8, 2560, v8
        v_and_b32 v9, 15, v1
        v_lshl_add_u32 v8, v9, 4, v8
        v_add_u32 v48, s7, v8""")
        for i in range(1, 8): a(f'v_add_u32 v{48+i}, 10240, v{47+i}')
        a(f"""v_add_u32 v44, {WS_H}, v44
        s_barrier
        s_cmp_lg_u32 s3, 0
        s_cbranch_scc1 L_tail
        s_cmp_ge_u32 s5, 10
        s_cbranch_scc1 L_tail""")
        s.stamp(8)
        s.poll([f'global_load_dwordx4 v[{160+4*i}:{163+4*i}], v{48+i}, s[38:39] sc1' for i in range(8)], list(range(160, 192)), 32)
        s.stamp(9)
        for r in range(16): a(f'v_add_f32 v{192+r}, v{160+r}, v{176+r}')
        for step in (8, 4):
            for r in range(step): a(f'v_add_f32 v{192+r}, v{192+r}, v{192+step+r}')
        for sw in ('v_permlane16_swap_b32', 'v_permlane32_swap_b32'):
            for r in range(4): a(f'v_mov_b32 v{196+r}, v{192+r}')
            for r in range(4): a(f'{sw} v{192+r}, v{196+r}')
            for r in range(4): a(f'v_add_f32 v{192+r}, v{192+r}, v{196+r}')
        a("""v_cvt_pk_bf16_f32 v24, v192, v193
        v_cvt_pk_bf16_f32 v26, v194, v195
        v_lshlrev_b32 v28, 16, v24
        v_and_b32 v29, 0xffff0000, v24
        v_lshlrev_b32 v30, 16, v26
        v_and_b32 v31, 0xffff0000, v26
        v_lshlrev_b32 v24, 16, v42
        v_and_b32 v25, 0xffff0000, v42
        v_lshlrev_b32 v26, 16, v43
        v_and_b32 v27, 0xffff0000, v43
        v_add_f32 v24, v24, v28
        v_add_f32 v25, v25, v29
        v_add_f32 v26, v26, v30
        v_add_f32 v27, v27, v31
        v_cvt_pk_bf16_f32 v24, v24, v25
        v_cvt_pk_bf16_f32 v25, v26, v27
        v_min_u32 v24, -2, v24
        v_min_u32 v25, -2, v25
        s_mov_b64 exec, 0xffff
        global_store_dwordx2 v44, v[24:25], s[38:39] sc1
        s_mov_b64 exec, -1""")
        s.stamp(5)
        a('s_branch L_tail')

    def ffn_wregs(s, streamer):
        a = s.a
        la = s.lab('wa'); ld = s.lab('wd')
        a(f"""v_lshrrev_b32 v46, 4, v1
        v_lshlrev_b32 v46, 8, v46
        v_bfe_u32 v47, v1, 2, 2
        v_lshl_add_u32 v46, v47, 5, v46
        v_and_b32 v47, 3, v1
        v_lshl_add_u32 v46, v47, 3, v46
        v_add_u32 v46, {IMG}, v46
        s_cmp_lt_u32 s2, 216
        s_cbranch_scc1 {la}
        s_lshl_b32 s7, s3, 10
        v_add_u32 v46, s7, v46""")
        for i in range(7):
            a(f'ds_read_b64_tr_b16 v[{64+4*i}:{65+4*i}], v46 offset:{i*8192}')
            a(f'ds_read_b64_tr_b16 v[{66+4*i}:{67+4*i}], v46 offset:{i*8192+128}')
        a(f's_branch {ld}\n{la}:')
        if streamer:
            a(f's_cmp_lg_u32 s3, 3\ns_cbranch_scc1 {ld}')
            for m in range(20):
                a(f'ds_read_b64_tr_b16 v[{64+4*m}:{65+4*m}], v46 offset:{m*1024}')
                a(f'ds_read_b64_tr_b16 v[{66+4*m}:{67+4*m}], v46 offset:{m*1024+128}')
        a(f'{ld}:')

    def helper(s):
        a = s.a; W0 = 96; s.sv = 92
        wreg = lambda i: f'v[{W0+4*i}:{W0+4*i+3}]'
        a('L_helper:')
        s.stamp_reg(68)
        a(f"""
        s_sub_u32 s9, s3, 4
        v_lshrrev_b32 v2, 4, v1
        v_mul_u32_u24 v2, 40, v2
        s_mul_i32 s7, s9, 160
        v_add_u32 v3, s7, v2
        v_lshlrev_b32 v2, 13, v3
        v_and_b32 v8, 15, v1
        v_lshl_add_u32 v2, v8, 4, v2
        v_lshlrev_b32 v3, 3, v3
        s_mul_i32 s49, s4, 5
        s_lshr_b32 s49, s49, 2
        s_lshl_b32 s49, s49, {4 if s.rot else 31}
        {'' if s.rot else 's_mov_b32 s49, 0'}
        v_add_u32 v3, s49, v3
        v_lshlrev_b32 v8, 4, v1
        v_lshlrev_b32 v9, 2, v1
        s_mul_i32 s7, s4, 1280
        s_lshl_b32 s8, s5, 8
        s_mov_b32 s47, 0x20000
        s_sub_u32 s46, 5242880, s8
        s_lshl_b32 s48, s49, 11
        s_waitcnt lgkmcnt(0)
        s_add_u32 s10, s16, s7
        s_addc_u32 s11, s17, 0
        s_add_u32 s44, s22, s8
        s_addc_u32 s45, s23, 0
        global_load_dwordx4 v[12:15], v8, s[10:11]
        global_load_dword v16, v9, s[10:11] offset:1024""")
        def wq_issue(i):
            a(f'buffer_load_dwordx4 {wreg(i)}, v2, s[44:47], s48 offen {s.wpol}')
            if i < 39:
                a('s_add_u32 s48, s48, 8192')
                if s.rot and (i & 3) == 3: a(f's_cmp_eq_u32 s48, {40*8192}\ns_cselect_b32 s48, 0, s48')
        N0 = s.N0
        for i in range(N0): wq_issue(i)
        s.stamp_reg(70)
        a('v_mov_b32 v26, v8\nv_mov_b32 v27, v9')
        s.masks()
        a(f's_waitcnt vmcnt({N0})')
        s.stamp_reg(72)
        s.layernorm(12, 28, 40, True)
        s.stamp_reg(74)
        a(f"""v_mul_u32_u24 v8, 52429, v1
        v_lshrrev_b32 v8, 18, v8
        v_mul_u32_u24 v8, 160, v8
        v_lshl_add_u32 v8, v1, 5, v8
        v_add_u32 v9, 256, v1
        v_mul_u32_u24 v10, 52429, v9
        v_lshrrev_b32 v10, 20, v10
        v_mul_u32_u24 v10, 160, v10
        v_lshl_add_u32 v9, v9, 3, v10
        ds_write_b128 v8, v[28:31] offset:{XD}
        ds_write_b128 v8, v[32:35] offset:{XD+16}
        ds_write_b64 v9, v[36:37] offset:{XD}
        ds_write_b128 v8, v[28:31] offset:{XD+160}
        ds_write_b128 v8, v[32:35] offset:{XD+176}
        ds_write_b64 v9, v[36:37] offset:{XD+160}
        s_waitcnt lgkmcnt(0)""")
        for i in range(10): a(f'ds_read_b128 v[{48+4*i}:{51+4*i}], v3 offset:{XD+16*i}')
        nis = N0
        for i in range(40):
            for _ in range(s.WB + (i == 0)):
                if nis < 40: wq_issue(nis); nis += 1
            if i == 0: a('s_waitcnt lgkmcnt(0)')
            ar = 28 + 4*(i & 1)
            for m in range(4): a(f'v_and_b32 v{ar+m}, v{48+i}, v{4+m}')
            a(f's_waitcnt vmcnt({nis-1-i})')
            if i == 0: s.stamp_reg(76)
            if i == 20: s.stamp_reg(78)
            a('s_nop 0')
            a(f'v_mfma_f32_16x16x32_bf16 v[20:23], v[{ar}:{ar+3}], {wreg(i)}, ' + ('0' if i == 0 else 'v[20:23]'))
        a(f"""v_and_b32 v8, 15, v1
        v_lshlrev_b32 v8, 5, v8
        v_lshrrev_b32 v9, 4, v1
        v_lshl_add_u32 v17, v9, 4, v8
        s_lshl_b32 s7, s9, 9
        v_add_u32 v8, s7, v17
        s_nop 3
        s_mov_b32 exec_hi, 0
        ds_write_b128 v8, v[20:23] offset:{QP}
        s_mov_b64 exec, -1
        s_waitcnt vmcnt(0) lgkmcnt(0)""")
        s.stamp(1)
        for i, r in enumerate((68, 70, 72, 74, 76, 78)): s.stamp((0,12,13,14,15,11)[i], r)
        a('s_barrier')
        a(f"""v_mov_b32 v20, -1
        v_mov_b32 v21, -1
        v_mov_b32 v22, -1
        v_mov_b32 v23, -1
        s_and_b32 s12, s2, 7
        s_lshr_b32 s13, s2, 3
        s_mul_i32 s14, s12, 27
        s_add_u32 s14, s14, s13
        s_mul_i32 s15, s12, 5
        s_add_u32 s15, s15, s13
        s_sub_u32 s15, s15, 27
        s_mul_i32 s7, s65, 2560
        v_add_u32 v24, s7, v26
        s_lshl_b32 s8, s9, 10
        v_add_u32 v45, s8, v24
        s_cmp_lg_u32 s9, 3
        s_cbranch_scc1 L_clrd
        global_store_dwordx4 v24, v[20:23], s[38:39] sc1
        global_store_dwordx4 v24, v[20:23], s[38:39] offset:1024 sc1
        global_store_dwordx4 v24, v[20:23], s[38:39] offset:1536 sc1
        s_mul_i32 s7, s4, 1280
        s_lshl_b32 s8, s5, 7
        s_add_u32 s7, s7, s8
        s_add_u32 s7, s7, {WS_H}
        v_add_u32 v24, s7, v27
        s_lshl_b32 s7, s14, 7
        s_add_u32 s7, s7, {WS_ACT - 128}
        v_add_u32 v25, s7, v27
        v_cmp_lt_u32 vcc, 31, v1
        s_nop 1
        v_cndmask_b32 v24, v24, v25, vcc
        s_cmp_lt_u32 s5, 10
        s_cselect_b32 exec_lo, -1, 0
        s_cmp_lt_u32 s2, 216
        s_cselect_b32 exec_hi, -1, 0
        s_cbranch_execz L_clrd
        global_store_dword v24, v20, s[38:39] sc1
        L_clrd:
        s_mov_b64 exec, -1""")
        a(f"""s_lshl_b32 s7, s9, 6
        v_add_u32 v18, s7, v1
        {'s_branch L_stD' if s.noffn else ''}
        s_cmp_lt_u32 s2, 216
        s_cbranch_scc0 L_stB
        s_mov_b32 s7, 3456
        v_mul_lo_u32 v8, v18, s7
        s_lshl_b32 s8, s14, 4
        s_add_u32 s44, s28, s8
        s_addc_u32 s45, s29, 0
        s_sub_u32 s46, 2211840, s8
        s_add_u32 s40, s30, s8
        s_addc_u32 s41, s31, 0
        s_mov_b32 s42, s46
        s_mov_b32 s43, 0x20000
        s_mov_b32 s48, {256*3456}
        s_mov_b32 s49, {512*3456}""")
        def split_load(txt, lanes):
            for q in range(64 // lanes):
                m = ((1 << lanes) - 1) << (q * lanes)
                if lanes < 64: a(f's_mov_b32 exec_lo, {m & 0xffffffff:#x}\ns_mov_b32 exec_hi, {m >> 32:#x}')
                a(txt)
                a('s_waitcnt vmcnt(0)')
            a('s_mov_b64 exec, -1')
        a(f'v_lshlrev_b32 v9, 5, v18\nv_add_u32 v9, {IMG}, v9')
        for i, so in enumerate(('0', 's48', 's49')):
            if i == 2: a('s_cmp_ge_u32 s9, 2\ns_cbranch_scc1 L_stD')
            split_load(f'buffer_load_dwordx4 v[48:51], v8, s[44:47], {so} offen {s.fpol}', s.FQ)
            split_load(f'buffer_load_dwordx4 v[52:55], v8, s[40:43], {so} offen {s.fpol}', s.FQ)
            for q in range(4):
                a(f'ds_write2_b32 v9, v{48+q}, v{52+q} offset0:{2*q} offset1:{2*q+1}')
            a('s_waitcnt lgkmcnt(0)')
            if i < 2: a('v_add_u32 v9, 8192, v9')
        a(f"""s_branch L_stD
        L_stB:
        v_lshrrev_b32 v8, 1, v18
        v_mul_u32_u24 v8, 1280, v8
        v_and_b32 v9, 1, v18
        v_lshl_add_u32 v8, v9, 4, v8
        s_lshl_b32 s8, s15, 5
        s_add_u32 s44, s32, s8
        s_addc_u32 s45, s33, 0
        s_sub_u32 s46, 2211840, s8
        s_mov_b32 s48, 0
        v_lshlrev_b32 v9, 4, v18
        v_add_u32 v9, {IMG}, v9""")
        for i in range(14):
            split_load(f'buffer_load_dwordx4 v[48:51], v8, s[44:47], s48 offen {s.fpol}', min(64, 2*s.FQ))
            a(f's_add_u32 s48, s48, {128*1280}')
            a(f'ds_write_b128 v9, v[48:51] offset:{i*4096}')
            a('s_waitcnt lgkmcnt(0)')
        a('L_stD:')
        a(f"""v_lshrrev_b32 v8, 4, v1
        v_lshlrev_b32 v8, 3, v8
        s_lshl_b32 s7, s9, 5
        v_add_u32 v19, s7, v8
        v_mul_u32_u24 v8, 1280, v19
        v_and_b32 v9, 15, v1
        v_lshl_add_u32 v8, v9, 4, v8
        s_mul_i32 s8, s5, {128*1280}
        s_add_u32 s44, s24, s8
        s_addc_u32 s45, s25, 0
        s_mov_b32 s46, {128*1280}
        s_mov_b32 s48, 3840
        s_mov_b32 s49, 7680""")
        for i in range(8):
            for n in range(5):
                so = ('0', 's48', 's49')[i // 3]; off = (i % 3)*1280 + n*256
                if s.nowo: continue
                a(f's_waitcnt vmcnt({s.HP-1})')
                a(f'buffer_load_dwordx4 {wreg(i*5+n)}, v8, s[44:47], {so} offen offset:{off} {s.wpol}')
        s.stamp(2)
        a(f"""v_lshlrev_b32 v44, 4, v18
        v_lshlrev_b32 v19, 2, v19
        s_mul_i32 s7, s9, 2560
        v_add_u32 v17, s7, v17
        v_mov_b32 v16, 0
        s_mov_b32 s55, {f2u(L2E):#x}""")
        a(f"""s_waitcnt vmcnt(0)
        s_cmp_lg_u32 s9, 3
        s_cbranch_scc1 L_cntd
        s_mov_b64 exec, 1
        v_mov_b32 v9, 1
        global_atomic_add v16, v9, s[36:37] sc1
        s_mov_b32 s64, {s.spin}
        L_cnt:
        s_sleep 127
        global_load_dword v8, v16, s[36:37] sc1
        s_waitcnt vmcnt(0)
        v_readfirstlane_b32 s7, v8
        s_cmp_ge_u32 s7, 256
        s_cbranch_scc1 L_cntd
        s_sub_u32 s64, s64, 1
        s_cbranch_scc0 L_cnt
        L_cntd:
        s_mov_b64 exec, -1
        s_waitcnt lgkmcnt(0)
        s_barrier""")
        s.stamp(3)
        a(f'ds_read_b128 v[8:11], v16 offset:{ST}\nds_read_b128 v[12:15], v16 offset:{ST+16}')
        for w in range(4):
            a(f'ds_read_b128 v[{48+8*w}:{51+8*w}], v19 offset:{OP+w*512}')
            a(f'ds_read_b128 v[{52+8*w}:{55+8*w}], v19 offset:{OP+w*512+16}')
        a("""s_waitcnt lgkmcnt(8)
        v_max_f32 v20, v8, v10
        v_max3_f32 v20, v20, v12, v14
        v_sub_f32 v8, v8, v20
        v_sub_f32 v10, v10, v20
        v_sub_f32 v12, v12, v20
        v_sub_f32 v14, v14, v20
        v_mul_f32 v8, s55, v8
        v_mul_f32 v10, s55, v10
        v_mul_f32 v12, s55, v12
        v_mul_f32 v14, s55, v14
        v_exp_f32 v8, v8
        v_exp_f32 v10, v10
        v_exp_f32 v12, v12
        v_exp_f32 v14, v14
        v_mul_f32 v20, v8, v9
        v_fmac_f32 v20, v10, v11
        v_fmac_f32 v20, v12, v13
        v_fmac_f32 v20, v14, v15
        v_rcp_f32 v20, v20
        s_waitcnt lgkmcnt(0)""")
        for e in range(8): a(f'v_mul_f32 v{48+e}, v8, v{48+e}')
        for w in range(1, 4):
            for e in range(8): a(f'v_fmac_f32 v{48+e}, v{8+2*w}, v{48+8*w+e}')
        for e in range(8): a(f'v_mul_f32 v{48+e}, v20, v{48+e}')
        for e in range(8): a(f'v_cvt_pk_bf16_f32 v{48+e}, v{48+e}, v{48+e}')
        for i in range(8):
            ar = 28 + 4*(i & 1)
            for m in range(4): a(f'v_and_b32 v{ar+m}, v{48+i}, v{4+m}')
            a('s_nop 1')
            for n in range(5):
                a(f'v_mfma_f32_16x16x32_bf16 v[{60+4*n}:{63+4*n}], v[{ar}:{ar+3}], {wreg(i*5+n)}, ' + ('0' if i == 0 else f'v[{60+4*n}:{63+4*n}]'))
        a('s_mov_b32 exec_hi, 0\ns_nop 3')
        for n in range(5): a(f'ds_write_b128 v17, v[{60+4*n}:{63+4*n}] offset:{WOP+n*512}')
        a("""s_mov_b64 exec, -1
        s_waitcnt lgkmcnt(0)
        s_barrier
        s_cmp_eq_u32 s9, 3
        s_cbranch_scc1 L_pubd""")
        for w in range(4): a(f'ds_read_b128 v[{48+4*w}:{51+4*w}], v44 offset:{WOP+w*2560}')
        a('s_waitcnt lgkmcnt(0)')
        for e in range(4): a(f'v_add_f32 v{48+e}, v{48+e}, v{52+e}\nv_add_f32 v{56+e}, v{56+e}, v{60+e}')
        for e in range(4): a(f'v_add_f32 v{48+e}, v{48+e}, v{56+e}')
        for e in range(4): a(f'v_min_u32 v{48+e}, -2, v{48+e}')
        a("""s_cmp_eq_u32 s9, 2
        s_cselect_b32 exec_hi, 0, -1
        global_store_dwordx4 v45, v[48:51], s[38:39] sc1
        s_mov_b64 exec, -1""")
        s.stamp(4)
        a('L_pubd:')
        s.ffn_wregs(streamer=False)

    def tail(s):
        a = s.a; s.sv = 60
        a(f"""L_tail:
        s_and_b32 s12, s2, 7
        s_lshr_b32 s13, s2, 3
        s_cmp_lt_u32 s2, 216
        s_cbranch_scc0 L_tailB
        s_mul_i32 s14, s12, 27
        s_add_u32 s14, s14, s13
        s_mul_i32 s7, s3, 1280
        s_add_u32 s7, s7, {WS_H}
        v_lshl_add_u32 v8, v1, 4, s7
        v_lshl_add_u32 v9, v1, 2, s7
        s_barrier""")
        s.poll(['global_load_dwordx4 v[12:15], v8, s[38:39] sc1', 'global_load_dword v16, v9, s[38:39] offset:1024 sc1'],
               [12, 13, 14, 15, 16], 17)
        s.stamp(6)
        s.layernorm(12, 28, 40, False, o=20, fast=s.fastln)
        s.stamp(10)
        a(f"""s_mul_i32 s7, s3, {XN2S}
        v_lshl_add_u32 v8, v1, 4, s7
        v_lshl_add_u32 v9, v1, 2, s7
        ds_write_b128 v8, v[20:23] offset:{XN2}
        ds_write_b32 v9, v24 offset:{XN2+1024}
        v_and_b32 v10, 7, v1
        v_mul_u32_u24 v11, {XN2S}, v10
        v_lshrrev_b32 v17, 4, v1
        v_lshl_add_u32 v11, v17, 4, v11
        s_waitcnt lgkmcnt(0)
        s_barrier
        s_cmp_lg_u32 s3, 3
        s_cbranch_scc1 L_end""")
        for m in range(20): a(f'ds_read_b128 v[{144+4*m}:{147+4*m}], v11 offset:{XN2+m*64}')
        a(f"""v_lshlrev_b32 v10, 4, v10
        v_lshl_add_u32 v10, v17, 2, v10
        s_lshl_b32 s7, s14, 7
        s_add_u32 s7, s7, {WS_ACT}
        v_add_u32 v10, s7, v10
        s_mov_b32 s55, {f2u(-L2E):#x}""")
        for m in range(20):
            a(f's_waitcnt lgkmcnt({min(15, 19-m)})')
            a(f'v_mfma_f32_16x16x32_bf16 v[20:23], v[{64+4*m}:{67+4*m}], v[{144+4*m}:{147+4*m}], ' + ('0' if m == 0 else 'v[20:23]'))
        a("""s_nop 7
        v_cvt_pk_bf16_f32 v20, v20, v21
        v_cvt_pk_bf16_f32 v22, v22, v23
        v_lshlrev_b32 v24, 16, v20
        v_and_b32 v25, 0xffff0000, v20
        v_mul_f32 v26, s55, v24
        v_mul_f32 v27, s55, v25
        v_exp_f32 v26, v26
        v_exp_f32 v27, v27
        v_lshlrev_b32 v28, 16, v22
        v_add_f32 v26, 1.0, v26
        v_add_f32 v27, 1.0, v27
        v_rcp_f32 v26, v26
        v_rcp_f32 v27, v27
        v_and_b32 v29, 0xffff0000, v22
        v_mul_f32 v24, v24, v26
        v_mul_f32 v25, v25, v27
        v_cvt_pk_bf16_f32 v24, v24, v25
        v_lshlrev_b32 v26, 16, v24
        v_and_b32 v27, 0xffff0000, v24
        v_mul_f32 v26, v26, v28
        v_mul_f32 v27, v27, v29
        v_cvt_pk_bf16_f32 v26, v26, v27
        v_min_u32 v26, -2, v26
        s_mov_b32 exec_lo, 0x00ff00ff
        s_mov_b32 exec_hi, 0x00ff00ff
        global_store_dword v10, v26, s[38:39] sc1""")
        s.stamp(7)
        a('s_endpgm')
        a(f"""L_tailB:
        s_mul_i32 s15, s12, 5
        s_add_u32 s15, s15, s13
        s_sub_u32 s15, s15, 27
        v_and_b32 v10, 7, v1
        v_lshrrev_b32 v17, 4, v1
        v_lshlrev_b32 v8, 4, v10
        v_lshl_add_u32 v8, v17, 7, v8
        s_lshl_b32 s7, s3, 9
        s_add_u32 s7, s7, {WS_ACT}
        v_add_u32 v8, s7, v8
        v_add_u32 v9, 0x2000, v8
        v_add_u32 v11, 0x4000, v8
        s_movk_i32 s8, 0x5000
        s_cmp_lt_u32 s3, 6
        s_cselect_b32 s8, 0x6000, s8
        v_add_u32 v12, s8, v8
        v_mul_u32_u24 v13, 1280, v10
        v_lshl_add_u32 v13, v17, 3, v13
        s_lshl_b32 s7, s15, 5
        v_add_u32 v13, s7, v13
        v_add_u32 v14, {WS_H}, v13
        s_barrier
        s_cmp_lg_u32 s3, 3
        s_cbranch_scc1 L_noh""")
        s.poll(['global_load_dwordx2 v[18:19], v14, s[38:39] sc1'], [18, 19], 15)
        a('L_noh:')
        lds = []
        for i in range(7):
            base = (8, 8, 9, 9, 11, 11, 12)[i]; off = 0
            if i < 6 and (i & 1): off = 4096
            lds.append((base, off))
        loads = []
        for i, (base, off) in enumerate(lds):
            if off == 4096:
                loads.append(f'global_load_dwordx4 v[{96+4*i}:{99+4*i}], v{base}, s[66:67] sc1')
            else:
                loads.append(f'global_load_dwordx4 v[{96+4*i}:{99+4*i}], v{base}, s[38:39] sc1')
        a('s_add_u32 s66, s38, 4096\ns_addc_u32 s67, s39, 0')
        s.poll(loads, list(range(96, 124)), 15)
        s.stamp(6)
        a('s_waitcnt lgkmcnt(0)')
        for i in range(7):
            a(f'v_mfma_f32_16x16x32_bf16 v[20:23], v[{64+4*i}:{67+4*i}], v[{96+4*i}:{99+4*i}], ' + ('0' if i == 0 else 'v[20:23]'))
        a(f"""v_lshlrev_b32 v8, 6, v10
        v_lshl_add_u32 v8, v17, 4, v8
        s_lshl_b32 s7, s3, 9
        v_add_u32 v9, s7, v8
        s_mov_b32 exec_lo, 0x00ff00ff
        s_mov_b32 exec_hi, 0x00ff00ff
        s_nop 2
        ds_write_b128 v9, v[20:23] offset:{BP}
        s_waitcnt lgkmcnt(0)
        s_barrier
        s_cmp_lg_u32 s3, 3
        s_cbranch_scc1 L_end""")
        for w in range(8): a(f'ds_read_b128 v[{24+4*w}:{27+4*w}], v8 offset:{BP+w*512}')
        a('s_waitcnt lgkmcnt(0)')
        for step in (16, 8, 4):
            for r in range(step): a(f'v_add_f32 v{24+r}, v{24+r}, v{24+step+r}')
        a("""v_cvt_pk_bf16_f32 v24, v24, v25
        v_cvt_pk_bf16_f32 v26, v26, v27
        v_lshlrev_b32 v28, 16, v24
        v_and_b32 v29, 0xffff0000, v24
        v_lshlrev_b32 v30, 16, v26
        v_and_b32 v31, 0xffff0000, v26
        v_lshlrev_b32 v24, 16, v18
        v_and_b32 v25, 0xffff0000, v18
        v_lshlrev_b32 v26, 16, v19
        v_and_b32 v27, 0xffff0000, v19
        v_add_f32 v24, v24, v28
        v_add_f32 v25, v25, v29
        v_add_f32 v26, v26, v30
        v_add_f32 v27, v27, v31
        v_cvt_pk_bf16_f32 v24, v24, v25
        v_cvt_pk_bf16_f32 v25, v26, v27
        global_store_dwordx2 v13, v[24:25], s[34:35] """ + s.opol)
        s.stamp(7)

    def text(s):
        s.gen()
        body = '\n'.join(s.L)
        k = NAME + '_kernel'
        return f"""{HEADER}; @launch grid=(256,1,1) block=(512,1,1) lds={LDS_BYTES}
.amdgcn_target "amdgcn-amd-amdhsa--gfx950"
.text
.globl {k}
.p2align 8
.type {k},@function
{k}:
{body}
.section .rodata,"a"
.p2align 6
.amdhsa_kernel {k}
  .amdhsa_next_free_vgpr 256
  .amdhsa_next_free_sgpr 102
  .amdhsa_accum_offset 256
  .amdhsa_group_segment_fixed_size 0
  .amdhsa_kernarg_size 96
  .amdhsa_user_sgpr_count 2
  .amdhsa_user_sgpr_kernarg_segment_ptr 1
  .amdhsa_system_sgpr_workgroup_id_x 1
  .amdhsa_float_denorm_mode_32 3
.end_amdhsa_kernel
"""

def parse_kw(args):
    kw = {}
    for x in args:
        k, v = x.split('=')
        try: v = int(v)
        except ValueError: v = v.replace('+', ' ').replace('-', '')
        kw[k] = v
    return kw

if __name__ == '__main__':
    out = sys.argv[1]
    open(out, 'w').write(G(**parse_kw(sys.argv[2:])).text())
```

```python
import sys, struct

NAME = 'sequential_preLN__mha_block_cached__swiglu_ffn__decode'

def f2u(x): return struct.unpack('<I', struct.pack('<f', x))[0]

HEADER = """; Kernarg layout for this problem (96 bytes, ptrs only, base s[0:1]):
"""

WS_P   = 0
WS_H   = 256*2560
WS_ACT = WS_H + 10240
WS_STAMP = 1 << 20

XD  = 0
QP  = 5120
OP  = 7168
ST  = 9216
SC0 = 9344
SCW = 64*64
WOP = SC0 + 4*SCW
XN2 = WOP + 10240
XN2S = 1296
BP  = XN2
IMG = XN2 + 8*XN2S
LDS_BYTES = IMG + 57344

L2E = 1.4426950408889634

class G:
    def __init__(s, D=6, D0=6, HP=2, kvpol='nt', wpol='', fpol='', stamps=False, spin=1<<14, psleep=0, tlbwarm=False, fastln=1, dbgt=0, PD=1, PS=3, CT=0, C0=0, DH=10, WB=1, opol='', DE=0, NE=4, FQ=16, NP=48, DP=6, N0=12, rot=0, hmap=0, nowo=0, noffn=0, klin=0):
        s.hmap=hmap; s.rot=rot; s.NP=NP; s.FQ=FQ; s.dbgt=dbgt; s.fastln=fastln; s.PD=PD; s.PS=PS; s.CT=CT; s.C0=C0; s.DH=DH; s.WB=WB; s.opol=opol; s.DE=DE or D; s.NE=NE if DE else 0; s.DP=DP; s.N0=N0; s.nowo=nowo; s.noffn=noffn; s.klin=klin; s.sv=60
        s.L = []; s.D = D; s.D0 = D0; s.HP = HP; s.kvpol = kvpol; s.wpol = wpol; s.fpol = fpol
        s.stamps = stamps; s.spin = spin; s.psleep = psleep; s.nl = 0; s.tlbwarm = tlbwarm
    def a(s, t):
        for line in t.strip('\n').split('\n'): s.L.append('    ' + line.strip() if not line.strip().endswith(':') else line.strip())
    def lab(s, p):
        s.nl += 1; return f'L_{p}_{s.nl}'
    def dstamp(s, idx, inv=False, r=None):
        if not s.dbgt: return
        s.a(('s_memrealtime s[92:93]' if r is None else f's_mov_b32 s92, s{r}') + f"""
        s_waitcnt lgkmcnt(0)
        {'s_not_b32 s92, s92' if inv else ''}
        s_mov_b64 s[94:95], exec
        s_mov_b64 exec, 1
        v_mov_b32 v{s.sv}, {idx*4}
        v_mov_b32 v{s.sv+1}, s92
        global_atomic_umax v{s.sv}, v{s.sv+1}, s[36:37] sc1
        s_mov_b64 exec, s[94:95]""")
    def stamp_reg(s, r):
        if s.stamps: s.a(f's_memrealtime s[{r}:{r+1}]')
    def stamp(s, idx, r=None):
        if not s.stamps: return
        s.a('s_memrealtime s[92:93]' if r is None else 's_nop 0')
        s.a('s_waitcnt lgkmcnt(0)')
        if r is not None: s.a(f's_mov_b32 s92, s{r}')
        s.a(f"""
        s_mov_b64 s[94:95], exec
        s_mov_b64 exec, 1
        s_lshl_b32 s93, s2, 3
        s_add_u32 s93, s93, s3
        s_lshl_b32 s93, s93, 6
        s_add_u32 s93, s93, {WS_STAMP + idx*4}
        v_mov_b32 v{s.sv}, s93
        v_mov_b32 v{s.sv+1}, s92
        global_store_dword v{s.sv}, v{s.sv+1}, s[38:39]
        s_mov_b64 exec, s[94:95]""")

    def wave_sum(s, v, sd):
        for c in ('row_ror:8', 'row_ror:4', 'row_ror:2', 'row_ror:1'):
            s.a(f's_nop 1\nv_add_f32_dpp v{v}, v{v}, v{v} {c} row_mask:0xf bank_mask:0xf')
        s.a(f's_nop 1\nv_add_f32_dpp v{v}, v{v}, v{v} row_bcast:15 row_mask:0xa bank_mask:0xf')
        s.a(f's_nop 1\nv_add_f32_dpp v{v}, v{v}, v{v} row_bcast:31 row_mask:0xc bank_mask:0xf')
        s.a(f's_nop 1\nv_readlane_b32 s{sd}, v{v}, 63')

    def layernorm(s, src, f, t, dup, o=None, fast=False):
        a = s.a
        if o is None: o = src
        for i in range(5):
            a(f'v_lshlrev_b32 v{f+2*i}, 16, v{src+i}\nv_and_b32 v{f+2*i+1}, 0xffff0000, v{src+i}')
        a(f's_mov_b32 s61, {f2u(1.0/640):#x}')
        if fast:
            a(f'v_readfirstlane_b32 s59, v{f}')
            a('s_nop 1')
            a(f'v_subrev_f32 v{t}, s59, v{f+1}\nv_mul_f32 v{t+2}, v{t}, v{t}')
            for i in [0] + list(range(2, 10)):
                a(f'v_subrev_f32 v{t+1}, s59, v{f+i}\nv_add_f32 v{t}, v{t}, v{t+1}\nv_fmac_f32 v{t+2}, v{t+1}, v{t+1}')
            for c in ('row_ror:8 row_mask:0xf', 'row_ror:4 row_mask:0xf', 'row_ror:2 row_mask:0xf', 'row_ror:1 row_mask:0xf',
                      'row_bcast:15 row_mask:0xa', 'row_bcast:31 row_mask:0xc'):
                a(f's_nop 0\nv_add_f32_dpp v{t}, v{t}, v{t} {c} bank_mask:0xf\nv_add_f32_dpp v{t+2}, v{t+2}, v{t+2} {c} bank_mask:0xf')
            a(f'v_readlane_b32 s60, v{t}, 63\nv_readlane_b32 s58, v{t+2}, 63\ns_nop 0')
            a(f'v_mov_b32 v{t}, s60\nv_mov_b32 v{t+2}, s58\nv_mul_f32 v{t}, s61, v{t}\nv_mul_f32 v{t+2}, s61, v{t+2}')
            a(f'v_fma_f32 v{t+2}, -v{t}, v{t}, v{t+2}\nv_add_f32 v{t}, s59, v{t}\nv_max_f32 v{t+2}, 0, v{t+2}')
            a(f'v_cvt_pk_bf16_f32 v{t}, v{t}, v{t+2}\nv_and_b32 v{t+2}, 0xffff0000, v{t}\nv_lshlrev_b32 v{t}, 16, v{t}')
        else:
            a(f'v_add_f32 v{t}, v{f}, v{f+1}')
            for i in range(2, 10): a(f'v_add_f32 v{t}, v{t}, v{f+i}')
            s.wave_sum(t, 60)
            a(f's_nop 1\nv_mov_b32 v{t}, s60\nv_mul_f32 v{t}, s61, v{t}')
            a(f'v_sub_f32 v{t+1}, v{f}, v{t}\nv_mul_f32 v{t+2}, v{t+1}, v{t+1}')
            for i in range(1, 10):
                a(f'v_sub_f32 v{t+1}, v{f+i}, v{t}\nv_fmac_f32 v{t+2}, v{t+1}, v{t+1}')
            s.wave_sum(t+2, 60)
            a(f'v_cvt_pk_bf16_f32 v{t}, v{t}, v{t}\nv_lshlrev_b32 v{t}, 16, v{t}')
            a(f'v_mov_b32 v{t+2}, s60\nv_mul_f32 v{t+2}, s61, v{t+2}')
            a(f'v_cvt_pk_bf16_f32 v{t+2}, v{t+2}, v{t+2}\nv_lshlrev_b32 v{t+2}, 16, v{t+2}')
        a(f'v_add_f32 v{t+2}, {f2u(1e-5):#x}, v{t+2}')
        a(f'v_cvt_pk_bf16_f32 v{t+2}, v{t+2}, v{t+2}\nv_lshlrev_b32 v{t+2}, 16, v{t+2}')
        a(f'v_sqrt_f32 v{t+2}, v{t+2}')
        for i in range(10): a(f'v_sub_f32 v{f+i}, v{f+i}, v{t}')
        a(f'v_cvt_pk_bf16_f32 v{t+2}, v{t+2}, v{t+2}\nv_lshlrev_b32 v{t+2}, 16, v{t+2}')
        a(f'v_rcp_f32 v{t+3}, v{t+2}')
        for i in range(5): a(f'v_cvt_pk_bf16_f32 v{o+i}, v{f+2*i}, v{f+2*i+1}')
        for i in range(5):
            a(f'v_lshlrev_b32 v{f+2*i}, 16, v{o+i}\nv_and_b32 v{f+2*i+1}, 0xffff0000, v{o+i}')
        for i in range(10):
            if fast: a(f'v_mul_f32 v{f+i}, v{f+i}, v{t+3}')
            else: a(f'v_mul_f32 v{t}, v{f+i}, v{t+3}\nv_fma_f32 v{t+1}, -v{t}, v{t+2}, v{f+i}\nv_fma_f32 v{f+i}, v{t+1}, v{t+3}, v{t}')
        if dup:
            for i in range(10): a(f'v_cvt_pk_bf16_f32 v{f+i}, v{f+i}, v{f+i}')
        else:
            for i in range(5): a(f'v_cvt_pk_bf16_f32 v{o+i}, v{f+2*i}, v{f+2*i+1}')

    def poll(s, loads, regs, t):
        a = s.a
        lp = s.lab('poll'); ld = s.lab('polld')
        a(f's_mov_b64 s[62:63], exec\ns_mov_b32 s64, {s.spin}')
        for _ in range(s.PD - 1):
            for l in loads: a(l)
            a(f's_sleep {s.PS}')
        a(f'{lp}:')
        for l in loads: a(l)
        a(f's_waitcnt vmcnt({(s.PD-1)*len(loads)})')
        r = list(regs)
        if len(r) == 2: a(f'v_max_u32 v{t}, v{r[0]}, v{r[1]}'); r = []
        else:
            a(f'v_max3_u32 v{t}, v{r[0]}, v{r[1]}, v{r[2]}'); r = r[3:]
        while len(r) >= 2:
            a(f'v_max3_u32 v{t}, v{t}, v{r[0]}, v{r[1]}'); r = r[2:]
        if r: a(f'v_max_u32 v{t}, v{t}, v{r[0]}')
        a(f'v_cmpx_eq_u32 vcc, -1, v{t}')
        a(f's_cbranch_execz {ld}')
        if s.psleep: a(f's_sleep {s.psleep}')
        a(f's_sub_u32 s64, s64, 1\ns_cbranch_scc0 {lp}')
        a(f'{ld}:')
        a('s_mov_b64 exec, s[62:63]\ns_nop 2')

    def gen(s):
        a = s.a; D = s.D
        s.stamp_reg(80)
        if s.dbgt: a('s_memrealtime s[80:81]')
        a(f"""s_cmp_ge_u32 s2, 256
        s_cbranch_scc1 L_end
        s_load_dwordx16 s[16:31], s[0:1], 0
        s_load_dwordx8 s[32:39], s[0:1], 64
        v_lshrrev_b32 v2, 6, v0
        v_and_b32 v1, 63, v0
        v_readfirstlane_b32 s3, v2
        s_lshr_b32 s4, s2, 5
        s_and_b32 s5, s2, 31""")
        if s.hmap:
            a("""s_and_b32 s5, s2, 7
            s_lshl_b32 s5, s5, 2
            s_bfe_u32 s6, s2, 0x20003
            s_add_u32 s5, s5, s6""")
        a("""s_lshl_b32 s65, s4, 5
        s_add_u32 s65, s65, s5
        s_cmp_ge_u32 s3, 4
        s_cbranch_scc1 L_helper""")
        s.streamer()
        s.helper()
        s.tail()
        a('L_end:\ns_endpgm')

    def masks(s):
        s.a("""v_and_b32 v8, 15, v1
        v_and_b32 v9, 1, v1
        v_lshlrev_b32 v9, 4, v9
        v_mov_b32 v10, 0xffff
        v_lshlrev_b32 v10, v9, v10
        v_lshrrev_b32 v11, 1, v8""")
        for m in range(4):
            s.a(f'v_cmp_eq_u32 vcc, {m}, v11\ns_nop 1\nv_cndmask_b32 v{4+m}, 0, v10, vcc')

    def streamer(s):
        a = s.a; D = s.D; R0 = 64; NP = s.NP; R = 16
        assert NP % 16 == 0
        phys = lambda i: i if i < NP else i % R
        slot = lambda p: f'v[{R0+4*p}:{R0+4*p+3}]'
        def issue(p, t):
            a(f'buffer_load_dwordx4 {slot(p)}, v2, s[40:43], s44 offen offset:{t*1024} {s.kvpol}')
            if t == 3: a('s_add_u32 s44, s44, 16384')
        def pace(Dv):
            if s.CT and Dv == D:
                l = s.lab('pw')
                a(f's_cbranch_vccnz {l}\ns_waitcnt vmcnt({Dv-1})\n{l}:\ns_waitcnt vmcnt({s.DH-1})')
            else: a(f's_waitcnt vmcnt({Dv-1})')
        def ctl_head():
            if s.CT: a('s_memrealtime s[68:69]')
        def ctl_tail():
            if s.CT: a(f's_waitcnt lgkmcnt(0)\ns_add_u32 s70, s70, {s.CT}\ns_sub_u32 s71, s70, s68\ns_ashr_i32 s71, s71, 31\ns_mov_b32 vcc_lo, s71\ns_mov_b32 vcc_hi, s71')
        if s.CT: a('s_memrealtime s[70:71]')
        a("""v_bfe_u32 v2, v1, 2, 2
        v_lshlrev_b32 v2, 8, v2
        v_lshrrev_b32 v3, 4, v1
        v_lshl_add_u32 v2, v3, 6, v2
        v_and_b32 v3, 3, v1
        v_lshl_add_u32 v2, v3, 4, v2
        v_lshlrev_b32 v3, 4, v1
        s_lshl_b32 s6, s65, 20
        s_lshl_b32 s44, s3, 12
        s_mov_b32 s42, 0x100000
        s_mov_b32 s43, 0x20000
        s_waitcnt lgkmcnt(0)
        s_add_u32 s40, s18, s6
        s_addc_u32 s41, s19, 0
        s_add_u32 s48, s20, s6
        s_addc_u32 s49, s21, 0""")
        s.stamp_reg(82)
        for i in range(s.D0): issue(i, i & 3)
        s.stamp(0)
        s.stamp(11, 80)
        s.stamp(12, 82)
        a("""v_and_b32 v8, 15, v1
        v_lshlrev_b32 v8, 3, v8
        s_min_u32 s8, s5, 9
        s_lshl_b32 s8, s8, 7
        s_mul_i32 s7, s4, 1280
        s_add_u32 s7, s7, s8
        v_add_u32 v44, s7, v8
        global_load_dwordx2 v[42:43], v44, s[16:17]""")
        if s.tlbwarm:
            a('global_load_dword v62, v3, s[48:49]')
        s.masks()
        a(f"""s_mov_b32 s50, 0xaaaaaaaa
        s_mov_b32 s51, 0xaaaaaaaa
        s_mov_b32 s52, 0xcccccccc
        s_mov_b32 s53, 0xcccccccc
        s_mov_b32 s54, {f2u(128**-0.5):#x}
        s_mov_b32 s55, {f2u(L2E):#x}
        v_mov_b32 v34, 0xff800000
        s_mul_i32 s7, s3, {SCW}
        s_add_u32 s7, s7, {SC0}
        v_and_b32 v35, 60, v1
        v_add_u32 v35, s7, v35
        v_lshrrev_b32 v8, 4, v1
        v_lshlrev_b32 v8, 2, v8
        v_and_b32 v9, 3, v1
        v_add_u32 v8, v8, v9
        v_lshlrev_b32 v45, 5, v8""")
        for i in range(s.D0, NP):
            a(f's_waitcnt vmcnt({s.DP-1})')
            issue(i, i & 3)
        s.stamp(4)
        a('s_barrier')
        s.stamp(1)
        a(f"""ds_read_b128 v[46:49], v45 offset:{QP}
        ds_read_b128 v[50:53], v45 offset:{QP+16}
        ds_read_b128 v[54:57], v45 offset:{QP+512}
        ds_read_b128 v[58:61], v45 offset:{QP+512+16}
        ds_read_b128 v[24:27], v45 offset:{QP+1024}
        ds_read_b128 v[28:31], v45 offset:{QP+1024+16}
        ds_read_b128 v[8:11], v45 offset:{QP+1536}
        ds_read_b128 v[12:15], v45 offset:{QP+1536+16}
        s_waitcnt lgkmcnt(0)""")
        for e in range(8):
            a(f'v_add_f32 v{46+e}, v{46+e}, v{54+e}\nv_add_f32 v{24+e}, v{24+e}, v{8+e}')
        for e in range(8): a(f'v_add_f32 v{46+e}, v{46+e}, v{24+e}')
        for m in range(4): a(f'v_cvt_pk_bf16_f32 v{54+m}, v{46+2*m}, v{47+2*m}')
        for t in range(4):
            mk = 0x000f000f << (4*t)
            a(f's_mov_b32 s56, {mk:#x}\ns_mov_b32 s57, {mk:#x}')
            for m in range(4): a(f'v_cndmask_b32 v{8+4*t+m}, 0, v{54+m}, s[56:57]')
        a('s_nop 1')
        Dreg = lambda g: 24 + 4*(g & 1)
        def post1(g):
            d = Dreg(g)
            a(f"""s_nop 1
            v_cndmask_b32 v32, v{d}, v{d+1}, s[50:51]
            v_cndmask_b32 v33, v{d+2}, v{d+3}, s[50:51]
            v_cndmask_b32 v32, v32, v33, s[52:53]
            s_nop 1
            v_add_f32_dpp v32, v32, v32 quad_perm:[1,0,3,2] row_mask:0xf bank_mask:0xf
            s_nop 1
            v_add_f32_dpp v32, v32, v32 quad_perm:[2,3,0,1] row_mask:0xf bank_mask:0xf""")
        def post2(off):
            a(f"""v_cvt_pk_bf16_f32 v32, v32, v32
            v_lshlrev_b32 v32, 16, v32
            v_mul_f32 v32, s54, v32
            v_cvt_pk_bf16_f32 v32, v32, v32
            v_lshlrev_b32 v32, 16, v32
            v_max_f32 v34, v34, v32
            ds_write_b32 v35, v32 offset:{off}""")
        def kcons(p, gi, t, tight=False):
            d = Dreg(gi)
            c = '0' if t == 0 else f'v[{d}:{d+3}]'
            a(f'v_mfma_f32_16x16x32_bf16 v[{d}:{d+3}], {slot(p)}, v[{8+4*t}:{11+4*t}], {c}')
        nis = 0
        per = max(1, (NP - 1) // 15)
        for i in range(NP):
            gi, t = i >> 2, i & 3
            need = (NP + nis - 1) - i
            if i >= NP - s.DP: a(f's_waitcnt vmcnt({min(need, 63)})')
            kcons(i, gi, t)
            if gi > 0 and t == 2: a('s_nop 3'); post1(gi - 1)
            if gi > 0 and t == 3: post2((gi - 1) * 64)
            if nis < 15 and i >= nis and (i + 1) % per == 0:
                a(f's_waitcnt vmcnt({D-1})')
                issue(nis, nis & 3); nis += 1
        assert nis == 15, nis
        g0 = NP // 4
        a(f'v_add_u32 v35, {(g0-1)*64}, v35')
        nk = (256 - NP) // R
        a('s_mov_b32 s45, 0\ns_nop 0')
        if s.CT: a(f's_add_u32 s70, s70, {s.C0}\ns_mov_b64 vcc, 0')
        a('L_kloop:')
        ctl_head()
        for st in range(R):
            gi, t = st >> 2, st & 3
            pace(D)
            issue((st - 1) % R, (st - 1) & 3)
            if st == 0:
                a(f"""s_cmp_lg_u32 s45, {nk-1}
                s_cbranch_scc1 L_nosw
                s_mov_b32 s40, s48
                s_mov_b32 s41, s49
                s_lshl_b32 s44, s3, 12
                v_mov_b32 v2, v3
                L_nosw:""")
            kcons(st, gi, t)
            if t == 2: post1(gi - 1)
            if t == 3: post2(gi * 64)
        ctl_tail()
        a(f"""v_add_u32 v35, {R*16}, v35
        s_add_u32 s45, s45, 1
        s_cmp_lt_u32 s45, {nk}
        s_cbranch_scc1 L_kloop
        s_nop 7""")
        post1(1); post2(0)
        a(f"""s_nop 1
        v_max_f32_dpp v34, v34, v34 row_ror:4 row_mask:0xf bank_mask:0xf
        s_nop 1
        v_max_f32_dpp v34, v34, v34 row_ror:8 row_mask:0xf bank_mask:0xf
        s_nop 1
        v_readlane_b32 s56, v34, 0
        v_readlane_b32 s57, v34, 16
        v_readlane_b32 s58, v34, 32
        v_readlane_b32 s59, v34, 48
        s_nop 0
        v_mov_b32 v34, s56
        v_max_f32 v34, s57, v34
        v_max_f32 v34, s58, v34
        v_max_f32 v34, s59, v34
        v_mul_f32 v41, s55, v34
        v_subrev_u32 v35, {63*64}, v35
        s_waitcnt lgkmcnt(0)
        ds_read_b32 v39, v35
        v_mov_b32 v36, 0
        v_mov_b32 v28, 0
        v_mov_b32 v29, 0
        v_mov_b32 v30, 0
        v_mov_b32 v31, 0""")
        s.stamp(2)
        def prep(g):
            a(f"""s_waitcnt lgkmcnt(0)
            v_fma_f32 v39, v39, s55, -v41
            v_exp_f32 v39, v39
            s_nop 0
            v_add_f32 v36, v36, v39
            v_cvt_pk_bf16_f32 v{37+(g&1)}, v39, v39""")
        prep(0)
        a('s_nop 0')
        def vstep(st, last, Dv):
            gi, t = st >> 2, st & 3
            if not last or st == 0:
                if last: a(f's_waitcnt vmcnt({Dv-1})')
                else: pace(Dv)
                issue((st - 1) % R, (st - 1) & 3)
            elif R - 1 - st < Dv:
                a(f's_waitcnt vmcnt({R-1-st})')
            fin = last and gi == R//4 - 1
            if t == 0 and not fin: a(f'ds_read_b32 v39, v35 offset:{(gi+1)*64}')
            for m in range(4):
                a(f'v_and_b32_dpp v{24+m}, v{37+(gi&1)}, v{4+m} row_newbcast:{4*t} row_mask:0xf bank_mask:0xf')
            a('s_nop 1')
            a(f'v_mfma_f32_16x16x32_bf16 v[28:31], v[24:27], {slot(st)}, v[28:31]')
            if t == 2 and not fin: prep(gi + 1)
        def vloop(name, n, Dv):
            a(f's_mov_b32 s45, 0\n{name}:')
            ctl_head()
            for st in range(R): vstep(st, False, Dv)
            ctl_tail()
            a(f"""v_add_u32 v35, {R*16}, v35
            s_add_u32 s45, s45, 1
            s_cmp_lt_u32 s45, {n}
            s_cbranch_scc1 {name}""")
        vloop('L_vloop', 256//R - 1 - s.NE, D)
        if s.NE: vloop('L_vloop2', s.NE, s.DE)
        for st in range(R): vstep(st, True, max(s.DE, s.DH if s.CT else 0))
        a(f"""v_add_f32_dpp v36, v36, v36 row_ror:4 row_mask:0xf bank_mask:0xf
        v_and_b32 v8, 15, v1
        v_lshlrev_b32 v8, 5, v8
        v_add_f32_dpp v36, v36, v36 row_ror:8 row_mask:0xf bank_mask:0xf
        v_lshrrev_b32 v9, 4, v1
        v_lshl_add_u32 v8, v9, 4, v8
        v_readlane_b32 s56, v36, 0
        v_readlane_b32 s57, v36, 16
        v_readlane_b32 s58, v36, 32
        v_readlane_b32 s59, v36, 48
        s_lshl_b32 s7, s3, 9
        v_add_u32 v8, s7, v8
        v_mov_b32 v35, s56
        v_add_f32 v35, s57, v35
        v_add_f32 v35, s58, v35
        v_add_f32 v35, s59, v35
        s_lshl_b32 s7, s3, 3
        v_mov_b32 v9, s7
        s_mov_b32 exec_hi, 0
        ds_write_b128 v8, v[28:31] offset:{OP}
        s_mov_b64 exec, 1
        ds_write_b64 v9, v[34:35] offset:{ST}
        s_mov_b64 exec, -1
        s_waitcnt lgkmcnt(0)""")
        s.stamp(3)
        a('s_barrier')
        if s.dbgt:
            a('s_cmp_lg_u32 s3, 1\ns_cbranch_scc1 L_nodbg')
            s.dstamp(4); s.dstamp(2, True, 80); s.dstamp(5, False, 80); s.dstamp(6, True)
            a('L_nodbg:')
        s.ffn_wregs(streamer=True)
        a(f"""s_mul_i32 s7, s4, {32*2560}
        s_lshl_b32 s8, s5, 8
        s_add_u32 s7, s7, s8
        v_lshrrev_b32 v8, 4, v1
        v_mul_u32_u24 v8, 2560, v8
        v_and_b32 v9, 15, v1
        v_lshl_add_u32 v8, v9, 4, v8
        v_add_u32 v48, s7, v8""")
        for i in range(1, 8): a(f'v_add_u32 v{48+i}, 10240, v{47+i}')
        a(f"""v_add_u32 v44, {WS_H}, v44
        s_barrier
        s_cmp_lg_u32 s3, 0
        s_cbranch_scc1 L_tail
        s_cmp_ge_u32 s5, 10
        s_cbranch_scc1 L_tail""")
        s.stamp(8)
        s.poll([f'global_load_dwordx4 v[{160+4*i}:{163+4*i}], v{48+i}, s[38:39] sc1' for i in range(8)], list(range(160, 192)), 32)
        s.stamp(9)
        for r in range(16): a(f'v_add_f32 v{192+r}, v{160+r}, v{176+r}')
        for step in (8, 4):
            for r in range(step): a(f'v_add_f32 v{192+r}, v{192+r}, v{192+step+r}')
        for sw in ('v_permlane16_swap_b32', 'v_permlane32_swap_b32'):
            for r in range(4): a(f'v_mov_b32 v{196+r}, v{192+r}')
            for r in range(4): a(f'{sw} v{192+r}, v{196+r}')
            for r in range(4): a(f'v_add_f32 v{192+r}, v{192+r}, v{196+r}')
        a("""v_cvt_pk_bf16_f32 v24, v192, v193
        v_cvt_pk_bf16_f32 v26, v194, v195
        v_lshlrev_b32 v28, 16, v24
        v_and_b32 v29, 0xffff0000, v24
        v_lshlrev_b32 v30, 16, v26
        v_and_b32 v31, 0xffff0000, v26
        v_lshlrev_b32 v24, 16, v42
        v_and_b32 v25, 0xffff0000, v42
        v_lshlrev_b32 v26, 16, v43
        v_and_b32 v27, 0xffff0000, v43
        v_add_f32 v24, v24, v28
        v_add_f32 v25, v25, v29
        v_add_f32 v26, v26, v30
        v_add_f32 v27, v27, v31
        v_cvt_pk_bf16_f32 v24, v24, v25
        v_cvt_pk_bf16_f32 v25, v26, v27
        v_min_u32 v24, -2, v24
        v_min_u32 v25, -2, v25
        s_mov_b64 exec, 0xffff
        global_store_dwordx2 v44, v[24:25], s[38:39] sc1
        s_mov_b64 exec, -1""")
        s.stamp(5)
        a('s_branch L_tail')

    def ffn_wregs(s, streamer):
        a = s.a
        la = s.lab('wa'); ld = s.lab('wd')
        a(f"""v_lshrrev_b32 v46, 4, v1
        v_lshlrev_b32 v46, 8, v46
        v_bfe_u32 v47, v1, 2, 2
        v_lshl_add_u32 v46, v47, 5, v46
        v_and_b32 v47, 3, v1
        v_lshl_add_u32 v46, v47, 3, v46
        v_add_u32 v46, {IMG}, v46
        s_cmp_lt_u32 s2, 216
        s_cbranch_scc1 {la}
        s_lshl_b32 s7, s3, 10
        v_add_u32 v46, s7, v46""")
        for i in range(7):
            a(f'ds_read_b64_tr_b16 v[{64+4*i}:{65+4*i}], v46 offset:{i*8192}')
            a(f'ds_read_b64_tr_b16 v[{66+4*i}:{67+4*i}], v46 offset:{i*8192+128}')
        a(f's_branch {ld}\n{la}:')
        if streamer:
            a(f's_cmp_lg_u32 s3, 3\ns_cbranch_scc1 {ld}')
            for m in range(20):
                a(f'ds_read_b64_tr_b16 v[{64+4*m}:{65+4*m}], v46 offset:{m*1024}')
                a(f'ds_read_b64_tr_b16 v[{66+4*m}:{67+4*m}], v46 offset:{m*1024+128}')
        a(f'{ld}:')

    def helper(s):
        a = s.a; W0 = 96; s.sv = 92
        wreg = lambda i: f'v[{W0+4*i}:{W0+4*i+3}]'
        a('L_helper:')
        s.stamp_reg(68)
        a(f"""
        s_sub_u32 s9, s3, 4
        v_lshrrev_b32 v2, 4, v1
        v_mul_u32_u24 v2, 40, v2
        s_mul_i32 s7, s9, 160
        v_add_u32 v3, s7, v2
        v_lshlrev_b32 v2, 13, v3
        v_and_b32 v8, 15, v1
        v_lshl_add_u32 v2, v8, 4, v2
        v_lshlrev_b32 v3, 3, v3
        s_mul_i32 s49, s4, 5
        s_lshr_b32 s49, s49, 2
        s_lshl_b32 s49, s49, {4 if s.rot else 31}
        {'' if s.rot else 's_mov_b32 s49, 0'}
        v_add_u32 v3, s49, v3
        v_lshlrev_b32 v8, 4, v1
        v_lshlrev_b32 v9, 2, v1
        s_mul_i32 s7, s4, 1280
        s_lshl_b32 s8, s5, 8
        s_mov_b32 s47, 0x20000
        s_sub_u32 s46, 5242880, s8
        s_lshl_b32 s48, s49, 11
        s_waitcnt lgkmcnt(0)
        s_add_u32 s10, s16, s7
        s_addc_u32 s11, s17, 0
        s_add_u32 s44, s22, s8
        s_addc_u32 s45, s23, 0
        global_load_dwordx4 v[12:15], v8, s[10:11]
        global_load_dword v16, v9, s[10:11] offset:1024""")
        def wq_issue(i):
            a(f'buffer_load_dwordx4 {wreg(i)}, v2, s[44:47], s48 offen {s.wpol}')
            if i < 39:
                a('s_add_u32 s48, s48, 8192')
                if s.rot and (i & 3) == 3: a(f's_cmp_eq_u32 s48, {40*8192}\ns_cselect_b32 s48, 0, s48')
        N0 = s.N0
        for i in range(N0): wq_issue(i)
        s.stamp_reg(70)
        a('v_mov_b32 v26, v8\nv_mov_b32 v27, v9')
        s.masks()
        a(f's_waitcnt vmcnt({N0})')
        s.stamp_reg(72)
        s.layernorm(12, 28, 40, True)
        s.stamp_reg(74)
        a(f"""v_mul_u32_u24 v8, 52429, v1
        v_lshrrev_b32 v8, 18, v8
        v_mul_u32_u24 v8, 160, v8
        v_lshl_add_u32 v8, v1, 5, v8
        v_add_u32 v9, 256, v1
        v_mul_u32_u24 v10, 52429, v9
        v_lshrrev_b32 v10, 20, v10
        v_mul_u32_u24 v10, 160, v10
        v_lshl_add_u32 v9, v9, 3, v10
        ds_write_b128 v8, v[28:31] offset:{XD}
        ds_write_b128 v8, v[32:35] offset:{XD+16}
        ds_write_b64 v9, v[36:37] offset:{XD}
        ds_write_b128 v8, v[28:31] offset:{XD+160}
        ds_write_b128 v8, v[32:35] offset:{XD+176}
        ds_write_b64 v9, v[36:37] offset:{XD+160}
        s_waitcnt lgkmcnt(0)""")
        for i in range(10): a(f'ds_read_b128 v[{48+4*i}:{51+4*i}], v3 offset:{XD+16*i}')
        nis = N0
        for i in range(40):
            for _ in range(s.WB + (i == 0)):
                if nis < 40: wq_issue(nis); nis += 1
            if i == 0: a('s_waitcnt lgkmcnt(0)')
            ar = 28 + 4*(i & 1)
            for m in range(4): a(f'v_and_b32 v{ar+m}, v{48+i}, v{4+m}')
            a(f's_waitcnt vmcnt({nis-1-i})')
            if i == 0: s.stamp_reg(76)
            if i == 20: s.stamp_reg(78)
            a('s_nop 0')
            a(f'v_mfma_f32_16x16x32_bf16 v[20:23], v[{ar}:{ar+3}], {wreg(i)}, ' + ('0' if i == 0 else 'v[20:23]'))
        a(f"""v_and_b32 v8, 15, v1
        v_lshlrev_b32 v8, 5, v8
        v_lshrrev_b32 v9, 4, v1
        v_lshl_add_u32 v17, v9, 4, v8
        s_lshl_b32 s7, s9, 9
        v_add_u32 v8, s7, v17
        s_nop 3
        s_mov_b32 exec_hi, 0
        ds_write_b128 v8, v[20:23] offset:{QP}
        s_mov_b64 exec, -1
        s_waitcnt vmcnt(0) lgkmcnt(0)""")
        s.stamp(1)
        for i, r in enumerate((68, 70, 72, 74, 76, 78)): s.stamp((0,12,13,14,15,11)[i], r)
        a('s_barrier')
        a(f"""v_mov_b32 v20, -1
        v_mov_b32 v21, -1
        v_mov_b32 v22, -1
        v_mov_b32 v23, -1
        s_and_b32 s12, s2, 7
        s_lshr_b32 s13, s2, 3
        s_mul_i32 s14, s12, 27
        s_add_u32 s14, s14, s13
        s_mul_i32 s15, s12, 5
        s_add_u32 s15, s15, s13
        s_sub_u32 s15, s15, 27
        s_mul_i32 s7, s65, 2560
        v_add_u32 v24, s7, v26
        s_lshl_b32 s8, s9, 10
        v_add_u32 v45, s8, v24
        s_cmp_lg_u32 s9, 3
        s_cbranch_scc1 L_clrd
        global_store_dwordx4 v24, v[20:23], s[38:39] sc1
        global_store_dwordx4 v24, v[20:23], s[38:39] offset:1024 sc1
        global_store_dwordx4 v24, v[20:23], s[38:39] offset:1536 sc1
        s_mul_i32 s7, s4, 1280
        s_lshl_b32 s8, s5, 7
        s_add_u32 s7, s7, s8
        s_add_u32 s7, s7, {WS_H}
        v_add_u32 v24, s7, v27
        s_lshl_b32 s7, s14, 7
        s_add_u32 s7, s7, {WS_ACT - 128}
        v_add_u32 v25, s7, v27
        v_cmp_lt_u32 vcc, 31, v1
        s_nop 1
        v_cndmask_b32 v24, v24, v25, vcc
        s_cmp_lt_u32 s5, 10
        s_cselect_b32 exec_lo, -1, 0
        s_cmp_lt_u32 s2, 216
        s_cselect_b32 exec_hi, -1, 0
        s_cbranch_execz L_clrd
        global_store_dword v24, v20, s[38:39] sc1
        L_clrd:
        s_mov_b64 exec, -1""")
        a(f"""s_lshl_b32 s7, s9, 6
        v_add_u32 v18, s7, v1
        {'s_branch L_stD' if s.noffn else ''}
        s_cmp_lt_u32 s2, 216
        s_cbranch_scc0 L_stB
        s_mov_b32 s7, 3456
        v_mul_lo_u32 v8, v18, s7
        s_lshl_b32 s8, s14, 4
        s_add_u32 s44, s28, s8
        s_addc_u32 s45, s29, 0
        s_sub_u32 s46, 2211840, s8
        s_add_u32 s40, s30, s8
        s_addc_u32 s41, s31, 0
        s_mov_b32 s42, s46
        s_mov_b32 s43, 0x20000
        s_mov_b32 s48, {256*3456}
        s_mov_b32 s49, {512*3456}""")
        def split_load(txt, lanes):
            for q in range(64 // lanes):
                m = ((1 << lanes) - 1) << (q * lanes)
                if lanes < 64: a(f's_mov_b32 exec_lo, {m & 0xffffffff:#x}\ns_mov_b32 exec_hi, {m >> 32:#x}')
                a(txt)
                a('s_waitcnt vmcnt(0)')
            a('s_mov_b64 exec, -1')
        a(f'v_lshlrev_b32 v9, 5, v18\nv_add_u32 v9, {IMG}, v9')
        for i, so in enumerate(('0', 's48', 's49')):
            if i == 2: a('s_cmp_ge_u32 s9, 2\ns_cbranch_scc1 L_stD')
            split_load(f'buffer_load_dwordx4 v[48:51], v8, s[44:47], {so} offen {s.fpol}', s.FQ)
            split_load(f'buffer_load_dwordx4 v[52:55], v8, s[40:43], {so} offen {s.fpol}', s.FQ)
            for q in range(4):
                a(f'ds_write2_b32 v9, v{48+q}, v{52+q} offset0:{2*q} offset1:{2*q+1}')
            a('s_waitcnt lgkmcnt(0)')
            if i < 2: a('v_add_u32 v9, 8192, v9')
        a(f"""s_branch L_stD
        L_stB:
        v_lshrrev_b32 v8, 1, v18
        v_mul_u32_u24 v8, 1280, v8
        v_and_b32 v9, 1, v18
        v_lshl_add_u32 v8, v9, 4, v8
        s_lshl_b32 s8, s15, 5
        s_add_u32 s44, s32, s8
        s_addc_u32 s45, s33, 0
        s_sub_u32 s46, 2211840, s8
        s_mov_b32 s48, 0
        v_lshlrev_b32 v9, 4, v18
        v_add_u32 v9, {IMG}, v9""")
        for i in range(14):
            split_load(f'buffer_load_dwordx4 v[48:51], v8, s[44:47], s48 offen {s.fpol}', min(64, 2*s.FQ))
            a(f's_add_u32 s48, s48, {128*1280}')
            a(f'ds_write_b128 v9, v[48:51] offset:{i*4096}')
            a('s_waitcnt lgkmcnt(0)')
        a('L_stD:')
        a(f"""v_lshrrev_b32 v8, 4, v1
        v_lshlrev_b32 v8, 3, v8
        s_lshl_b32 s7, s9, 5
        v_add_u32 v19, s7, v8
        v_mul_u32_u24 v8, 1280, v19
        v_and_b32 v9, 15, v1
        v_lshl_add_u32 v8, v9, 4, v8
        s_mul_i32 s8, s5, {128*1280}
        s_add_u32 s44, s24, s8
        s_addc_u32 s45, s25, 0
        s_mov_b32 s46, {128*1280}
        s_mov_b32 s48, 3840
        s_mov_b32 s49, 7680""")
        for i in range(8):
            for n in range(5):
                so = ('0', 's48', 's49')[i // 3]; off = (i % 3)*1280 + n*256
                if s.nowo: continue
                a(f's_waitcnt vmcnt({s.HP-1})')
                a(f'buffer_load_dwordx4 {wreg(i*5+n)}, v8, s[44:47], {so} offen offset:{off} {s.wpol}')
        s.stamp(2)
        a(f"""v_lshlrev_b32 v44, 4, v18
        v_lshlrev_b32 v19, 2, v19
        s_mul_i32 s7, s9, 2560
        v_add_u32 v17, s7, v17
        v_mov_b32 v16, 0
        s_mov_b32 s55, {f2u(L2E):#x}""")
        a(f"""s_waitcnt vmcnt(0)
        s_cmp_lg_u32 s9, 3
        s_cbranch_scc1 L_cntd
        s_mov_b64 exec, 1
        v_mov_b32 v9, 1
        global_atomic_add v16, v9, s[36:37] sc1
        s_mov_b32 s64, {s.spin}
        L_cnt:
        s_sleep 127
        global_load_dword v8, v16, s[36:37] sc1
        s_waitcnt vmcnt(0)
        v_readfirstlane_b32 s7, v8
        s_cmp_ge_u32 s7, 256
        s_cbranch_scc1 L_cntd
        s_sub_u32 s64, s64, 1
        s_cbranch_scc0 L_cnt
        L_cntd:
        s_mov_b64 exec, -1
        s_waitcnt lgkmcnt(0)
        s_barrier""")
        s.stamp(3)
        a(f'ds_read_b128 v[8:11], v16 offset:{ST}\nds_read_b128 v[12:15], v16 offset:{ST+16}')
        for w in range(4):
            a(f'ds_read_b128 v[{48+8*w}:{51+8*w}], v19 offset:{OP+w*512}')
            a(f'ds_read_b128 v[{52+8*w}:{55+8*w}], v19 offset:{OP+w*512+16}')
        a("""s_waitcnt lgkmcnt(8)
        v_max_f32 v20, v8, v10
        v_max3_f32 v20, v20, v12, v14
        v_sub_f32 v8, v8, v20
        v_sub_f32 v10, v10, v20
        v_sub_f32 v12, v12, v20
        v_sub_f32 v14, v14, v20
        v_mul_f32 v8, s55, v8
        v_mul_f32 v10, s55, v10
        v_mul_f32 v12, s55, v12
        v_mul_f32 v14, s55, v14
        v_exp_f32 v8, v8
        v_exp_f32 v10, v10
        v_exp_f32 v12, v12
        v_exp_f32 v14, v14
        v_mul_f32 v20, v8, v9
        v_fmac_f32 v20, v10, v11
        v_fmac_f32 v20, v12, v13
        v_fmac_f32 v20, v14, v15
        v_rcp_f32 v20, v20
        s_waitcnt lgkmcnt(0)""")
        for e in range(8): a(f'v_mul_f32 v{48+e}, v8, v{48+e}')
        for w in range(1, 4):
            for e in range(8): a(f'v_fmac_f32 v{48+e}, v{8+2*w}, v{48+8*w+e}')
        for e in range(8): a(f'v_mul_f32 v{48+e}, v20, v{48+e}')
        for e in range(8): a(f'v_cvt_pk_bf16_f32 v{48+e}, v{48+e}, v{48+e}')
        for i in range(8):
            ar = 28 + 4*(i & 1)
            for m in range(4): a(f'v_and_b32 v{ar+m}, v{48+i}, v{4+m}')
            a('s_nop 1')
            for n in range(5):
                a(f'v_mfma_f32_16x16x32_bf16 v[{60+4*n}:{63+4*n}], v[{ar}:{ar+3}], {wreg(i*5+n)}, ' + ('0' if i == 0 else f'v[{60+4*n}:{63+4*n}]'))
        a('s_mov_b32 exec_hi, 0\ns_nop 3')
        for n in range(5): a(f'ds_write_b128 v17, v[{60+4*n}:{63+4*n}] offset:{WOP+n*512}')
        a("""s_mov_b64 exec, -1
        s_waitcnt lgkmcnt(0)
        s_barrier
        s_cmp_eq_u32 s9, 3
        s_cbranch_scc1 L_pubd""")
        for w in range(4): a(f'ds_read_b128 v[{48+4*w}:{51+4*w}], v44 offset:{WOP+w*2560}')
        a('s_waitcnt lgkmcnt(0)')
        for e in range(4): a(f'v_add_f32 v{48+e}, v{48+e}, v{52+e}\nv_add_f32 v{56+e}, v{56+e}, v{60+e}')
        for e in range(4): a(f'v_add_f32 v{48+e}, v{48+e}, v{56+e}')
        for e in range(4): a(f'v_min_u32 v{48+e}, -2, v{48+e}')
        a("""s_cmp_eq_u32 s9, 2
        s_cselect_b32 exec_hi, 0, -1
        global_store_dwordx4 v45, v[48:51], s[38:39] sc1
        s_mov_b64 exec, -1""")
        s.stamp(4)
        a('L_pubd:')
        s.ffn_wregs(streamer=False)

    def tail(s):
        a = s.a; s.sv = 60
        a(f"""L_tail:
        s_and_b32 s12, s2, 7
        s_lshr_b32 s13, s2, 3
        s_cmp_lt_u32 s2, 216
        s_cbranch_scc0 L_tailB
        s_mul_i32 s14, s12, 27
        s_add_u32 s14, s14, s13
        s_mul_i32 s7, s3, 1280
        s_add_u32 s7, s7, {WS_H}
        v_lshl_add_u32 v8, v1, 4, s7
        v_lshl_add_u32 v9, v1, 2, s7
        s_barrier""")
        s.poll(['global_load_dwordx4 v[12:15], v8, s[38:39] sc1', 'global_load_dword v16, v9, s[38:39] offset:1024 sc1'],
               [12, 13, 14, 15, 16], 17)
        s.stamp(6)
        s.layernorm(12, 28, 40, False, o=20, fast=s.fastln)
        s.stamp(10)
        a(f"""s_mul_i32 s7, s3, {XN2S}
        v_lshl_add_u32 v8, v1, 4, s7
        v_lshl_add_u32 v9, v1, 2, s7
        ds_write_b128 v8, v[20:23] offset:{XN2}
        ds_write_b32 v9, v24 offset:{XN2+1024}
        v_and_b32 v10, 7, v1
        v_mul_u32_u24 v11, {XN2S}, v10
        v_lshrrev_b32 v17, 4, v1
        v_lshl_add_u32 v11, v17, 4, v11
        s_waitcnt lgkmcnt(0)
        s_barrier
        s_cmp_lg_u32 s3, 3
        s_cbranch_scc1 L_end""")
        for m in range(20): a(f'ds_read_b128 v[{144+4*m}:{147+4*m}], v11 offset:{XN2+m*64}')
        a(f"""v_lshlrev_b32 v10, 4, v10
        v_lshl_add_u32 v10, v17, 2, v10
        s_lshl_b32 s7, s14, 7
        s_add_u32 s7, s7, {WS_ACT}
        v_add_u32 v10, s7, v10
        s_mov_b32 s55, {f2u(-L2E):#x}""")
        for m in range(20):
            a(f's_waitcnt lgkmcnt({min(15, 19-m)})')
            a(f'v_mfma_f32_16x16x32_bf16 v[20:23], v[{64+4*m}:{67+4*m}], v[{144+4*m}:{147+4*m}], ' + ('0' if m == 0 else 'v[20:23]'))
        a("""s_nop 7
        v_cvt_pk_bf16_f32 v20, v20, v21
        v_cvt_pk_bf16_f32 v22, v22, v23
        v_lshlrev_b32 v24, 16, v20
        v_and_b32 v25, 0xffff0000, v20
        v_mul_f32 v26, s55, v24
        v_mul_f32 v27, s55, v25
        v_exp_f32 v26, v26
        v_exp_f32 v27, v27
        v_lshlrev_b32 v28, 16, v22
        v_add_f32 v26, 1.0, v26
        v_add_f32 v27, 1.0, v27
        v_rcp_f32 v26, v26
        v_rcp_f32 v27, v27
        v_and_b32 v29, 0xffff0000, v22
        v_mul_f32 v24, v24, v26
        v_mul_f32 v25, v25, v27
        v_cvt_pk_bf16_f32 v24, v24, v25
        v_lshlrev_b32 v26, 16, v24
        v_and_b32 v27, 0xffff0000, v24
        v_mul_f32 v26, v26, v28
        v_mul_f32 v27, v27, v29
        v_cvt_pk_bf16_f32 v26, v26, v27
        v_min_u32 v26, -2, v26
        s_mov_b32 exec_lo, 0x00ff00ff
        s_mov_b32 exec_hi, 0x00ff00ff
        global_store_dword v10, v26, s[38:39] sc1""")
        s.stamp(7)
        a('s_endpgm')
        a(f"""L_tailB:
        s_mul_i32 s15, s12, 5
        s_add_u32 s15, s15, s13
        s_sub_u32 s15, s15, 27
        v_and_b32 v10, 7, v1
        v_lshrrev_b32 v17, 4, v1
        v_lshlrev_b32 v8, 4, v10
        v_lshl_add_u32 v8, v17, 7, v8
        s_lshl_b32 s7, s3, 9
        s_add_u32 s7, s7, {WS_ACT}
        v_add_u32 v8, s7, v8
        v_add_u32 v9, 0x2000, v8
        v_add_u32 v11, 0x4000, v8
        s_movk_i32 s8, 0x5000
        s_cmp_lt_u32 s3, 6
        s_cselect_b32 s8, 0x6000, s8
        v_add_u32 v12, s8, v8
        v_mul_u32_u24 v13, 1280, v10
        v_lshl_add_u32 v13, v17, 3, v13
        s_lshl_b32 s7, s15, 5
        v_add_u32 v13, s7, v13
        v_add_u32 v14, {WS_H}, v13
        s_barrier
        s_cmp_lg_u32 s3, 3
        s_cbranch_scc1 L_noh""")
        s.poll(['global_load_dwordx2 v[18:19], v14, s[38:39] sc1'], [18, 19], 15)
        a('L_noh:')
        lds = []
        for i in range(7):
            base = (8, 8, 9, 9, 11, 11, 12)[i]; off = 0
            if i < 6 and (i & 1): off = 4096
            lds.append((base, off))
        loads = []
        for i, (base, off) in enumerate(lds):
            if off == 4096:
                loads.append(f'global_load_dwordx4 v[{96+4*i}:{99+4*i}], v{base}, s[66:67] sc1')
            else:
                loads.append(f'global_load_dwordx4 v[{96+4*i}:{99+4*i}], v{base}, s[38:39] sc1')
        a('s_add_u32 s66, s38, 4096\ns_addc_u32 s67, s39, 0')
        s.poll(loads, list(range(96, 124)), 15)
        s.stamp(6)
        a('s_waitcnt lgkmcnt(0)')
        for i in range(7):
            a(f'v_mfma_f32_16x16x32_bf16 v[20:23], v[{64+4*i}:{67+4*i}], v[{96+4*i}:{99+4*i}], ' + ('0' if i == 0 else 'v[20:23]'))
        a(f"""v_lshlrev_b32 v8, 6, v10
        v_lshl_add_u32 v8, v17, 4, v8
        s_lshl_b32 s7, s3, 9
        v_add_u32 v9, s7, v8
        s_mov_b32 exec_lo, 0x00ff00ff
        s_mov_b32 exec_hi, 0x00ff00ff
        s_nop 2
        ds_write_b128 v9, v[20:23] offset:{BP}
        s_waitcnt lgkmcnt(0)
        s_barrier
        s_cmp_lg_u32 s3, 3
        s_cbranch_scc1 L_end""")
        for w in range(8): a(f'ds_read_b128 v[{24+4*w}:{27+4*w}], v8 offset:{BP+w*512}')
        a('s_waitcnt lgkmcnt(0)')
        for step in (16, 8, 4):
            for r in range(step): a(f'v_add_f32 v{24+r}, v{24+r}, v{24+step+r}')
        a("""v_cvt_pk_bf16_f32 v24, v24, v25
        v_cvt_pk_bf16_f32 v26, v26, v27
        v_lshlrev_b32 v28, 16, v24
        v_and_b32 v29, 0xffff0000, v24
        v_lshlrev_b32 v30, 16, v26
        v_and_b32 v31, 0xffff0000, v26
        v_lshlrev_b32 v24, 16, v18
        v_and_b32 v25, 0xffff0000, v18
        v_lshlrev_b32 v26, 16, v19
        v_and_b32 v27, 0xffff0000, v19
        v_add_f32 v24, v24, v28
        v_add_f32 v25, v25, v29
        v_add_f32 v26, v26, v30
        v_add_f32 v27, v27, v31
        v_cvt_pk_bf16_f32 v24, v24, v25
        v_cvt_pk_bf16_f32 v25, v26, v27
        global_store_dwordx2 v13, v[24:25], s[34:35] """ + s.opol)
        s.dstamp(3)
        s.stamp(7)

    def text(s):
        s.gen()
        body = '\n'.join(s.L)
        k = NAME + '_kernel'
        return f"""{HEADER}; @launch grid=(256,1,1) block=(512,1,1) lds={LDS_BYTES}
.amdgcn_target "amdgcn-amd-amdhsa--gfx950"
.text
.globl {k}
.p2align 8
.type {k},@function
{k}:
{body}
.section .rodata,"a"
.p2align 6
.amdhsa_kernel {k}
  .amdhsa_next_free_vgpr 256
  .amdhsa_next_free_sgpr 102
  .amdhsa_accum_offset 256
  .amdhsa_group_segment_fixed_size 0
  .amdhsa_kernarg_size 96
  .amdhsa_user_sgpr_count 2
  .amdhsa_user_sgpr_kernarg_segment_ptr 1
  .amdhsa_system_sgpr_workgroup_id_x 1
  .amdhsa_float_denorm_mode_32 3
.end_amdhsa_kernel
"""

def parse_kw(args):
    kw = {}
    for x in args:
        k, v = x.split('=')
        try: v = int(v)
        except ValueError: v = v.replace('+', ' ').replace('-', '')
        kw[k] = v
    return kw

if __name__ == '__main__':
    out = sys.argv[1]
    open(out, 'w').write(G(**parse_kw(sys.argv[2:])).text())
```

```python
import sys, struct

NAME = 'sequential_preLN__mha_block_cached__swiglu_ffn__decode'

def f2u(x): return struct.unpack('<I', struct.pack('<f', x))[0]

HEADER = """; Kernarg layout for this problem (96 bytes, ptrs only, base s[0:1]):
"""

WS_P   = 0
WS_H   = 256*2560
WS_ACT = WS_H + 10240
WS_STAMP = 1 << 20

XD  = 0
QP  = 5120
OP  = 7168
ST  = 9216
SC0 = 9344
SCW = 64*64
WOP = SC0 + 4*SCW
XN2 = WOP + 10240
XN2S = 1296
BP  = XN2
IMG = XN2 + 8*XN2S
LDS_BYTES = IMG + 57344

L2E = 1.4426950408889634

class G:
    def __init__(s, D=6, D0=6, HP=2, kvpol='nt', wpol='', fpol='', stamps=False, spin=1<<14, psleep=0, tlbwarm=False, fastln=1, dbgt=0, PD=1, PS=3, CT=0, C0=0, DH=10, WB=1, opol='', DE=0, NE=4, FQ=16, NP=48, DP=6, N0=12, rot=0, hmap=0, nowo=0, noffn=0, klin=0):
        s.hmap=hmap; s.rot=rot; s.NP=NP; s.FQ=FQ; s.dbgt=dbgt; s.fastln=fastln; s.PD=PD; s.PS=PS; s.CT=CT; s.C0=C0; s.DH=DH; s.WB=WB; s.opol=opol; s.DE=DE or D; s.NE=NE if DE else 0; s.DP=DP; s.N0=N0; s.nowo=nowo; s.noffn=noffn; s.klin=klin; s.sv=60
        s.L = []; s.D = D; s.D0 = D0; s.HP = HP; s.kvpol = kvpol; s.wpol = wpol; s.fpol = fpol
        s.stamps = stamps; s.spin = spin; s.psleep = psleep; s.nl = 0; s.tlbwarm = tlbwarm
    def a(s, t):
        for line in t.strip('\n').split('\n'): s.L.append('    ' + line.strip() if not line.strip().endswith(':') else line.strip())
    def lab(s, p):
        s.nl += 1; return f'L_{p}_{s.nl}'
    def dreg(s, r):
        if s.dbgt: s.a(f's_memrealtime s[{r}:{r+1}]')
    def dstore(s, wg, idx, regs):
        if not s.dbgt: return
        l = s.lab('dbg')
        s.a(f's_cmp_lg_u32 s2, {wg}\ns_cbranch_scc1 {l}\ns_waitcnt lgkmcnt(0)\ns_mov_b64 s[94:95], exec\ns_mov_b64 exec, 1')
        for i, r in enumerate(regs):
            s.a(f'v_mov_b32 v{s.sv}, {(idx+i)*4}\nv_mov_b32 v{s.sv+1}, s{r}\nglobal_store_dword v{s.sv}, v{s.sv+1}, s[36:37]')
        s.a(f's_mov_b64 exec, s[94:95]\n{l}:')
    def stamp_reg(s, r):
        if s.stamps: s.a(f's_memrealtime s[{r}:{r+1}]')
    def stamp(s, idx, r=None):
        if not s.stamps: return
        s.a('s_memrealtime s[92:93]' if r is None else 's_nop 0')
        s.a('s_waitcnt lgkmcnt(0)')
        if r is not None: s.a(f's_mov_b32 s92, s{r}')
        s.a(f"""
        s_mov_b64 s[94:95], exec
        s_mov_b64 exec, 1
        s_lshl_b32 s93, s2, 3
        s_add_u32 s93, s93, s3
        s_lshl_b32 s93, s93, 6
        s_add_u32 s93, s93, {WS_STAMP + idx*4}
        v_mov_b32 v{s.sv}, s93
        v_mov_b32 v{s.sv+1}, s92
        global_store_dword v{s.sv}, v{s.sv+1}, s[38:39]
        s_mov_b64 exec, s[94:95]""")

    def wave_sum(s, v, sd):
        for c in ('row_ror:8', 'row_ror:4', 'row_ror:2', 'row_ror:1'):
            s.a(f's_nop 1\nv_add_f32_dpp v{v}, v{v}, v{v} {c} row_mask:0xf bank_mask:0xf')
        s.a(f's_nop 1\nv_add_f32_dpp v{v}, v{v}, v{v} row_bcast:15 row_mask:0xa bank_mask:0xf')
        s.a(f's_nop 1\nv_add_f32_dpp v{v}, v{v}, v{v} row_bcast:31 row_mask:0xc bank_mask:0xf')
        s.a(f's_nop 1\nv_readlane_b32 s{sd}, v{v}, 63')

    def layernorm(s, src, f, t, dup, o=None, fast=False):
        a = s.a
        if o is None: o = src
        for i in range(5):
            a(f'v_lshlrev_b32 v{f+2*i}, 16, v{src+i}\nv_and_b32 v{f+2*i+1}, 0xffff0000, v{src+i}')
        a(f's_mov_b32 s61, {f2u(1.0/640):#x}')
        if fast:
            a(f'v_readfirstlane_b32 s59, v{f}')
            a('s_nop 1')
            a(f'v_subrev_f32 v{t}, s59, v{f+1}\nv_mul_f32 v{t+2}, v{t}, v{t}')
            for i in [0] + list(range(2, 10)):
                a(f'v_subrev_f32 v{t+1}, s59, v{f+i}\nv_add_f32 v{t}, v{t}, v{t+1}\nv_fmac_f32 v{t+2}, v{t+1}, v{t+1}')
            for c in ('row_ror:8 row_mask:0xf', 'row_ror:4 row_mask:0xf', 'row_ror:2 row_mask:0xf', 'row_ror:1 row_mask:0xf',
                      'row_bcast:15 row_mask:0xa', 'row_bcast:31 row_mask:0xc'):
                a(f's_nop 0\nv_add_f32_dpp v{t}, v{t}, v{t} {c} bank_mask:0xf\nv_add_f32_dpp v{t+2}, v{t+2}, v{t+2} {c} bank_mask:0xf')
            a(f'v_readlane_b32 s60, v{t}, 63\nv_readlane_b32 s58, v{t+2}, 63\ns_nop 0')
            a(f'v_mov_b32 v{t}, s60\nv_mov_b32 v{t+2}, s58\nv_mul_f32 v{t}, s61, v{t}\nv_mul_f32 v{t+2}, s61, v{t+2}')
            a(f'v_fma_f32 v{t+2}, -v{t}, v{t}, v{t+2}\nv_add_f32 v{t}, s59, v{t}\nv_max_f32 v{t+2}, 0, v{t+2}')
            a(f'v_cvt_pk_bf16_f32 v{t}, v{t}, v{t+2}\nv_and_b32 v{t+2}, 0xffff0000, v{t}\nv_lshlrev_b32 v{t}, 16, v{t}')
        else:
            a(f'v_add_f32 v{t}, v{f}, v{f+1}')
            for i in range(2, 10): a(f'v_add_f32 v{t}, v{t}, v{f+i}')
            s.wave_sum(t, 60)
            a(f's_nop 1\nv_mov_b32 v{t}, s60\nv_mul_f32 v{t}, s61, v{t}')
            a(f'v_sub_f32 v{t+1}, v{f}, v{t}\nv_mul_f32 v{t+2}, v{t+1}, v{t+1}')
            for i in range(1, 10):
                a(f'v_sub_f32 v{t+1}, v{f+i}, v{t}\nv_fmac_f32 v{t+2}, v{t+1}, v{t+1}')
            s.wave_sum(t+2, 60)
            a(f'v_cvt_pk_bf16_f32 v{t}, v{t}, v{t}\nv_lshlrev_b32 v{t}, 16, v{t}')
            a(f'v_mov_b32 v{t+2}, s60\nv_mul_f32 v{t+2}, s61, v{t+2}')
            a(f'v_cvt_pk_bf16_f32 v{t+2}, v{t+2}, v{t+2}\nv_lshlrev_b32 v{t+2}, 16, v{t+2}')
        a(f'v_add_f32 v{t+2}, {f2u(1e-5):#x}, v{t+2}')
        a(f'v_cvt_pk_bf16_f32 v{t+2}, v{t+2}, v{t+2}\nv_lshlrev_b32 v{t+2}, 16, v{t+2}')
        a(f'v_sqrt_f32 v{t+2}, v{t+2}')
        for i in range(10): a(f'v_sub_f32 v{f+i}, v{f+i}, v{t}')
        a(f'v_cvt_pk_bf16_f32 v{t+2}, v{t+2}, v{t+2}\nv_lshlrev_b32 v{t+2}, 16, v{t+2}')
        a(f'v_rcp_f32 v{t+3}, v{t+2}')
        for i in range(5): a(f'v_cvt_pk_bf16_f32 v{o+i}, v{f+2*i}, v{f+2*i+1}')
        for i in range(5):
            a(f'v_lshlrev_b32 v{f+2*i}, 16, v{o+i}\nv_and_b32 v{f+2*i+1}, 0xffff0000, v{o+i}')
        for i in range(10):
            if fast: a(f'v_mul_f32 v{f+i}, v{f+i}, v{t+3}')
            else: a(f'v_mul_f32 v{t}, v{f+i}, v{t+3}\nv_fma_f32 v{t+1}, -v{t}, v{t+2}, v{f+i}\nv_fma_f32 v{f+i}, v{t+1}, v{t+3}, v{t}')
        if dup:
            for i in range(10): a(f'v_cvt_pk_bf16_f32 v{f+i}, v{f+i}, v{f+i}')
        else:
            for i in range(5): a(f'v_cvt_pk_bf16_f32 v{o+i}, v{f+2*i}, v{f+2*i+1}')

    def poll(s, loads, regs, t):
        a = s.a
        lp = s.lab('poll'); ld = s.lab('polld')
        a(f's_mov_b64 s[62:63], exec\ns_mov_b32 s64, {s.spin}')
        for _ in range(s.PD - 1):
            for l in loads: a(l)
            a(f's_sleep {s.PS}')
        a(f'{lp}:')
        for l in loads: a(l)
        a(f's_waitcnt vmcnt({(s.PD-1)*len(loads)})')
        r = list(regs)
        if len(r) == 2: a(f'v_max_u32 v{t}, v{r[0]}, v{r[1]}'); r = []
        else:
            a(f'v_max3_u32 v{t}, v{r[0]}, v{r[1]}, v{r[2]}'); r = r[3:]
        while len(r) >= 2:
            a(f'v_max3_u32 v{t}, v{t}, v{r[0]}, v{r[1]}'); r = r[2:]
        if r: a(f'v_max_u32 v{t}, v{t}, v{r[0]}')
        a(f'v_cmpx_eq_u32 vcc, -1, v{t}')
        a(f's_cbranch_execz {ld}')
        if s.psleep: a(f's_sleep {s.psleep}')
        a(f's_sub_u32 s64, s64, 1\ns_cbranch_scc0 {lp}')
        a(f'{ld}:')
        a('s_mov_b64 exec, s[62:63]\ns_nop 2')

    def gen(s):
        a = s.a; D = s.D
        s.stamp_reg(80)
        if s.dbgt: a('s_memrealtime s[80:81]')
        a(f"""s_cmp_ge_u32 s2, 256
        s_cbranch_scc1 L_end
        s_load_dwordx16 s[16:31], s[0:1], 0
        s_load_dwordx8 s[32:39], s[0:1], 64
        v_lshrrev_b32 v2, 6, v0
        v_and_b32 v1, 63, v0
        v_readfirstlane_b32 s3, v2
        s_lshr_b32 s4, s2, 5
        s_and_b32 s5, s2, 31""")
        if s.hmap:
            a("""s_and_b32 s5, s2, 7
            s_lshl_b32 s5, s5, 2
            s_bfe_u32 s6, s2, 0x20003
            s_add_u32 s5, s5, s6""")
        a("""s_lshl_b32 s65, s4, 5
        s_add_u32 s65, s65, s5
        s_cmp_ge_u32 s3, 4
        s_cbranch_scc1 L_helper""")
        s.streamer()
        s.helper()
        s.tail()
        a('L_end:\ns_endpgm')

    def masks(s):
        s.a("""v_and_b32 v8, 15, v1
        v_and_b32 v9, 1, v1
        v_lshlrev_b32 v9, 4, v9
        v_mov_b32 v10, 0xffff
        v_lshlrev_b32 v10, v9, v10
        v_lshrrev_b32 v11, 1, v8""")
        for m in range(4):
            s.a(f'v_cmp_eq_u32 vcc, {m}, v11\ns_nop 1\nv_cndmask_b32 v{4+m}, 0, v10, vcc')

    def streamer(s):
        a = s.a; D = s.D; R0 = 64; NP = s.NP; R = 16
        assert NP % 16 == 0
        phys = lambda i: i if i < NP else i % R
        slot = lambda p: f'v[{R0+4*p}:{R0+4*p+3}]'
        def issue(p, t):
            a(f'buffer_load_dwordx4 {slot(p)}, v2, s[40:43], s44 offen offset:{t*1024} {s.kvpol}')
            if t == 3: a('s_add_u32 s44, s44, 16384')
        def pace(Dv):
            if s.CT and Dv == D:
                l = s.lab('pw')
                a(f's_cbranch_vccnz {l}\ns_waitcnt vmcnt({Dv-1})\n{l}:\ns_waitcnt vmcnt({s.DH-1})')
            else: a(f's_waitcnt vmcnt({Dv-1})')
        def ctl_head():
            if s.CT: a('s_memrealtime s[68:69]')
        def ctl_tail():
            if s.CT: a(f's_waitcnt lgkmcnt(0)\ns_add_u32 s70, s70, {s.CT}\ns_sub_u32 s71, s70, s68\ns_ashr_i32 s71, s71, 31\ns_mov_b32 vcc_lo, s71\ns_mov_b32 vcc_hi, s71')
        if s.CT: a('s_memrealtime s[70:71]')
        a("""v_bfe_u32 v2, v1, 2, 2
        v_lshlrev_b32 v2, 8, v2
        v_lshrrev_b32 v3, 4, v1
        v_lshl_add_u32 v2, v3, 6, v2
        v_and_b32 v3, 3, v1
        v_lshl_add_u32 v2, v3, 4, v2
        v_lshlrev_b32 v3, 4, v1
        s_lshl_b32 s6, s65, 20
        s_lshl_b32 s44, s3, 12
        s_mov_b32 s42, 0x100000
        s_mov_b32 s43, 0x20000
        s_waitcnt lgkmcnt(0)
        s_add_u32 s40, s18, s6
        s_addc_u32 s41, s19, 0
        s_add_u32 s48, s20, s6
        s_addc_u32 s49, s21, 0""")
        s.stamp_reg(82)
        for i in range(s.D0): issue(i, i & 3)
        s.stamp(0)
        s.stamp(11, 80)
        s.stamp(12, 82)
        a("""v_and_b32 v8, 15, v1
        v_lshlrev_b32 v8, 3, v8
        s_min_u32 s8, s5, 9
        s_lshl_b32 s8, s8, 7
        s_mul_i32 s7, s4, 1280
        s_add_u32 s7, s7, s8
        v_add_u32 v44, s7, v8
        global_load_dwordx2 v[42:43], v44, s[16:17]""")
        if s.tlbwarm:
            a('global_load_dword v62, v3, s[48:49]')
        s.masks()
        a(f"""s_mov_b32 s50, 0xaaaaaaaa
        s_mov_b32 s51, 0xaaaaaaaa
        s_mov_b32 s52, 0xcccccccc
        s_mov_b32 s53, 0xcccccccc
        s_mov_b32 s54, {f2u(128**-0.5):#x}
        s_mov_b32 s55, {f2u(L2E):#x}
        v_mov_b32 v34, 0xff800000
        s_mul_i32 s7, s3, {SCW}
        s_add_u32 s7, s7, {SC0}
        v_and_b32 v35, 60, v1
        v_add_u32 v35, s7, v35
        v_lshrrev_b32 v8, 4, v1
        v_lshlrev_b32 v8, 2, v8
        v_and_b32 v9, 3, v1
        v_add_u32 v8, v8, v9
        v_lshlrev_b32 v45, 5, v8""")
        for i in range(s.D0, NP):
            a(f's_waitcnt vmcnt({s.DP-1})')
            issue(i, i & 3)
        s.stamp(4)
        a('s_barrier')
        s.stamp(1)
        s.dreg(84)
        a(f"""ds_read_b128 v[46:49], v45 offset:{QP}
        ds_read_b128 v[50:53], v45 offset:{QP+16}
        ds_read_b128 v[54:57], v45 offset:{QP+512}
        ds_read_b128 v[58:61], v45 offset:{QP+512+16}
        ds_read_b128 v[24:27], v45 offset:{QP+1024}
        ds_read_b128 v[28:31], v45 offset:{QP+1024+16}
        ds_read_b128 v[8:11], v45 offset:{QP+1536}
        ds_read_b128 v[12:15], v45 offset:{QP+1536+16}
        s_waitcnt lgkmcnt(0)""")
        for e in range(8):
            a(f'v_add_f32 v{46+e}, v{46+e}, v{54+e}\nv_add_f32 v{24+e}, v{24+e}, v{8+e}')
        for e in range(8): a(f'v_add_f32 v{46+e}, v{46+e}, v{24+e}')
        for m in range(4): a(f'v_cvt_pk_bf16_f32 v{54+m}, v{46+2*m}, v{47+2*m}')
        for t in range(4):
            mk = 0x000f000f << (4*t)
            a(f's_mov_b32 s56, {mk:#x}\ns_mov_b32 s57, {mk:#x}')
            for m in range(4): a(f'v_cndmask_b32 v{8+4*t+m}, 0, v{54+m}, s[56:57]')
        a('s_nop 1')
        Dreg = lambda g: 24 + 4*(g & 1)
        def post1(g):
            d = Dreg(g)
            a(f"""s_nop 1
            v_cndmask_b32 v32, v{d}, v{d+1}, s[50:51]
            v_cndmask_b32 v33, v{d+2}, v{d+3}, s[50:51]
            v_cndmask_b32 v32, v32, v33, s[52:53]
            s_nop 1
            v_add_f32_dpp v32, v32, v32 quad_perm:[1,0,3,2] row_mask:0xf bank_mask:0xf
            s_nop 1
            v_add_f32_dpp v32, v32, v32 quad_perm:[2,3,0,1] row_mask:0xf bank_mask:0xf""")
        def post2(off):
            a(f"""v_cvt_pk_bf16_f32 v32, v32, v32
            v_lshlrev_b32 v32, 16, v32
            v_mul_f32 v32, s54, v32
            v_cvt_pk_bf16_f32 v32, v32, v32
            v_lshlrev_b32 v32, 16, v32
            v_max_f32 v34, v34, v32
            ds_write_b32 v35, v32 offset:{off}""")
        def kcons(p, gi, t, tight=False):
            d = Dreg(gi)
            c = '0' if t == 0 else f'v[{d}:{d+3}]'
            a(f'v_mfma_f32_16x16x32_bf16 v[{d}:{d+3}], {slot(p)}, v[{8+4*t}:{11+4*t}], {c}')
        nis = 0
        per = max(1, (NP - 1) // 15)
        for i in range(NP):
            gi, t = i >> 2, i & 3
            need = (NP + nis - 1) - i
            if i >= NP - s.DP: a(f's_waitcnt vmcnt({min(need, 63)})')
            kcons(i, gi, t)
            if gi > 0 and t == 2: a('s_nop 3'); post1(gi - 1)
            if gi > 0 and t == 3: post2((gi - 1) * 64)
            if nis < 15 and i >= nis and (i + 1) % per == 0:
                a(f's_waitcnt vmcnt({D-1})')
                issue(nis, nis & 3); nis += 1
        assert nis == 15, nis
        g0 = NP // 4
        a(f'v_add_u32 v35, {(g0-1)*64}, v35')
        nk = (256 - NP) // R
        a('s_mov_b32 s45, 0\ns_nop 0')
        if s.CT: a(f's_add_u32 s70, s70, {s.C0}\ns_mov_b64 vcc, 0')
        a('L_kloop:')
        ctl_head()
        for st in range(R):
            gi, t = st >> 2, st & 3
            pace(D)
            issue((st - 1) % R, (st - 1) & 3)
            if st == 0:
                a(f"""s_cmp_lg_u32 s45, {nk-1}
                s_cbranch_scc1 L_nosw
                s_mov_b32 s40, s48
                s_mov_b32 s41, s49
                s_lshl_b32 s44, s3, 12
                v_mov_b32 v2, v3
                L_nosw:""")
            kcons(st, gi, t)
            if t == 2: post1(gi - 1)
            if t == 3: post2(gi * 64)
        ctl_tail()
        a(f"""v_add_u32 v35, {R*16}, v35
        s_add_u32 s45, s45, 1
        s_cmp_lt_u32 s45, {nk}
        s_cbranch_scc1 L_kloop
        s_nop 7""")
        post1(1); post2(0)
        a(f"""s_nop 1
        v_max_f32_dpp v34, v34, v34 row_ror:4 row_mask:0xf bank_mask:0xf
        s_nop 1
        v_max_f32_dpp v34, v34, v34 row_ror:8 row_mask:0xf bank_mask:0xf
        s_nop 1
        v_readlane_b32 s56, v34, 0
        v_readlane_b32 s57, v34, 16
        v_readlane_b32 s58, v34, 32
        v_readlane_b32 s59, v34, 48
        s_nop 0
        v_mov_b32 v34, s56
        v_max_f32 v34, s57, v34
        v_max_f32 v34, s58, v34
        v_max_f32 v34, s59, v34
        v_mul_f32 v41, s55, v34
        v_subrev_u32 v35, {63*64}, v35
        s_waitcnt lgkmcnt(0)
        ds_read_b32 v39, v35
        v_mov_b32 v36, 0
        v_mov_b32 v28, 0
        v_mov_b32 v29, 0
        v_mov_b32 v30, 0
        v_mov_b32 v31, 0""")
        s.stamp(2)
        s.dreg(86)
        def prep(g):
            a(f"""s_waitcnt lgkmcnt(0)
            v_fma_f32 v39, v39, s55, -v41
            v_exp_f32 v39, v39
            s_nop 0
            v_add_f32 v36, v36, v39
            v_cvt_pk_bf16_f32 v{37+(g&1)}, v39, v39""")
        prep(0)
        a('s_nop 0')
        def vstep(st, last, Dv):
            gi, t = st >> 2, st & 3
            if not last or st == 0:
                if last: a(f's_waitcnt vmcnt({Dv-1})')
                else: pace(Dv)
                issue((st - 1) % R, (st - 1) & 3)
            elif R - 1 - st < Dv:
                a(f's_waitcnt vmcnt({R-1-st})')
            fin = last and gi == R//4 - 1
            if t == 0 and not fin: a(f'ds_read_b32 v39, v35 offset:{(gi+1)*64}')
            for m in range(4):
                a(f'v_and_b32_dpp v{24+m}, v{37+(gi&1)}, v{4+m} row_newbcast:{4*t} row_mask:0xf bank_mask:0xf')
            a('s_nop 1')
            a(f'v_mfma_f32_16x16x32_bf16 v[28:31], v[24:27], {slot(st)}, v[28:31]')
            if t == 2 and not fin: prep(gi + 1)
        def vloop(name, n, Dv):
            a(f's_mov_b32 s45, 0\n{name}:')
            ctl_head()
            for st in range(R): vstep(st, False, Dv)
            ctl_tail()
            a(f"""v_add_u32 v35, {R*16}, v35
            s_add_u32 s45, s45, 1
            s_cmp_lt_u32 s45, {n}
            s_cbranch_scc1 {name}""")
        vloop('L_vloop', 256//R - 1 - s.NE, D)
        if s.NE: vloop('L_vloop2', s.NE, s.DE)
        for st in range(R): vstep(st, True, max(s.DE, s.DH if s.CT else 0))
        a(f"""v_add_f32_dpp v36, v36, v36 row_ror:4 row_mask:0xf bank_mask:0xf
        v_and_b32 v8, 15, v1
        v_lshlrev_b32 v8, 5, v8
        v_add_f32_dpp v36, v36, v36 row_ror:8 row_mask:0xf bank_mask:0xf
        v_lshrrev_b32 v9, 4, v1
        v_lshl_add_u32 v8, v9, 4, v8
        v_readlane_b32 s56, v36, 0
        v_readlane_b32 s57, v36, 16
        v_readlane_b32 s58, v36, 32
        v_readlane_b32 s59, v36, 48
        s_lshl_b32 s7, s3, 9
        v_add_u32 v8, s7, v8
        v_mov_b32 v35, s56
        v_add_f32 v35, s57, v35
        v_add_f32 v35, s58, v35
        v_add_f32 v35, s59, v35
        s_lshl_b32 s7, s3, 3
        v_mov_b32 v9, s7
        s_mov_b32 exec_hi, 0
        ds_write_b128 v8, v[28:31] offset:{OP}
        s_mov_b64 exec, 1
        ds_write_b64 v9, v[34:35] offset:{ST}
        s_mov_b64 exec, -1
        s_waitcnt lgkmcnt(0)""")
        s.stamp(3)
        s.dreg(88)
        a('s_barrier')
        if s.dbgt:
            a('s_cmp_lg_u32 s3, 1\ns_cbranch_scc1 L_nodbg')
            for n, wg in enumerate((8, 133, 206)): s.dstore(wg, 1+4*n, (80, 84, 86, 88))
            a('L_nodbg:')
        s.ffn_wregs(streamer=True)
        a(f"""s_mul_i32 s7, s4, {32*2560}
        s_lshl_b32 s8, s5, 8
        s_add_u32 s7, s7, s8
        v_lshrrev_b32 v8, 4, v1
        v_mul_u32_u24 v8, 2560, v8
        v_and_b32 v9, 15, v1
        v_lshl_add_u32 v8, v9, 4, v8
        v_add_u32 v48, s7, v8""")
        for i in range(1, 8): a(f'v_add_u32 v{48+i}, 10240, v{47+i}')
        a(f"""v_add_u32 v44, {WS_H}, v44
        s_barrier
        s_cmp_lg_u32 s3, 0
        s_cbranch_scc1 L_tail
        s_cmp_ge_u32 s5, 10
        s_cbranch_scc1 L_tail""")
        s.stamp(8)
        s.poll([f'global_load_dwordx4 v[{160+4*i}:{163+4*i}], v{48+i}, s[38:39] sc1' for i in range(8)], list(range(160, 192)), 32)
        s.stamp(9)
        for r in range(16): a(f'v_add_f32 v{192+r}, v{160+r}, v{176+r}')
        for step in (8, 4):
            for r in range(step): a(f'v_add_f32 v{192+r}, v{192+r}, v{192+step+r}')
        for sw in ('v_permlane16_swap_b32', 'v_permlane32_swap_b32'):
            for r in range(4): a(f'v_mov_b32 v{196+r}, v{192+r}')
            for r in range(4): a(f'{sw} v{192+r}, v{196+r}')
            for r in range(4): a(f'v_add_f32 v{192+r}, v{192+r}, v{196+r}')
        a("""v_cvt_pk_bf16_f32 v24, v192, v193
        v_cvt_pk_bf16_f32 v26, v194, v195
        v_lshlrev_b32 v28, 16, v24
        v_and_b32 v29, 0xffff0000, v24
        v_lshlrev_b32 v30, 16, v26
        v_and_b32 v31, 0xffff0000, v26
        v_lshlrev_b32 v24, 16, v42
        v_and_b32 v25, 0xffff0000, v42
        v_lshlrev_b32 v26, 16, v43
        v_and_b32 v27, 0xffff0000, v43
        v_add_f32 v24, v24, v28
        v_add_f32 v25, v25, v29
        v_add_f32 v26, v26, v30
        v_add_f32 v27, v27, v31
        v_cvt_pk_bf16_f32 v24, v24, v25
        v_cvt_pk_bf16_f32 v25, v26, v27
        v_min_u32 v24, -2, v24
        v_min_u32 v25, -2, v25
        s_mov_b64 exec, 0xffff
        global_store_dwordx2 v44, v[24:25], s[38:39] sc1
        s_mov_b64 exec, -1""")
        s.stamp(5)
        a('s_branch L_tail')

    def ffn_wregs(s, streamer):
        a = s.a
        la = s.lab('wa'); ld = s.lab('wd')
        a(f"""v_lshrrev_b32 v46, 4, v1
        v_lshlrev_b32 v46, 8, v46
        v_bfe_u32 v47, v1, 2, 2
        v_lshl_add_u32 v46, v47, 5, v46
        v_and_b32 v47, 3, v1
        v_lshl_add_u32 v46, v47, 3, v46
        v_add_u32 v46, {IMG}, v46
        s_cmp_lt_u32 s2, 216
        s_cbranch_scc1 {la}
        s_lshl_b32 s7, s3, 10
        v_add_u32 v46, s7, v46""")
        for i in range(7):
            a(f'ds_read_b64_tr_b16 v[{64+4*i}:{65+4*i}], v46 offset:{i*8192}')
            a(f'ds_read_b64_tr_b16 v[{66+4*i}:{67+4*i}], v46 offset:{i*8192+128}')
        a(f's_branch {ld}\n{la}:')
        if streamer:
            a(f's_cmp_lg_u32 s3, 3\ns_cbranch_scc1 {ld}')
            for m in range(20):
                a(f'ds_read_b64_tr_b16 v[{64+4*m}:{65+4*m}], v46 offset:{m*1024}')
                a(f'ds_read_b64_tr_b16 v[{66+4*m}:{67+4*m}], v46 offset:{m*1024+128}')
        a(f'{ld}:')

    def helper(s):
        a = s.a; W0 = 96; s.sv = 92
        wreg = lambda i: f'v[{W0+4*i}:{W0+4*i+3}]'
        a('L_helper:')
        s.stamp_reg(68)
        a(f"""
        s_sub_u32 s9, s3, 4
        v_lshrrev_b32 v2, 4, v1
        v_mul_u32_u24 v2, 40, v2
        s_mul_i32 s7, s9, 160
        v_add_u32 v3, s7, v2
        v_lshlrev_b32 v2, 13, v3
        v_and_b32 v8, 15, v1
        v_lshl_add_u32 v2, v8, 4, v2
        v_lshlrev_b32 v3, 3, v3
        s_mul_i32 s49, s4, 5
        s_lshr_b32 s49, s49, 2
        s_lshl_b32 s49, s49, {4 if s.rot else 31}
        {'' if s.rot else 's_mov_b32 s49, 0'}
        v_add_u32 v3, s49, v3
        v_lshlrev_b32 v8, 4, v1
        v_lshlrev_b32 v9, 2, v1
        s_mul_i32 s7, s4, 1280
        s_lshl_b32 s8, s5, 8
        s_mov_b32 s47, 0x20000
        s_sub_u32 s46, 5242880, s8
        s_lshl_b32 s48, s49, 11
        s_waitcnt lgkmcnt(0)
        s_add_u32 s10, s16, s7
        s_addc_u32 s11, s17, 0
        s_add_u32 s44, s22, s8
        s_addc_u32 s45, s23, 0
        global_load_dwordx4 v[12:15], v8, s[10:11]
        global_load_dword v16, v9, s[10:11] offset:1024""")
        def wq_issue(i):
            a(f'buffer_load_dwordx4 {wreg(i)}, v2, s[44:47], s48 offen {s.wpol}')
            if i < 39:
                a('s_add_u32 s48, s48, 8192')
                if s.rot and (i & 3) == 3: a(f's_cmp_eq_u32 s48, {40*8192}\ns_cselect_b32 s48, 0, s48')
        N0 = s.N0
        for i in range(N0): wq_issue(i)
        s.stamp_reg(70)
        a('v_mov_b32 v26, v8\nv_mov_b32 v27, v9')
        s.masks()
        a(f's_waitcnt vmcnt({N0})')
        s.stamp_reg(72)
        s.layernorm(12, 28, 40, True)
        s.stamp_reg(74)
        a(f"""v_mul_u32_u24 v8, 52429, v1
        v_lshrrev_b32 v8, 18, v8
        v_mul_u32_u24 v8, 160, v8
        v_lshl_add_u32 v8, v1, 5, v8
        v_add_u32 v9, 256, v1
        v_mul_u32_u24 v10, 52429, v9
        v_lshrrev_b32 v10, 20, v10
        v_mul_u32_u24 v10, 160, v10
        v_lshl_add_u32 v9, v9, 3, v10
        ds_write_b128 v8, v[28:31] offset:{XD}
        ds_write_b128 v8, v[32:35] offset:{XD+16}
        ds_write_b64 v9, v[36:37] offset:{XD}
        ds_write_b128 v8, v[28:31] offset:{XD+160}
        ds_write_b128 v8, v[32:35] offset:{XD+176}
        ds_write_b64 v9, v[36:37] offset:{XD+160}
        s_waitcnt lgkmcnt(0)""")
        for i in range(10): a(f'ds_read_b128 v[{48+4*i}:{51+4*i}], v3 offset:{XD+16*i}')
        nis = N0
        for i in range(40):
            for _ in range(s.WB + (i == 0)):
                if nis < 40: wq_issue(nis); nis += 1
            if i == 0: a('s_waitcnt lgkmcnt(0)')
            ar = 28 + 4*(i & 1)
            for m in range(4): a(f'v_and_b32 v{ar+m}, v{48+i}, v{4+m}')
            a(f's_waitcnt vmcnt({nis-1-i})')
            if i == 0: s.stamp_reg(76)
            if i == 20: s.stamp_reg(78)
            a('s_nop 0')
            a(f'v_mfma_f32_16x16x32_bf16 v[20:23], v[{ar}:{ar+3}], {wreg(i)}, ' + ('0' if i == 0 else 'v[20:23]'))
        a(f"""v_and_b32 v8, 15, v1
        v_lshlrev_b32 v8, 5, v8
        v_lshrrev_b32 v9, 4, v1
        v_lshl_add_u32 v17, v9, 4, v8
        s_lshl_b32 s7, s9, 9
        v_add_u32 v8, s7, v17
        s_nop 3
        s_mov_b32 exec_hi, 0
        ds_write_b128 v8, v[20:23] offset:{QP}
        s_mov_b64 exec, -1
        s_waitcnt vmcnt(0) lgkmcnt(0)""")
        s.stamp(1)
        for i, r in enumerate((68, 70, 72, 74, 76, 78)): s.stamp((0,12,13,14,15,11)[i], r)
        a('s_barrier')
        a(f"""v_mov_b32 v20, -1
        v_mov_b32 v21, -1
        v_mov_b32 v22, -1
        v_mov_b32 v23, -1
        s_and_b32 s12, s2, 7
        s_lshr_b32 s13, s2, 3
        s_mul_i32 s14, s12, 27
        s_add_u32 s14, s14, s13
        s_mul_i32 s15, s12, 5
        s_add_u32 s15, s15, s13
        s_sub_u32 s15, s15, 27
        s_mul_i32 s7, s65, 2560
        v_add_u32 v24, s7, v26
        s_lshl_b32 s8, s9, 10
        v_add_u32 v45, s8, v24
        s_cmp_lg_u32 s9, 3
        s_cbranch_scc1 L_clrd
        global_store_dwordx4 v24, v[20:23], s[38:39] sc1
        global_store_dwordx4 v24, v[20:23], s[38:39] offset:1024 sc1
        global_store_dwordx4 v24, v[20:23], s[38:39] offset:1536 sc1
        s_mul_i32 s7, s4, 1280
        s_lshl_b32 s8, s5, 7
        s_add_u32 s7, s7, s8
        s_add_u32 s7, s7, {WS_H}
        v_add_u32 v24, s7, v27
        s_lshl_b32 s7, s14, 7
        s_add_u32 s7, s7, {WS_ACT - 128}
        v_add_u32 v25, s7, v27
        v_cmp_lt_u32 vcc, 31, v1
        s_nop 1
        v_cndmask_b32 v24, v24, v25, vcc
        s_cmp_lt_u32 s5, 10
        s_cselect_b32 exec_lo, -1, 0
        s_cmp_lt_u32 s2, 216
        s_cselect_b32 exec_hi, -1, 0
        s_cbranch_execz L_clrd
        global_store_dword v24, v20, s[38:39] sc1
        L_clrd:
        s_mov_b64 exec, -1""")
        a(f"""s_lshl_b32 s7, s9, 6
        v_add_u32 v18, s7, v1
        {'s_branch L_stD' if s.noffn else ''}
        s_cmp_lt_u32 s2, 216
        s_cbranch_scc0 L_stB
        s_mov_b32 s7, 3456
        v_mul_lo_u32 v8, v18, s7
        s_lshl_b32 s8, s14, 4
        s_add_u32 s44, s28, s8
        s_addc_u32 s45, s29, 0
        s_sub_u32 s46, 2211840, s8
        s_add_u32 s40, s30, s8
        s_addc_u32 s41, s31, 0
        s_mov_b32 s42, s46
        s_mov_b32 s43, 0x20000
        s_mov_b32 s48, {256*3456}
        s_mov_b32 s49, {512*3456}""")
        def split_load(txt, lanes):
            for q in range(64 // lanes):
                m = ((1 << lanes) - 1) << (q * lanes)
                if lanes < 64: a(f's_mov_b32 exec_lo, {m & 0xffffffff:#x}\ns_mov_b32 exec_hi, {m >> 32:#x}')
                a(txt)
                a('s_waitcnt vmcnt(0)')
            a('s_mov_b64 exec, -1')
        a(f'v_lshlrev_b32 v9, 5, v18\nv_add_u32 v9, {IMG}, v9')
        for i, so in enumerate(('0', 's48', 's49')):
            if i == 2: a('s_cmp_ge_u32 s9, 2\ns_cbranch_scc1 L_stD')
            split_load(f'buffer_load_dwordx4 v[48:51], v8, s[44:47], {so} offen {s.fpol}', s.FQ)
            split_load(f'buffer_load_dwordx4 v[52:55], v8, s[40:43], {so} offen {s.fpol}', s.FQ)
            for q in range(4):
                a(f'ds_write2_b32 v9, v{48+q}, v{52+q} offset0:{2*q} offset1:{2*q+1}')
            a('s_waitcnt lgkmcnt(0)')
            if i < 2: a('v_add_u32 v9, 8192, v9')
        a(f"""s_branch L_stD
        L_stB:
        v_lshrrev_b32 v8, 1, v18
        v_mul_u32_u24 v8, 1280, v8
        v_and_b32 v9, 1, v18
        v_lshl_add_u32 v8, v9, 4, v8
        s_lshl_b32 s8, s15, 5
        s_add_u32 s44, s32, s8
        s_addc_u32 s45, s33, 0
        s_sub_u32 s46, 2211840, s8
        s_mov_b32 s48, 0
        v_lshlrev_b32 v9, 4, v18
        v_add_u32 v9, {IMG}, v9""")
        for i in range(14):
            split_load(f'buffer_load_dwordx4 v[48:51], v8, s[44:47], s48 offen {s.fpol}', min(64, 2*s.FQ))
            a(f's_add_u32 s48, s48, {128*1280}')
            a(f'ds_write_b128 v9, v[48:51] offset:{i*4096}')
            a('s_waitcnt lgkmcnt(0)')
        a('L_stD:')
        a(f"""v_lshrrev_b32 v8, 4, v1
        v_lshlrev_b32 v8, 3, v8
        s_lshl_b32 s7, s9, 5
        v_add_u32 v19, s7, v8
        v_mul_u32_u24 v8, 1280, v19
        v_and_b32 v9, 15, v1
        v_lshl_add_u32 v8, v9, 4, v8
        s_mul_i32 s8, s5, {128*1280}
        s_add_u32 s44, s24, s8
        s_addc_u32 s45, s25, 0
        s_mov_b32 s46, {128*1280}
        s_mov_b32 s48, 3840
        s_mov_b32 s49, 7680""")
        for i in range(8):
            for n in range(5):
                so = ('0', 's48', 's49')[i // 3]; off = (i % 3)*1280 + n*256
                if s.nowo: continue
                a(f's_waitcnt vmcnt({s.HP-1})')
                a(f'buffer_load_dwordx4 {wreg(i*5+n)}, v8, s[44:47], {so} offen offset:{off} {s.wpol}')
        s.stamp(2)
        a(f"""v_lshlrev_b32 v44, 4, v18
        v_lshlrev_b32 v19, 2, v19
        s_mul_i32 s7, s9, 2560
        v_add_u32 v17, s7, v17
        v_mov_b32 v16, 0
        s_mov_b32 s55, {f2u(L2E):#x}""")
        a(f"""s_waitcnt vmcnt(0)
        s_cmp_lg_u32 s9, 3
        s_cbranch_scc1 L_cntd
        s_mov_b64 exec, 1
        v_mov_b32 v9, 1
        global_atomic_add v16, v9, s[36:37] sc1
        s_mov_b32 s64, {s.spin}
        L_cnt:
        s_sleep 127
        global_load_dword v8, v16, s[36:37] sc1
        s_waitcnt vmcnt(0)
        v_readfirstlane_b32 s7, v8
        s_cmp_ge_u32 s7, 256
        s_cbranch_scc1 L_cntd
        s_sub_u32 s64, s64, 1
        s_cbranch_scc0 L_cnt
        L_cntd:
        s_mov_b64 exec, -1
        s_waitcnt lgkmcnt(0)
        s_barrier""")
        s.stamp(3)
        a(f'ds_read_b128 v[8:11], v16 offset:{ST}\nds_read_b128 v[12:15], v16 offset:{ST+16}')
        for w in range(4):
            a(f'ds_read_b128 v[{48+8*w}:{51+8*w}], v19 offset:{OP+w*512}')
            a(f'ds_read_b128 v[{52+8*w}:{55+8*w}], v19 offset:{OP+w*512+16}')
        a("""s_waitcnt lgkmcnt(8)
        v_max_f32 v20, v8, v10
        v_max3_f32 v20, v20, v12, v14
        v_sub_f32 v8, v8, v20
        v_sub_f32 v10, v10, v20
        v_sub_f32 v12, v12, v20
        v_sub_f32 v14, v14, v20
        v_mul_f32 v8, s55, v8
        v_mul_f32 v10, s55, v10
        v_mul_f32 v12, s55, v12
        v_mul_f32 v14, s55, v14
        v_exp_f32 v8, v8
        v_exp_f32 v10, v10
        v_exp_f32 v12, v12
        v_exp_f32 v14, v14
        v_mul_f32 v20, v8, v9
        v_fmac_f32 v20, v10, v11
        v_fmac_f32 v20, v12, v13
        v_fmac_f32 v20, v14, v15
        v_rcp_f32 v20, v20
        s_waitcnt lgkmcnt(0)""")
        for e in range(8): a(f'v_mul_f32 v{48+e}, v8, v{48+e}')
        for w in range(1, 4):
            for e in range(8): a(f'v_fmac_f32 v{48+e}, v{8+2*w}, v{48+8*w+e}')
        for e in range(8): a(f'v_mul_f32 v{48+e}, v20, v{48+e}')
        for e in range(8): a(f'v_cvt_pk_bf16_f32 v{48+e}, v{48+e}, v{48+e}')
        for i in range(8):
            ar = 28 + 4*(i & 1)
            for m in range(4): a(f'v_and_b32 v{ar+m}, v{48+i}, v{4+m}')
            a('s_nop 1')
            for n in range(5):
                a(f'v_mfma_f32_16x16x32_bf16 v[{60+4*n}:{63+4*n}], v[{ar}:{ar+3}], {wreg(i*5+n)}, ' + ('0' if i == 0 else f'v[{60+4*n}:{63+4*n}]'))
        a('s_mov_b32 exec_hi, 0\ns_nop 3')
        for n in range(5): a(f'ds_write_b128 v17, v[{60+4*n}:{63+4*n}] offset:{WOP+n*512}')
        a("""s_mov_b64 exec, -1
        s_waitcnt lgkmcnt(0)
        s_barrier
        s_cmp_eq_u32 s9, 3
        s_cbranch_scc1 L_pubd""")
        for w in range(4): a(f'ds_read_b128 v[{48+4*w}:{51+4*w}], v44 offset:{WOP+w*2560}')
        a('s_waitcnt lgkmcnt(0)')
        for e in range(4): a(f'v_add_f32 v{48+e}, v{48+e}, v{52+e}\nv_add_f32 v{56+e}, v{56+e}, v{60+e}')
        for e in range(4): a(f'v_add_f32 v{48+e}, v{48+e}, v{56+e}')
        for e in range(4): a(f'v_min_u32 v{48+e}, -2, v{48+e}')
        a("""s_cmp_eq_u32 s9, 2
        s_cselect_b32 exec_hi, 0, -1
        global_store_dwordx4 v45, v[48:51], s[38:39] sc1
        s_mov_b64 exec, -1""")
        s.stamp(4)
        a('L_pubd:')
        s.ffn_wregs(streamer=False)

    def tail(s):
        a = s.a; s.sv = 60
        a(f"""L_tail:
        s_and_b32 s12, s2, 7
        s_lshr_b32 s13, s2, 3
        s_cmp_lt_u32 s2, 216
        s_cbranch_scc0 L_tailB
        s_mul_i32 s14, s12, 27
        s_add_u32 s14, s14, s13
        s_mul_i32 s7, s3, 1280
        s_add_u32 s7, s7, {WS_H}
        v_lshl_add_u32 v8, v1, 4, s7
        v_lshl_add_u32 v9, v1, 2, s7
        s_barrier""")
        s.poll(['global_load_dwordx4 v[12:15], v8, s[38:39] sc1', 'global_load_dword v16, v9, s[38:39] offset:1024 sc1'],
               [12, 13, 14, 15, 16], 17)
        s.stamp(6)
        s.dreg(84)
        s.dstore(7, 14, (84,))
        s.layernorm(12, 28, 40, False, o=20, fast=s.fastln)
        s.stamp(10)
        a(f"""s_mul_i32 s7, s3, {XN2S}
        v_lshl_add_u32 v8, v1, 4, s7
        v_lshl_add_u32 v9, v1, 2, s7
        ds_write_b128 v8, v[20:23] offset:{XN2}
        ds_write_b32 v9, v24 offset:{XN2+1024}
        v_and_b32 v10, 7, v1
        v_mul_u32_u24 v11, {XN2S}, v10
        v_lshrrev_b32 v17, 4, v1
        v_lshl_add_u32 v11, v17, 4, v11
        s_waitcnt lgkmcnt(0)
        s_barrier
        s_cmp_lg_u32 s3, 3
        s_cbranch_scc1 L_end""")
        for m in range(20): a(f'ds_read_b128 v[{144+4*m}:{147+4*m}], v11 offset:{XN2+m*64}')
        a(f"""v_lshlrev_b32 v10, 4, v10
        v_lshl_add_u32 v10, v17, 2, v10
        s_lshl_b32 s7, s14, 7
        s_add_u32 s7, s7, {WS_ACT}
        v_add_u32 v10, s7, v10
        s_mov_b32 s55, {f2u(-L2E):#x}""")
        for m in range(20):
            a(f's_waitcnt lgkmcnt({min(15, 19-m)})')
            a(f'v_mfma_f32_16x16x32_bf16 v[20:23], v[{64+4*m}:{67+4*m}], v[{144+4*m}:{147+4*m}], ' + ('0' if m == 0 else 'v[20:23]'))
        a("""s_nop 7
        v_cvt_pk_bf16_f32 v20, v20, v21
        v_cvt_pk_bf16_f32 v22, v22, v23
        v_lshlrev_b32 v24, 16, v20
        v_and_b32 v25, 0xffff0000, v20
        v_mul_f32 v26, s55, v24
        v_mul_f32 v27, s55, v25
        v_exp_f32 v26, v26
        v_exp_f32 v27, v27
        v_lshlrev_b32 v28, 16, v22
        v_add_f32 v26, 1.0, v26
        v_add_f32 v27, 1.0, v27
        v_rcp_f32 v26, v26
        v_rcp_f32 v27, v27
        v_and_b32 v29, 0xffff0000, v22
        v_mul_f32 v24, v24, v26
        v_mul_f32 v25, v25, v27
        v_cvt_pk_bf16_f32 v24, v24, v25
        v_lshlrev_b32 v26, 16, v24
        v_and_b32 v27, 0xffff0000, v24
        v_mul_f32 v26, v26, v28
        v_mul_f32 v27, v27, v29
        v_cvt_pk_bf16_f32 v26, v26, v27
        v_min_u32 v26, -2, v26
        s_mov_b32 exec_lo, 0x00ff00ff
        s_mov_b32 exec_hi, 0x00ff00ff
        global_store_dword v10, v26, s[38:39] sc1""")
        s.stamp(7)
        a('s_endpgm')
        a(f"""L_tailB:
        s_mul_i32 s15, s12, 5
        s_add_u32 s15, s15, s13
        s_sub_u32 s15, s15, 27
        v_and_b32 v10, 7, v1
        v_lshrrev_b32 v17, 4, v1
        v_lshlrev_b32 v8, 4, v10
        v_lshl_add_u32 v8, v17, 7, v8
        s_lshl_b32 s7, s3, 9
        s_add_u32 s7, s7, {WS_ACT}
        v_add_u32 v8, s7, v8
        v_add_u32 v9, 0x2000, v8
        v_add_u32 v11, 0x4000, v8
        s_movk_i32 s8, 0x5000
        s_cmp_lt_u32 s3, 6
        s_cselect_b32 s8, 0x6000, s8
        v_add_u32 v12, s8, v8
        v_mul_u32_u24 v13, 1280, v10
        v_lshl_add_u32 v13, v17, 3, v13
        s_lshl_b32 s7, s15, 5
        v_add_u32 v13, s7, v13
        v_add_u32 v14, {WS_H}, v13
        s_barrier
        s_cmp_lg_u32 s3, 3
        s_cbranch_scc1 L_noh""")
        s.poll(['global_load_dwordx2 v[18:19], v14, s[38:39] sc1'], [18, 19], 15)
        a('L_noh:')
        lds = []
        for i in range(7):
            base = (8, 8, 9, 9, 11, 11, 12)[i]; off = 0
            if i < 6 and (i & 1): off = 4096
            lds.append((base, off))
        loads = []
        for i, (base, off) in enumerate(lds):
            if off == 4096:
                loads.append(f'global_load_dwordx4 v[{96+4*i}:{99+4*i}], v{base}, s[66:67] sc1')
            else:
                loads.append(f'global_load_dwordx4 v[{96+4*i}:{99+4*i}], v{base}, s[38:39] sc1')
        a('s_add_u32 s66, s38, 4096\ns_addc_u32 s67, s39, 0')
        s.poll(loads, list(range(96, 124)), 15)
        s.stamp(6)
        a('s_waitcnt lgkmcnt(0)')
        for i in range(7):
            a(f'v_mfma_f32_16x16x32_bf16 v[20:23], v[{64+4*i}:{67+4*i}], v[{96+4*i}:{99+4*i}], ' + ('0' if i == 0 else 'v[20:23]'))
        a(f"""v_lshlrev_b32 v8, 6, v10
        v_lshl_add_u32 v8, v17, 4, v8
        s_lshl_b32 s7, s3, 9
        v_add_u32 v9, s7, v8
        s_mov_b32 exec_lo, 0x00ff00ff
        s_mov_b32 exec_hi, 0x00ff00ff
        s_nop 2
        ds_write_b128 v9, v[20:23] offset:{BP}
        s_waitcnt lgkmcnt(0)
        s_barrier
        s_cmp_lg_u32 s3, 3
        s_cbranch_scc1 L_end""")
        for w in range(8): a(f'ds_read_b128 v[{24+4*w}:{27+4*w}], v8 offset:{BP+w*512}')
        a('s_waitcnt lgkmcnt(0)')
        for step in (16, 8, 4):
            for r in range(step): a(f'v_add_f32 v{24+r}, v{24+r}, v{24+step+r}')
        a("""v_cvt_pk_bf16_f32 v24, v24, v25
        v_cvt_pk_bf16_f32 v26, v26, v27
        v_lshlrev_b32 v28, 16, v24
        v_and_b32 v29, 0xffff0000, v24
        v_lshlrev_b32 v30, 16, v26
        v_and_b32 v31, 0xffff0000, v26
        v_lshlrev_b32 v24, 16, v18
        v_and_b32 v25, 0xffff0000, v18
        v_lshlrev_b32 v26, 16, v19
        v_and_b32 v27, 0xffff0000, v19
        v_add_f32 v24, v24, v28
        v_add_f32 v25, v25, v29
        v_add_f32 v26, v26, v30
        v_add_f32 v27, v27, v31
        v_cvt_pk_bf16_f32 v24, v24, v25
        v_cvt_pk_bf16_f32 v25, v26, v27
        global_store_dwordx2 v13, v[24:25], s[34:35] """ + s.opol)
        s.dreg(84)
        s.dstore(255, 13, (84,))
        s.stamp(7)

    def text(s):
        s.gen()
        body = '\n'.join(s.L)
        k = NAME + '_kernel'
        return f"""{HEADER}; @launch grid=(256,1,1) block=(512,1,1) lds={LDS_BYTES}
.amdgcn_target "amdgcn-amd-amdhsa--gfx950"
.text
.globl {k}
.p2align 8
.type {k},@function
{k}:
{body}
.section .rodata,"a"
.p2align 6
.amdhsa_kernel {k}
  .amdhsa_next_free_vgpr 256
  .amdhsa_next_free_sgpr 102
  .amdhsa_accum_offset 256
  .amdhsa_group_segment_fixed_size 0
  .amdhsa_kernarg_size 96
  .amdhsa_user_sgpr_count 2
  .amdhsa_user_sgpr_kernarg_segment_ptr 1
  .amdhsa_system_sgpr_workgroup_id_x 1
  .amdhsa_float_denorm_mode_32 3
.end_amdhsa_kernel
"""

def parse_kw(args):
    kw = {}
    for x in args:
        k, v = x.split('=')
        try: v = int(v)
        except ValueError: v = v.replace('+', ' ').replace('-', '')
        kw[k] = v
    return kw

if __name__ == '__main__':
    out = sys.argv[1]
    open(out, 'w').write(G(**parse_kw(sys.argv[2:])).text())
```

```python
import sys, struct

NAME = 'sequential_preLN__mha_block_cached__swiglu_ffn__decode'
def f2u(x): return struct.unpack('<I', struct.pack('<f', x))[0]

HEADER = """; Kernarg layout for this problem (96 bytes, ptrs only, base s[0:1]):
;
"""

WS_P   = 0
WS_H   = 256*2560
WS_ACT = WS_H + 10240
WS_STAMP = 1 << 20

XD  = 0
QP  = 5120
OP  = 7168
ST  = 9216
SC0 = 9344
SCW = 64*64
WOP = SC0 + 4*SCW
XN2 = WOP + 10240
XN2S = 1296
BP  = XN2
IMG = XN2 + 8*XN2S
LDS_BYTES = IMG + 57344
L2E = 1.4426950408889634

DEF = dict(D=5, D0=6, DP=6, DE=8, NE=6, NP=48, N0=8, WB=40, HP=4, FQ=16, kvpol='nt', wpol='', fpol='', opol='',
           stamps=0, spin=1 << 17, psleep=0, defer=0, gate=0, NB1=3, DS=4, nowo=0, noffn=0)

class G:
    def __init__(s, **kw):
        for k, v in DEF.items(): setattr(s, k, v)
        for k, v in kw.items():
            assert k in DEF, k
            setattr(s, k, v)
        s.L = []; s.nl = 0; s.sv = 62
    def a(s, t):
        for line in t.strip('\n').split('\n'):
            line = line.strip()
            if line: s.L.append(line if line.endswith(':') else '    ' + line)
    def lab(s, p):
        s.nl += 1; return f'L_{p}_{s.nl}'
    def stamp_reg(s, r):
        if s.stamps: s.a(f's_memrealtime s[{r}:{r+1}]')
    def stamp(s, idx, r=None):
        if not s.stamps: return
        s.a('s_memrealtime s[92:93]' if r is None else 's_nop 0')
        s.a('s_waitcnt lgkmcnt(0)')
        if r is not None: s.a(f's_mov_b32 s92, s{r}')
        s.a(f"""s_mov_b64 s[94:95], exec
        s_mov_b64 exec, 1
        s_lshl_b32 s93, s2, 3
        s_add_u32 s93, s93, s3
        s_lshl_b32 s93, s93, 6
        s_add_u32 s93, s93, {WS_STAMP + idx*4}
        v_mov_b32 v{s.sv}, s93
        v_mov_b32 v{s.sv+1}, s92
        global_store_dword v{s.sv}, v{s.sv+1}, s[38:39]
        s_mov_b64 exec, s[94:95]""")

    def wave_sum(s, v, sd):
        for c in ('row_ror:8', 'row_ror:4', 'row_ror:2', 'row_ror:1'):
            s.a(f's_nop 1\nv_add_f32_dpp v{v}, v{v}, v{v} {c} row_mask:0xf bank_mask:0xf')
        s.a(f's_nop 1\nv_add_f32_dpp v{v}, v{v}, v{v} row_bcast:15 row_mask:0xa bank_mask:0xf')
        s.a(f's_nop 1\nv_add_f32_dpp v{v}, v{v}, v{v} row_bcast:31 row_mask:0xc bank_mask:0xf')
        s.a(f's_nop 1\nv_readlane_b32 s{sd}, v{v}, 63')

    def layernorm(s, src, f, t, dup, o, fast):
        a = s.a
        for i in range(5):
            a(f'v_lshlrev_b32 v{f+2*i}, 16, v{src+i}\nv_and_b32 v{f+2*i+1}, 0xffff0000, v{src+i}')
        a(f's_mov_b32 s61, {f2u(1.0/640):#x}')
        if fast:
            a(f'v_readfirstlane_b32 s59, v{f}\ns_nop 1')
            a(f'v_subrev_f32 v{t}, s59, v{f+1}\nv_mul_f32 v{t+2}, v{t}, v{t}')
            for i in [0] + list(range(2, 10)):
                a(f'v_subrev_f32 v{t+1}, s59, v{f+i}\nv_add_f32 v{t}, v{t}, v{t+1}\nv_fmac_f32 v{t+2}, v{t+1}, v{t+1}')
            for c in ('row_ror:8 row_mask:0xf', 'row_ror:4 row_mask:0xf', 'row_ror:2 row_mask:0xf', 'row_ror:1 row_mask:0xf',
                      'row_bcast:15 row_mask:0xa', 'row_bcast:31 row_mask:0xc'):
                a(f's_nop 0\nv_add_f32_dpp v{t}, v{t}, v{t} {c} bank_mask:0xf\nv_add_f32_dpp v{t+2}, v{t+2}, v{t+2} {c} bank_mask:0xf')
            a(f'v_readlane_b32 s60, v{t}, 63\nv_readlane_b32 s58, v{t+2}, 63\ns_nop 0')
            a(f'v_mov_b32 v{t}, s60\nv_mov_b32 v{t+2}, s58\nv_mul_f32 v{t}, s61, v{t}\nv_mul_f32 v{t+2}, s61, v{t+2}')
            a(f'v_fma_f32 v{t+2}, -v{t}, v{t}, v{t+2}\nv_add_f32 v{t}, s59, v{t}\nv_max_f32 v{t+2}, 0, v{t+2}')
            a(f'v_cvt_pk_bf16_f32 v{t}, v{t}, v{t+2}\nv_and_b32 v{t+2}, 0xffff0000, v{t}\nv_lshlrev_b32 v{t}, 16, v{t}')
        else:
            a(f'v_add_f32 v{t}, v{f}, v{f+1}')
            for i in range(2, 10): a(f'v_add_f32 v{t}, v{t}, v{f+i}')
            s.wave_sum(t, 60)
            a(f's_nop 1\nv_mov_b32 v{t}, s60\nv_mul_f32 v{t}, s61, v{t}')
            a(f'v_sub_f32 v{t+1}, v{f}, v{t}\nv_mul_f32 v{t+2}, v{t+1}, v{t+1}')
            for i in range(1, 10):
                a(f'v_sub_f32 v{t+1}, v{f+i}, v{t}\nv_fmac_f32 v{t+2}, v{t+1}, v{t+1}')
            s.wave_sum(t+2, 60)
            a(f'v_cvt_pk_bf16_f32 v{t}, v{t}, v{t}\nv_lshlrev_b32 v{t}, 16, v{t}')
            a(f'v_mov_b32 v{t+2}, s60\nv_mul_f32 v{t+2}, s61, v{t+2}')
            a(f'v_cvt_pk_bf16_f32 v{t+2}, v{t+2}, v{t+2}\nv_lshlrev_b32 v{t+2}, 16, v{t+2}')
        a(f'v_add_f32 v{t+2}, {f2u(1e-5):#x}, v{t+2}')
        a(f'v_cvt_pk_bf16_f32 v{t+2}, v{t+2}, v{t+2}\nv_lshlrev_b32 v{t+2}, 16, v{t+2}')
        a(f'v_sqrt_f32 v{t+2}, v{t+2}')
        for i in range(10): a(f'v_sub_f32 v{f+i}, v{f+i}, v{t}')
        a(f'v_cvt_pk_bf16_f32 v{t+2}, v{t+2}, v{t+2}\nv_lshlrev_b32 v{t+2}, 16, v{t+2}')
        a(f'v_rcp_f32 v{t+3}, v{t+2}')
        for i in range(5): a(f'v_cvt_pk_bf16_f32 v{o+i}, v{f+2*i}, v{f+2*i+1}')
        for i in range(5):
            a(f'v_lshlrev_b32 v{f+2*i}, 16, v{o+i}\nv_and_b32 v{f+2*i+1}, 0xffff0000, v{o+i}')
        for i in range(10):
            if fast: a(f'v_mul_f32 v{f+i}, v{f+i}, v{t+3}')
            else: a(f'v_mul_f32 v{t}, v{f+i}, v{t+3}\nv_fma_f32 v{t+1}, -v{t}, v{t+2}, v{f+i}\nv_fma_f32 v{f+i}, v{t+1}, v{t+3}, v{t}')
        if dup:
            for i in range(10): a(f'v_cvt_pk_bf16_f32 v{f+i}, v{f+i}, v{f+i}')
        else:
            for i in range(5): a(f'v_cvt_pk_bf16_f32 v{o+i}, v{f+2*i}, v{f+2*i+1}')

    def poll(s, loads, regs, t):
        a = s.a
        lp = s.lab('poll'); ld = s.lab('polld')
        a(f's_mov_b64 s[62:63], exec\ns_mov_b32 s64, {s.spin}')
        a(f'{lp}:')
        for l in loads: a(l)
        a('s_waitcnt vmcnt(0)')
        r = list(regs)
        if len(r) == 2: a(f'v_max_u32 v{t}, v{r[0]}, v{r[1]}'); r = []
        else:
            a(f'v_max3_u32 v{t}, v{r[0]}, v{r[1]}, v{r[2]}'); r = r[3:]
        while len(r) >= 2:
            a(f'v_max3_u32 v{t}, v{t}, v{r[0]}, v{r[1]}'); r = r[2:]
        if r: a(f'v_max_u32 v{t}, v{t}, v{r[0]}')
        a(f'v_cmpx_eq_u32 vcc, -1, v{t}')
        a(f's_cbranch_execz {ld}')
        if s.psleep: a(f's_sleep {s.psleep}')
        a(f's_sub_u32 s64, s64, 1\ns_cbranch_scc0 {lp}')
        a(f'{ld}:')
        a('s_mov_b64 exec, s[62:63]\ns_nop 2')

    def roles(s):
        s.a("""s_and_b32 s12, s2, 7
        s_lshr_b32 s13, s2, 3
        s_mul_i32 s67, s12, 14
        s_add_u32 s67, s67, s13
        s_mov_b32 s66, 0
        s_cmp_ge_u32 s67, 108
        s_cselect_b32 s66, 3, s66
        s_mul_i32 s14, s12, 5
        s_add_u32 s14, s14, s13
        s_sub_u32 s14, s14, 14
        s_cmp_ge_u32 s13, 14
        s_cselect_b32 s66, 1, s66
        s_cselect_b32 s67, s14, s67
        s_sub_u32 s14, s13, 19
        s_cmp_ge_u32 s13, 19
        s_cselect_b32 s66, 2, s66
        s_cselect_b32 s67, s14, s67
        s_cmp_ge_u32 s13, 29
        s_cselect_b32 s66, 3, s66
        s_cselect_b32 s67, 0, s67""")

    def masks(s):
        s.a("""v_and_b32 v8, 15, v1
        v_and_b32 v9, 1, v1
        v_lshlrev_b32 v9, 4, v9
        v_mov_b32 v10, 0xffff
        v_lshlrev_b32 v10, v9, v10
        v_lshrrev_b32 v11, 1, v8""")
        for m in range(4):
            s.a(f'v_cmp_eq_u32 vcc, {m}, v11\ns_nop 1\nv_cndmask_b32 v{4+m}, 0, v10, vcc')

    def gen(s):
        a = s.a
        s.stamp_reg(80)
        a("""s_cmp_ge_u32 s2, 256
        s_cbranch_scc1 L_end
        s_load_dwordx16 s[16:31], s[0:1], 0
        s_load_dwordx8 s[32:39], s[0:1], 64
        v_lshrrev_b32 v2, 6, v0
        v_and_b32 v1, 63, v0
        v_readfirstlane_b32 s3, v2
        s_lshr_b32 s4, s2, 5
        s_and_b32 s5, s2, 31
        s_cmp_ge_u32 s3, 4
        s_cbranch_scc1 L_helper""")
        s.streamer()
        s.helper()
        s.tail()
        a('L_end:\ns_endpgm')

    def stage_setup(s, T):
        a = s.a
        lb = s.lab('sgB'); ld = s.lab('sgD')
        a(f"""v_lshrrev_b32 v8, 1, v{T}
        v_and_b32 v9, 1, v{T}
        s_lshl_b32 s8, s67, 5
        s_mov_b32 s71, 0x20000
        s_mov_b32 s75, 0x20000
        s_sub_u32 s70, 2211840, s8
        s_mov_b32 s74, s70
        s_mov_b32 s76, 0
        s_cmp_eq_u32 s66, 0
        s_cbranch_scc0 {lb}
        s_add_u32 s68, s28, s8
        s_addc_u32 s69, s29, 0
        s_add_u32 s72, s30, s8
        s_addc_u32 s73, s31, 0
        s_mov_b32 s7, 3456
        v_mul_lo_u32 v10, v8, s7
        v_lshl_add_u32 v10, v9, 4, v10
        v_lshlrev_b32 v11, 5, v{T}
        s_branch {ld}
        {lb}:
        s_add_u32 s68, s32, s8
        s_addc_u32 s69, s33, 0
        s_mov_b32 s72, s68
        s_mov_b32 s73, s69
        v_mul_u32_u24 v10, 1280, v8
        v_lshl_add_u32 v10, v9, 4, v10
        v_lshlrev_b32 v11, 4, v{T}
        {ld}:
        v_add_u32 v11, {IMG}, v11""")
    def ldA(s, k, R):
        srd = 's[68:71]' if (k & 1) == 0 else 's[72:75]'
        t = f'buffer_load_dwordx4 v[{R+4*k}:{R+4*k+3}], v10, {srd}, s76 offen {s.fpol}'
        post = f's_add_u32 s76, s76, {128*3456}' if k & 1 else ''
        return t, post
    def ldB(s, k, R):
        return f'buffer_load_dwordx4 v[{R+4*k}:{R+4*k+3}], v10, s[68:71], s76 offen {s.fpol}', f's_add_u32 s76, s76, {128*1280}'
    def wrA(s, kb, R):
        for q in range(4):
            s.a(f'ds_write2_b32 v11, v{R+8*kb+q}, v{R+8*kb+4+q} offset0:{2*q} offset1:{2*q+1}')
        if kb < 4: s.a('v_add_u32 v11, 8192, v11')
    def wrB(s, k, R):
        s.a(f'ds_write_b128 v11, v[{R+4*k}:{R+4*k+3}] offset:{k*4096}')

    def ffn_wregs(s, streamer):
        a = s.a
        la = s.lab('wa'); ld = s.lab('wd')
        a(f"""v_lshrrev_b32 v46, 4, v1
        v_lshlrev_b32 v46, 3, v46
        v_bfe_u32 v47, v1, 2, 2
        v_add_u32 v46, v46, v47
        v_and_b32 v47, 3, v1
        v_lshlrev_b32 v47, 3, v47
        v_add_u32 v47, {IMG}, v47
        s_cmp_eq_u32 s66, 0
        s_cbranch_scc1 {la}
        v_lshl_add_u32 v46, v46, 5, v47
        s_lshl_b32 s7, s3, 10
        v_add_u32 v46, s7, v46""")
        for i in range(7):
            a(f'ds_read_b64_tr_b16 v[{64+4*i}:{65+4*i}], v46 offset:{i*8192}')
            a(f'ds_read_b64_tr_b16 v[{66+4*i}:{67+4*i}], v46 offset:{i*8192+128}')
        a(f's_branch {ld}\n{la}:')
        if streamer:
            a(f"""s_cmp_lt_u32 s3, 2
            s_cbranch_scc1 {ld}
            v_lshl_add_u32 v46, v46, 6, v47
            s_sub_u32 s7, s3, 2
            s_lshl_b32 s7, s7, 5
            v_add_u32 v46, s7, v46""")
            for m in range(20):
                a(f'ds_read_b64_tr_b16 v[{64+4*m}:{65+4*m}], v46 offset:{m*2048}')
                a(f'ds_read_b64_tr_b16 v[{66+4*m}:{67+4*m}], v46 offset:{m*2048+256}')
        a(f'{ld}:')

    def streamer(s):
        a = s.a; D = s.D; R0 = 64; NP = s.NP; R = 16; s.sv = 62
        assert NP % 16 == 0
        slot = lambda p: f'v[{R0+4*p}:{R0+4*p+3}]'
        def issue(p, t):
            a(f'buffer_load_dwordx4 {slot(p)}, v2, s[40:43], s44 offen offset:{t*1024} {s.kvpol}')
            if t == 3: a('s_add_u32 s44, s44, 16384')
        a("""v_bfe_u32 v2, v1, 2, 2
        v_lshlrev_b32 v2, 8, v2
        v_lshrrev_b32 v3, 4, v1
        v_lshl_add_u32 v2, v3, 6, v2
        v_and_b32 v3, 3, v1
        v_lshl_add_u32 v2, v3, 4, v2
        s_lshl_b32 s6, s2, 20
        s_lshl_b32 s44, s3, 12
        s_mov_b32 s42, 0x100000
        s_mov_b32 s43, 0x20000
        s_waitcnt lgkmcnt(0)
        s_add_u32 s40, s18, s6
        s_addc_u32 s41, s19, 0""")
        s.stamp_reg(82)
        for i in range(s.D0): issue(i, i & 3)
        s.stamp(0); s.stamp(11, 80); s.stamp(12, 82)
        a("""s_add_u32 s48, s20, s6
        s_addc_u32 s49, s21, 0
        v_lshlrev_b32 v3, 4, v1""")
        s.roles()
        a("""v_and_b32 v8, 15, v1
        v_lshlrev_b32 v8, 3, v8
        s_min_u32 s8, s67, 9
        s_lshl_b32 s8, s8, 7
        s_mul_i32 s7, s12, 1280
        s_add_u32 s7, s7, s8
        v_add_u32 v44, s7, v8
        global_load_dwordx2 v[42:43], v44, s[16:17]""")
        s.masks()
        a(f"""s_mov_b32 s50, 0xaaaaaaaa
        s_mov_b32 s51, 0xaaaaaaaa
        s_mov_b32 s52, 0xcccccccc
        s_mov_b32 s53, 0xcccccccc
        s_mov_b32 s54, {f2u(128**-0.5):#x}
        s_mov_b32 s55, {f2u(L2E):#x}
        v_mov_b32 v34, 0xff7fffff
        v_mov_b32 v36, 0
        s_mul_i32 s7, s3, {SCW}
        s_add_u32 s7, s7, {SC0}
        v_and_b32 v35, 60, v1
        v_add_u32 v35, s7, v35
        v_lshrrev_b32 v8, 4, v1
        v_lshlrev_b32 v8, 2, v8
        v_and_b32 v9, 3, v1
        v_add_u32 v8, v8, v9
        v_lshlrev_b32 v45, 5, v8
        s_lshl_b32 s7, s3, 4
        v_mov_b32 v61, s7
        ds_write_b32 v61, v36 offset:{ST+8}
        v_and_b32 v8, 15, v1
        v_lshlrev_b32 v8, 5, v8
        v_lshrrev_b32 v9, 4, v1
        v_lshl_add_u32 v8, v9, 4, v8
        s_lshl_b32 s7, s3, 9
        v_add_u32 v60, s7, v8
        s_waitcnt lgkmcnt(0)""")
        for i in range(s.D0, NP):
            a(f's_waitcnt vmcnt({s.DP-1})')
            issue(i, i & 3)
        s.stamp(4)
        a('s_barrier')
        s.stamp(1)
        a(f"""ds_read_b128 v[46:49], v45 offset:{QP}
        ds_read_b128 v[50:53], v45 offset:{QP+16}
        ds_read_b128 v[54:57], v45 offset:{QP+512}
        ds_read_b128 v[16:19], v45 offset:{QP+512+16}
        ds_read_b128 v[24:27], v45 offset:{QP+1024}
        ds_read_b128 v[28:31], v45 offset:{QP+1024+16}
        ds_read_b128 v[8:11], v45 offset:{QP+1536}
        ds_read_b128 v[12:15], v45 offset:{QP+1536+16}
        s_waitcnt lgkmcnt(0)""")
        for e in range(8):
            b1 = 54+e if e < 4 else 12+e
            a(f'v_add_f32 v{46+e}, v{46+e}, v{b1}\nv_add_f32 v{24+e}, v{24+e}, v{8+e}')
        for e in range(8): a(f'v_add_f32 v{46+e}, v{46+e}, v{24+e}')
        for m in range(4): a(f'v_cvt_pk_bf16_f32 v{54+m}, v{46+2*m}, v{47+2*m}')
        for t in range(4):
            mk = 0x000f000f << (4*t)
            a(f's_mov_b32 s56, {mk:#x}\ns_mov_b32 s57, {mk:#x}')
            for m in range(4): a(f'v_cndmask_b32 v{8+4*t+m}, 0, v{54+m}, s[56:57]')
        a('s_nop 1')
        Dreg = lambda g: 24 + 4*(g & 1)
        def post1(g):
            d = Dreg(g)
            a(f"""s_nop 1
            v_cndmask_b32 v32, v{d}, v{d+1}, s[50:51]
            v_cndmask_b32 v33, v{d+2}, v{d+3}, s[50:51]
            v_cndmask_b32 v32, v32, v33, s[52:53]
            s_nop 1
            v_add_f32_dpp v32, v32, v32 quad_perm:[1,0,3,2] row_mask:0xf bank_mask:0xf
            s_nop 1
            v_add_f32_dpp v32, v32, v32 quad_perm:[2,3,0,1] row_mask:0xf bank_mask:0xf""")
        def post2(off):
            a(f"""v_cvt_pk_bf16_f32 v32, v32, v32
            v_lshlrev_b32 v32, 16, v32
            v_mul_f32 v32, s54, v32
            v_cvt_pk_bf16_f32 v32, v32, v32
            v_lshlrev_b32 v32, 16, v32
            v_max_f32 v33, v34, v32
            ds_write_b32 v35, v32 offset:{off}
            v_sub_f32 v40, v34, v33
            v_sub_f32 v46, v32, v33
            v_mul_f32 v40, s55, v40
            v_mul_f32 v46, s55, v46
            v_exp_f32 v40, v40
            v_exp_f32 v46, v46
            v_mov_b32 v34, v33
            v_fma_f32 v36, v36, v40, v46""")
        def kcons(p, gi, t):
            d = Dreg(gi)
            c = '0' if t == 0 else f'v[{d}:{d+3}]'
            a(f'v_mfma_f32_16x16x32_bf16 v[{d}:{d+3}], {slot(p)}, v[{8+4*t}:{11+4*t}], {c}')
        nis = 0
        per = max(1, (NP - 1) // 15)
        for i in range(NP):
            gi, t = i >> 2, i & 3
            need = (NP + nis - 1) - i
            if i >= NP - s.DP: a(f's_waitcnt vmcnt({min(need, 63)})')
            kcons(i, gi, t)
            if gi > 0 and t == 2: a('s_nop 3'); post1(gi - 1)
            if gi > 0 and t == 3: post2((gi - 1) * 64)
            if nis < 15 and i >= nis and (i + 1) % per == 0:
                a(f's_waitcnt vmcnt({D-1})')
                issue(nis, nis & 3); nis += 1
        assert nis == 15, nis
        a(f'v_add_u32 v35, {(NP//4-1)*64}, v35')
        nk = (256 - NP) // R
        a('s_mov_b32 s45, 0')
        a('L_kloop:')
        for st in range(R):
            gi, t = st >> 2, st & 3
            a(f's_waitcnt vmcnt({D-1})')
            issue((st - 1) % R, (st - 1) & 3)
            if st == 0:
                a(f"""s_cmp_lg_u32 s45, {nk-1}
                s_cbranch_scc1 L_nosw
                s_mov_b32 s40, s48
                s_mov_b32 s41, s49
                s_lshl_b32 s44, s3, 12
                v_mov_b32 v2, v3
                L_nosw:""")
            kcons(st, gi, t)
            if t == 2: post1(gi - 1)
            if t == 3: post2(gi * 64)
        a(f"""v_add_u32 v35, {R*16}, v35
        s_add_u32 s45, s45, 1
        s_cmp_lt_u32 s45, {nk}
        s_cbranch_scc1 L_kloop""")
        post1(1); post2(0)
        a(f"""s_nop 0
        v_max_f32_dpp v33, v34, v34 row_ror:4 row_mask:0xf bank_mask:0xf
        v_subrev_u32 v35, {63*64}, v35
        v_mov_b32 v28, 0
        v_max_f32_dpp v33, v33, v33 row_ror:8 row_mask:0xf bank_mask:0xf
        v_mov_b32 v29, 0
        v_readlane_b32 s56, v33, 0
        v_readlane_b32 s57, v33, 16
        v_readlane_b32 s58, v33, 32
        v_readlane_b32 s59, v33, 48
        v_mov_b32 v30, 0
        v_mov_b32 v48, s56
        v_max_f32 v48, s57, v48
        v_max_f32 v48, s58, v48
        v_max_f32 v48, s59, v48
        v_sub_f32 v40, v34, v48
        v_mul_f32 v40, s55, v40
        v_exp_f32 v40, v40
        v_mov_b32 v31, 0
        v_mul_f32 v36, v36, v40
        v_mov_b32 v50, 1
        v_mov_b32 v51, 1
        v_add_f32_dpp v36, v36, v36 row_ror:4 row_mask:0xf bank_mask:0xf
        s_nop 1
        v_add_f32_dpp v36, v36, v36 row_ror:8 row_mask:0xf bank_mask:0xf
        s_nop 0
        v_readlane_b32 s56, v36, 0
        v_readlane_b32 s57, v36, 16
        v_readlane_b32 s58, v36, 32
        v_readlane_b32 s59, v36, 48
        v_mov_b32 v33, 0
        v_mov_b32 v49, s56
        v_add_f32 v49, s57, v49
        v_add_f32 v49, s58, v49
        v_add_f32 v49, s59, v49
        ds_write_b128 v61, v[48:51] offset:{ST}
        s_mov_b32 s64, {s.spin}
        L_stw:
        ds_read_b128 v[8:11], v33 offset:{ST}
        ds_read_b128 v[12:15], v33 offset:{ST+16}
        ds_read_b128 v[16:19], v33 offset:{ST+32}
        ds_read_b128 v[20:23], v33 offset:{ST+48}
        ds_read_b32 v39, v35
        s_waitcnt lgkmcnt(0)
        v_and_b32 v40, v10, v14
        v_and_b32 v46, v18, v22
        v_and_b32 v40, v40, v46
        s_nop 0
        v_readfirstlane_b32 s7, v40
        s_cmp_lg_u32 s7, 0
        s_cbranch_scc1 L_stwd
        s_sub_u32 s64, s64, 1
        s_cbranch_scc0 L_stw
        L_stwd:
        v_max_f32 v41, v8, v12
        v_max3_f32 v41, v41, v16, v20
        v_sub_f32 v8, v8, v41
        v_sub_f32 v12, v12, v41
        v_sub_f32 v16, v16, v41
        v_sub_f32 v20, v20, v41
        v_mul_f32 v8, s55, v8
        v_mul_f32 v12, s55, v12
        v_mul_f32 v16, s55, v16
        v_mul_f32 v20, s55, v20
        v_exp_f32 v8, v8
        v_exp_f32 v12, v12
        v_exp_f32 v16, v16
        v_exp_f32 v20, v20
        v_mul_f32 v40, v8, v9
        v_fmac_f32 v40, v12, v13
        v_fmac_f32 v40, v16, v17
        v_fmac_f32 v40, v20, v21
        v_rcp_f32 v47, v40
        s_nop 0
        v_fma_f32 v46, -v40, v47, 1.0
        v_fmac_f32 v47, v46, v47""")
        s.stamp(2)
        def prep(g):
            a(f"""s_waitcnt lgkmcnt(0)
            v_sub_f32 v39, v39, v41
            v_mul_f32 v39, s55, v39
            v_exp_f32 v39, v39
            s_nop 0
            v_mul_f32 v39, v39, v47
            v_cvt_pk_bf16_f32 v{37+(g&1)}, v39, v39""")
        prep(0)
        a('s_nop 0')
        def vstep(st, last, Dv):
            gi, t = st >> 2, st & 3
            if not last or st == 0:
                a(f's_waitcnt vmcnt({Dv-1})')
                issue((st - 1) % R, (st - 1) & 3)
            elif R - 1 - st < Dv:
                a(f's_waitcnt vmcnt({R-1-st})')
            fin = last and gi == R//4 - 1
            if t == 0 and not fin: a(f'ds_read_b32 v39, v35 offset:{(gi+1)*64}')
            for m in range(4):
                a(f'v_and_b32_dpp v{24+m}, v{37+(gi&1)}, v{4+m} row_newbcast:{4*t} row_mask:0xf bank_mask:0xf')
            if last and st == R - 1: pass
            a('s_nop 1')
            a(f'v_mfma_f32_16x16x32_bf16 v[28:31], v[24:27], {slot(st)}, v[28:31]')
            if t == 2 and not fin: prep(gi + 1)
        def vloop(name, n, Dv):
            a(f's_mov_b32 s45, 0\n{name}:')
            for st in range(R): vstep(st, False, Dv)
            a(f"""v_add_u32 v35, {R*16}, v35
            s_add_u32 s45, s45, 1
            s_cmp_lt_u32 s45, {n}
            s_cbranch_scc1 {name}""")
        vloop('L_vloop', 256//R - 1 - s.NE, D)
        if s.NE: vloop('L_vloop2', s.NE, s.DE)
        if s.defer:
            a('s_lshl_b32 s7, s3, 6\nv_add_u32 v18, s7, v1')
            s.stage_setup(18)
        for st in range(R): vstep(st, True, s.DE)
        a(f"""s_mov_b32 exec_hi, 0
        s_nop 6
        ds_write_b128 v60, v[28:31] offset:{OP}
        s_mov_b64 exec, -1
        s_waitcnt lgkmcnt(0)""")
        s.stamp(3)
        a('s_barrier')
        SR = 128
        if s.defer and not s.noffn:
            a('s_cmp_eq_u32 s66, 0\ns_cbranch_scc0 L_d1B')
            for k in range(s.NB1 if s.defer & 1 else 0):
                t, p = s.ldA(k, SR); a(t); a(p)
            a('s_branch L_d1D\nL_d1B:\ns_cmp_eq_u32 s66, 1\ns_cbranch_scc0 L_d1D')
            for k in range(s.NB1 if s.defer & 2 else 0):
                t, p = s.ldB(k, SR); a(t); a(p)
            a('L_d1D:')
        a(f"""s_mul_i32 s7, s12, {32*2560}
        s_lshl_b32 s8, s67, 8
        s_add_u32 s7, s7, s8
        v_lshrrev_b32 v8, 4, v1
        v_mul_u32_u24 v8, 2560, v8
        v_and_b32 v9, 15, v1
        v_lshl_add_u32 v8, v9, 4, v8
        v_add_u32 v48, s7, v8""")
        for i in range(1, 8): a(f'v_add_u32 v{48+i}, 10240, v{47+i}')
        a(f"""v_add_u32 v44, {WS_H}, v44
        s_barrier
        s_cmp_lt_u32 s66, 2
        s_cbranch_scc1 L_s_ffn
        s_cmp_eq_u32 s66, 3
        s_cbranch_scc1 L_end
        s_cmp_lg_u32 s3, 0
        s_cbranch_scc1 L_end""")
        s.stamp(8)
        s.poll([f'global_load_dwordx4 v[{160+4*i}:{163+4*i}], v{48+i}, s[38:39] sc1' for i in range(8)], list(range(160, 192)), 32)
        s.stamp(9)
        for step in (16, 8, 4):
            for r in range(step): a(f'v_add_f32 v{160+r}, v{160+r}, v{160+step+r}')
        for sw in ('v_permlane16_swap_b32', 'v_permlane32_swap_b32'):
            for r in range(4): a(f'v_mov_b32 v{164+r}, v{160+r}')
            for r in range(4): a(f'{sw} v{160+r}, v{164+r}')
            for r in range(4): a(f'v_add_f32 v{160+r}, v{160+r}, v{164+r}')
        a("""v_cvt_pk_bf16_f32 v24, v160, v161
        v_cvt_pk_bf16_f32 v26, v162, v163
        v_lshlrev_b32 v28, 16, v24
        v_and_b32 v29, 0xffff0000, v24
        v_lshlrev_b32 v30, 16, v26
        v_and_b32 v31, 0xffff0000, v26
        v_lshlrev_b32 v24, 16, v42
        v_and_b32 v25, 0xffff0000, v42
        v_lshlrev_b32 v26, 16, v43
        v_and_b32 v27, 0xffff0000, v43
        v_add_f32 v24, v24, v28
        v_add_f32 v25, v25, v29
        v_add_f32 v26, v26, v30
        v_add_f32 v27, v27, v31
        v_cvt_pk_bf16_f32 v24, v24, v25
        v_cvt_pk_bf16_f32 v25, v26, v27
        v_min_u32 v24, -2, v24
        v_min_u32 v25, -2, v25
        s_nop 0
        v_mov_b32_dpp v26, v24 quad_perm:[1,1,3,3] row_mask:0xf bank_mask:0xf
        v_mov_b32_dpp v27, v25 quad_perm:[1,1,3,3] row_mask:0xf bank_mask:0xf
        s_mov_b64 exec, 0x5555
        global_store_dwordx4 v44, v[24:27], s[38:39] sc1""")
        s.stamp(5)
        a('s_endpgm')
        a('L_s_ffn:')
        if s.defer and not s.noffn:
            a('s_cmp_eq_u32 s66, 0\ns_cbranch_scc0 L_d2B')
            if s.defer & 1:
                if s.DS: a(f's_sleep {s.DS}')
                for k in range(s.NB1, 10):
                    t, p = s.ldA(k, SR); a(t); a(p)
                for kb in range(5):
                    a(f's_waitcnt vmcnt({8-2*kb})'); s.wrA(kb, SR)
            a('s_branch L_d2D\nL_d2B:')
            if s.defer & 2:
                if s.DS: a(f's_sleep {s.DS}')
                for k in range(s.NB1, 14):
                    t, p = s.ldB(k, SR); a(t); a(p)
                for k in range(14):
                    a(f's_waitcnt vmcnt({13-k})'); s.wrB(k, SR)
            a('L_d2D:\ns_waitcnt lgkmcnt(0)')
            s.stamp(13)
        a('s_barrier')
        s.ffn_wregs(streamer=True)
        a('s_branch L_tail')

    def helper(s):
        a = s.a; W0 = 96; s.sv = 92
        wreg = lambda i: f'v[{W0+4*i}:{W0+4*i+3}]'
        a('L_helper:')
        s.stamp_reg(84)
        a(f"""s_sub_u32 s9, s3, 4
        v_lshrrev_b32 v2, 4, v1
        v_mul_u32_u24 v2, 40, v2
        s_mul_i32 s7, s9, 160
        v_add_u32 v3, s7, v2
        v_lshlrev_b32 v2, 13, v3
        v_and_b32 v8, 15, v1
        v_lshl_add_u32 v2, v8, 4, v2
        v_lshlrev_b32 v3, 3, v3
        s_mul_i32 s49, s4, 5
        s_lshr_b32 s49, s49, 2
        s_lshl_b32 s49, s49, 4
        v_add_u32 v3, s49, v3
        v_lshlrev_b32 v26, 4, v1
        v_lshlrev_b32 v27, 2, v1
        s_mul_i32 s7, s4, 1280
        s_lshl_b32 s8, s5, 8
        s_mov_b32 s47, 0x20000
        s_sub_u32 s46, 5242880, s8
        s_lshl_b32 s48, s49, 11
        s_waitcnt lgkmcnt(0)
        s_add_u32 s10, s16, s7
        s_addc_u32 s11, s17, 0
        s_add_u32 s44, s22, s8
        s_addc_u32 s45, s23, 0
        global_load_dwordx4 v[12:15], v26, s[10:11]
        global_load_dword v16, v27, s[10:11] offset:1024""")
        def wq_issue(i):
            a(f'buffer_load_dwordx4 {wreg(i)}, v2, s[44:47], s48 offen {s.wpol}')
            if i < 39:
                a('s_add_u32 s48, s48, 8192')
                if (i & 3) == 3: a(f's_cmp_eq_u32 s48, {40*8192}\ns_cselect_b32 s48, 0, s48')
        N0 = s.N0
        for i in range(N0): wq_issue(i)
        s.roles()
        s.masks()
        a(f"""v_mul_u32_u24 v8, 52429, v1
        v_lshrrev_b32 v8, 18, v8
        v_mul_u32_u24 v8, 160, v8
        v_lshl_add_u32 v8, v1, 5, v8
        v_add_u32 v9, 256, v1
        v_mul_u32_u24 v10, 52429, v9
        v_lshrrev_b32 v10, 20, v10
        v_mul_u32_u24 v10, 160, v10
        v_lshl_add_u32 v9, v9, 3, v10
        s_waitcnt vmcnt({N0})""")
        s.stamp_reg(86)
        s.layernorm(12, 28, 40, True, 20, False)
        a(f"""ds_write_b128 v8, v[28:31] offset:{XD}
        ds_write_b128 v8, v[32:35] offset:{XD+16}
        ds_write_b64 v9, v[36:37] offset:{XD}
        ds_write_b128 v8, v[28:31] offset:{XD+160}
        ds_write_b128 v8, v[32:35] offset:{XD+176}
        ds_write_b64 v9, v[36:37] offset:{XD+160}
        s_waitcnt lgkmcnt(0)""")
        for i in range(10): a(f'ds_read_b128 v[{48+4*i}:{51+4*i}], v3 offset:{XD+16*i}')
        nis = N0
        for i in range(40):
            for _ in range(s.WB + (i == 0)):
                if nis < 40: wq_issue(nis); nis += 1
            if i == 0: a('s_waitcnt lgkmcnt(0)')
            ar = 28 + 4*(i & 1)
            for m in range(4): a(f'v_and_b32 v{ar+m}, v{48+i}, v{4+m}')
            a(f's_waitcnt vmcnt({nis-1-i})')
            if i == 20: s.stamp_reg(88)
            a('s_nop 0')
            a(f'v_mfma_f32_16x16x32_bf16 v[20:23], v[{ar}:{ar+3}], {wreg(i)}, ' + ('0' if i == 0 else 'v[20:23]'))
        a(f"""v_and_b32 v8, 15, v1
        v_lshlrev_b32 v8, 5, v8
        v_lshrrev_b32 v9, 4, v1
        v_lshl_add_u32 v17, v9, 4, v8
        s_lshl_b32 s7, s9, 9
        v_add_u32 v8, s7, v17
        s_nop 3
        s_mov_b32 exec_hi, 0
        ds_write_b128 v8, v[20:23] offset:{QP}
        s_mov_b64 exec, -1
        s_waitcnt lgkmcnt(0)""")
        s.stamp(1)
        for i, r in ((0, 84), (13, 86), (11, 88)): s.stamp(i, r)
        a('s_barrier')
        a(f"""v_mov_b32 v20, -1
        v_mov_b32 v21, -1
        v_mov_b32 v22, -1
        v_mov_b32 v23, -1
        s_mul_i32 s7, s2, 2560
        v_add_u32 v24, s7, v26
        s_lshl_b32 s8, s9, 10
        v_add_u32 v45, s8, v24
        s_mul_i32 s7, s12, 1280
        s_lshl_b32 s8, s67, 7
        s_add_u32 s7, s7, s8
        s_add_u32 s7, s7, {WS_H}
        s_lshl_b32 s8, s67, 8
        s_add_u32 s8, s8, {WS_ACT}
        s_cmp_eq_u32 s66, 0
        s_cselect_b32 s7, s8, s7
        v_add_u32 v25, s7, v27
        s_cmp_lg_u32 s9, 3
        s_cbranch_scc1 L_clrd
        global_store_dwordx4 v24, v[20:23], s[38:39] sc1
        global_store_dwordx4 v24, v[20:23], s[38:39] offset:1024 sc1
        global_store_dwordx4 v24, v[20:23], s[38:39] offset:1536 sc1
        s_bitcmp1_b32 s66, 0
        s_cbranch_scc1 L_clre
        s_cmp_eq_u32 s66, 0
        s_cselect_b32 exec_hi, -1, 0
        global_store_dword v25, v20, s[38:39] sc1
        L_clre:
        s_waitcnt vmcnt(0)
        s_mov_b64 exec, 1
        v_mov_b32 v8, 0
        v_mov_b32 v9, 1
        global_atomic_add v8, v9, s[36:37] sc1
        s_mov_b64 exec, -1
        L_clrd:
        s_lshl_b32 s7, s9, 6
        v_add_u32 v18, s7, v1""")
        if s.defer != 3 and not s.noffn:
            def split_load(txt, lanes):
                for q in range(64 // lanes):
                    m = ((1 << lanes) - 1) << (q * lanes)
                    if lanes < 64: a(f's_mov_b32 exec_lo, {m & 0xffffffff:#x}\ns_mov_b32 exec_hi, {m >> 32:#x}')
                    a(txt)
                    a('s_waitcnt vmcnt(0)')
                a('s_mov_b64 exec, -1')
            a('s_cmp_ge_u32 s66, 2\ns_cbranch_scc1 L_stD')
            s.stage_setup(18)
            a('s_cmp_eq_u32 s66, 0\ns_cbranch_scc0 L_stB')
            for kb in range(0 if s.defer & 1 else 5):
                for mt in range(2):
                    t, p = s.ldA(mt, 48); split_load(t, min(64, 2*s.FQ)); a(p)
                s.wrA(0 if kb < 4 else 0, 48)
                a('s_waitcnt lgkmcnt(0)')
            a('s_branch L_stD\nL_stB:')
            for k in range(0 if s.defer & 2 else 14):
                t, p = s.ldB(0, 48); split_load(t, min(64, 2*s.FQ)); a(p)
                a(f'ds_write_b128 v11, v[48:51] offset:{k*4096}\ns_waitcnt lgkmcnt(0)')
            a('L_stD:')
        a(f"""v_lshrrev_b32 v8, 4, v1
        v_lshlrev_b32 v8, 3, v8
        s_lshl_b32 s7, s9, 5
        v_add_u32 v19, s7, v8
        v_mul_u32_u24 v8, 1280, v19
        v_and_b32 v9, 15, v1
        v_lshl_add_u32 v8, v9, 4, v8
        s_mul_i32 s8, s5, {128*1280}
        s_add_u32 s44, s24, s8
        s_addc_u32 s45, s25, 0
        s_mov_b32 s46, {128*1280}
        s_mov_b32 s48, 3840
        s_mov_b32 s49, 7680""")
        for i in range(8):
            for n in range(5):
                so = ('0', 's48', 's49')[i // 3]; off = (i % 3)*1280 + n*256
                if s.nowo: continue
                a(f's_waitcnt vmcnt({s.HP-1})')
                a(f'buffer_load_dwordx4 {wreg(i*5+n)}, v8, s[44:47], {so} offen offset:{off} {s.wpol}')
        s.stamp(2)
        a(f"""v_lshlrev_b32 v44, 4, v18
        v_lshlrev_b32 v19, 2, v19
        s_mul_i32 s7, s9, 2560
        v_add_u32 v17, s7, v17
        v_mov_b32 v16, 0
        s_waitcnt vmcnt(0)
        s_cmp_lg_u32 s9, 3
        s_cbranch_scc1 L_cntd
        s_mov_b32 s64, {s.spin}
        L_flg:
        s_sleep 32
        ds_read_b32 v8, v16 offset:{ST+8}
        s_waitcnt lgkmcnt(0)
        v_readfirstlane_b32 s7, v8
        s_cmp_lg_u32 s7, 0
        s_cbranch_scc1 L_flgd
        s_sub_u32 s64, s64, 1
        s_cbranch_scc0 L_flg
        L_flgd:
        s_mov_b32 s64, {s.spin}
        L_cnt:
        global_load_dword v8, v16, s[36:37] sc1
        s_waitcnt vmcnt(0)
        v_readfirstlane_b32 s7, v8
        s_cmp_ge_u32 s7, 256
        s_cbranch_scc1 L_cntd
        s_sleep 127
        s_sub_u32 s64, s64, 1
        s_cbranch_scc0 L_cnt
        L_cntd:
        s_waitcnt lgkmcnt(0)
        s_barrier""")
        s.stamp(3)
        for half in range(2):
            for w in range(4):
                a(f'ds_read_b128 v[{48+8*w+4*half}:{51+8*w+4*half}], v19 offset:{OP+w*512+16*half}')
        for half in range(2):
            a(f's_waitcnt lgkmcnt({4-4*half})')
            for e in range(4*half, 4*half+4):
                a(f'v_add_f32 v{48+e}, v{48+e}, v{56+e}\nv_add_f32 v{64+e}, v{64+e}, v{72+e}')
            for e in range(4*half, 4*half+4): a(f'v_add_f32 v{48+e}, v{48+e}, v{64+e}')
            for e in range(4*half, 4*half+4): a(f'v_cvt_pk_bf16_f32 v{48+e}, v{48+e}, v{48+e}')
            for i in range(4*half, 4*half+4):
                ar = 28 + 4*(i & 1)
                for m in range(4): a(f'v_and_b32 v{ar+m}, v{48+i}, v{4+m}')
                a('s_nop 1')
                for n in range(5):
                    acc = (8, 12, 20, 36, 40)[n]
                    a(f'v_mfma_f32_16x16x32_bf16 v[{acc}:{acc+3}], v[{ar}:{ar+3}], {wreg(i*5+n)}, ' + ('0' if i == 0 else f'v[{acc}:{acc+3}]'))
        a('s_mov_b32 exec_hi, 0\ns_nop 3')
        for n in range(5):
            acc = (8, 12, 20, 36, 40)[n]
            a(f'ds_write_b128 v17, v[{acc}:{acc+3}] offset:{WOP+n*512}')
        a("""s_mov_b64 exec, -1
        s_waitcnt lgkmcnt(0)
        s_barrier
        s_cmp_eq_u32 s9, 3
        s_cbranch_scc1 L_pubd""")
        for w in range(4): a(f'ds_read_b128 v[{48+4*w}:{51+4*w}], v44 offset:{WOP+w*2560}')
        a('s_cmp_eq_u32 s9, 2\ns_cselect_b32 exec_hi, 0, -1')
        a('s_waitcnt lgkmcnt(0)')
        for e in range(4): a(f'v_add_f32 v{48+e}, v{48+e}, v{52+e}\nv_add_f32 v{56+e}, v{56+e}, v{60+e}')
        for e in range(4): a(f'v_add_f32 v{48+e}, v{48+e}, v{56+e}')
        for e in range(4): a(f'v_min_u32 v{48+e}, -2, v{48+e}')
        a("""global_store_dwordx4 v45, v[48:51], s[38:39] sc1
        s_mov_b64 exec, -1""")
        s.stamp(4)
        a("""L_pubd:
        s_cmp_ge_u32 s66, 2
        s_cbranch_scc1 L_end
        s_barrier""")
        s.ffn_wregs(streamer=False)

    def tail(s):
        a = s.a; s.sv = 62
        a(f"""L_tail:
        s_cmp_eq_u32 s66, 0
        s_cbranch_scc0 L_tailB
        s_mul_i32 s7, s3, 1280
        s_add_u32 s7, s7, {WS_H}
        v_lshl_add_u32 v8, v1, 4, s7
        v_lshl_add_u32 v9, v1, 2, s7
        s_mul_i32 s7, s3, {XN2S}
        v_lshl_add_u32 v48, v1, 4, s7
        v_lshl_add_u32 v49, v1, 2, s7
        v_and_b32 v10, 7, v1
        v_mul_u32_u24 v11, {XN2S}, v10
        v_lshrrev_b32 v17, 4, v1
        v_lshl_add_u32 v11, v17, 4, v11
        v_lshlrev_b32 v10, 4, v10
        v_lshl_add_u32 v10, v17, 2, v10
        s_lshl_b32 s7, s67, 1
        s_add_u32 s7, s7, s3
        s_lshl_b32 s7, s7, 7
        s_add_u32 s7, s7, {WS_ACT - 256}
        v_add_u32 v10, s7, v10
        s_mov_b32 s55, {f2u(-L2E):#x}""")
        s.poll(['global_load_dwordx4 v[12:15], v8, s[38:39] sc1', 'global_load_dword v16, v9, s[38:39] offset:1024 sc1'],
               [12, 13, 14, 15, 16], 18)
        s.stamp(6)
        s.layernorm(12, 28, 40, False, 20, True)
        s.stamp(10)
        a(f"""ds_write_b128 v48, v[20:23] offset:{XN2}
        ds_write_b32 v49, v24 offset:{XN2+1024}
        s_waitcnt lgkmcnt(0)
        s_barrier
        s_and_b32 s7, s3, 6
        s_cmp_lg_u32 s7, 2
        s_cbranch_scc1 L_end""")
        for m in range(20): a(f'ds_read_b128 v[{144+4*m}:{147+4*m}], v11 offset:{XN2+m*64}')
        for m in range(20):
            a(f's_waitcnt lgkmcnt({min(15, 19-m)})')
            a(f'v_mfma_f32_16x16x32_bf16 v[20:23], v[{64+4*m}:{67+4*m}], v[{144+4*m}:{147+4*m}], ' + ('0' if m == 0 else 'v[20:23]'))
        a("""s_nop 7
        v_cvt_pk_bf16_f32 v20, v20, v21
        v_cvt_pk_bf16_f32 v22, v22, v23
        v_lshlrev_b32 v24, 16, v20
        v_and_b32 v25, 0xffff0000, v20
        v_mul_f32 v26, s55, v24
        v_mul_f32 v27, s55, v25
        v_exp_f32 v26, v26
        v_exp_f32 v27, v27
        v_lshlrev_b32 v28, 16, v22
        v_add_f32 v26, 1.0, v26
        v_add_f32 v27, 1.0, v27
        v_rcp_f32 v26, v26
        v_rcp_f32 v27, v27
        v_and_b32 v29, 0xffff0000, v22
        v_mul_f32 v24, v24, v26
        v_mul_f32 v25, v25, v27
        v_cvt_pk_bf16_f32 v24, v24, v25
        v_lshlrev_b32 v26, 16, v24
        v_and_b32 v27, 0xffff0000, v24
        v_mul_f32 v26, v26, v28
        v_mul_f32 v27, v27, v29
        v_cvt_pk_bf16_f32 v26, v26, v27
        v_min_u32 v24, -2, v26
        v_min_u32 v25, -2, v26
        s_nop 1
        v_permlane16_swap_b32 v24, v25
        v_mov_b32 v26, v24
        v_mov_b32 v27, v25
        s_nop 0
        v_permlane32_swap_b32 v24, v26
        v_permlane32_swap_b32 v25, v27
        s_mov_b64 exec, 0xff
        global_store_dwordx4 v10, v[24:27], s[38:39] sc1""")
        s.stamp(7)
        a('s_endpgm')
        a(f"""L_tailB:
        v_and_b32 v10, 7, v1
        v_lshrrev_b32 v17, 4, v1
        v_lshlrev_b32 v8, 4, v10
        v_lshl_add_u32 v8, v17, 7, v8
        s_lshl_b32 s7, s3, 9
        s_add_u32 s7, s7, {WS_ACT}
        v_add_u32 v8, s7, v8
        v_add_u32 v9, 0x2000, v8
        v_add_u32 v11, 0x4000, v8
        s_movk_i32 s8, 0x5000
        s_cmp_lt_u32 s3, 6
        s_cselect_b32 s8, 0x6000, s8
        v_add_u32 v12, s8, v8
        v_mul_u32_u24 v13, 1280, v10
        v_lshl_add_u32 v13, v17, 3, v13
        s_lshl_b32 s7, s67, 5
        v_add_u32 v13, s7, v13
        v_add_u32 v14, {WS_H}, v13
        v_lshlrev_b32 v60, 6, v10
        v_lshl_add_u32 v60, v17, 4, v60
        s_lshl_b32 s7, s3, 9
        v_add_u32 v61, s7, v60
        s_add_u32 s68, s38, 4096
        s_addc_u32 s69, s39, 0
        s_cmp_lg_u32 s3, 3
        s_cbranch_scc1 L_noh""")
        s.poll(['global_load_dwordx2 v[18:19], v14, s[38:39] sc1'], [18, 19], 15)
        a('L_noh:')
        if s.gate: a(f's_barrier\ns_sleep {s.gate}')
        loads = []
        for i in range(7):
            base = (8, 8, 9, 9, 11, 11, 12)[i]
            sb = 's[68:69]' if (i < 6 and (i & 1)) else 's[38:39]'
            loads.append(f'global_load_dwordx4 v[{96+4*i}:{99+4*i}], v{base}, {sb} sc1')
        s.poll(loads, list(range(96, 124)), 15)
        s.stamp(6)
        a('s_waitcnt lgkmcnt(0)')
        for i in range(7):
            a(f'v_mfma_f32_16x16x32_bf16 v[20:23], v[{64+4*i}:{67+4*i}], v[{96+4*i}:{99+4*i}], ' + ('0' if i == 0 else 'v[20:23]'))
        a(f"""s_mov_b32 exec_lo, 0x00ff00ff
        s_mov_b32 exec_hi, 0x00ff00ff
        v_lshlrev_b32 v56, 16, v18
        v_and_b32 v57, 0xffff0000, v18
        v_lshlrev_b32 v58, 16, v19
        v_and_b32 v59, 0xffff0000, v19
        s_nop 1
        ds_write_b128 v61, v[20:23] offset:{BP}
        s_waitcnt lgkmcnt(0)
        s_barrier
        s_cmp_lg_u32 s3, 3
        s_cbranch_scc1 L_end""")
        for w in range(8): a(f'ds_read_b128 v[{24+4*w}:{27+4*w}], v60 offset:{BP+w*512}')
        a('s_waitcnt lgkmcnt(0)')
        for step in (16, 8, 4):
            for r in range(step): a(f'v_add_f32 v{24+r}, v{24+r}, v{24+step+r}')
        a("""v_cvt_pk_bf16_f32 v24, v24, v25
        v_cvt_pk_bf16_f32 v26, v26, v27
        v_lshlrev_b32 v28, 16, v24
        v_and_b32 v29, 0xffff0000, v24
        v_lshlrev_b32 v30, 16, v26
        v_and_b32 v31, 0xffff0000, v26
        v_add_f32 v24, v56, v28
        v_add_f32 v25, v57, v29
        v_add_f32 v26, v58, v30
        v_add_f32 v27, v59, v31
        v_cvt_pk_bf16_f32 v24, v24, v25
        v_cvt_pk_bf16_f32 v25, v26, v27
        global_store_dwordx2 v13, v[24:25], s[34:35] """ + s.opol)
        s.stamp(7)

    def text(s):
        s.gen()
        body = '\n'.join(s.L)
        k = NAME + '_kernel'
        return f"""{HEADER}; @launch grid=(256,1,1) block=(512,1,1) lds={LDS_BYTES}
.amdgcn_target "amdgcn-amd-amdhsa--gfx950"
.text
.globl {k}
.p2align 8
.type {k},@function
{k}:
{body}
.section .rodata,"a"
.p2align 6
.amdhsa_kernel {k}
  .amdhsa_next_free_vgpr 256
  .amdhsa_next_free_sgpr 102
  .amdhsa_accum_offset 256
  .amdhsa_group_segment_fixed_size 0
  .amdhsa_kernarg_size 96
  .amdhsa_user_sgpr_count 2
  .amdhsa_user_sgpr_kernarg_segment_ptr 1
  .amdhsa_system_sgpr_workgroup_id_x 1
  .amdhsa_float_denorm_mode_32 3
.end_amdhsa_kernel
"""

def parse_kw(args):
    kw = {}
    for x in args:
        k, v = x.split('=')
        try: v = int(v)
        except ValueError: v = v.replace('+', ' ').replace('-', '')
        kw[k] = v
    return kw

if __name__ == '__main__':
    open(sys.argv[1], 'w').write(G(**parse_kw(sys.argv[2:])).text())
```

```python
import sys, struct

NAME = 'sequential_preLN__mha_block_cached__swiglu_ffn__decode'
def f2u(x): return struct.unpack('<I', struct.pack('<f', x))[0]

HEADER = """; Kernarg layout for this problem (96 bytes, ptrs only, base s[0:1]):
;
"""

WS_P   = 0
WS_H   = 256*2560
WS_ACT = WS_H + 10240
WS_STAMP = 1 << 20

XD  = 0
QP  = 5120
OP  = 7168
ST  = 9216
SC0 = 9344
SCW = 64*64
WOP = SC0 + 4*SCW
XN2 = WOP + 10240
XN2S = 1296
BP  = XN2
IMG = XN2 + 8*XN2S
LDS_BYTES = IMG + 57344
L2E = 1.4426950408889634

DEF = dict(D=5, D0=6, DP=6, DE=8, NE=6, NP=48, N0=8, WB=40, HP=4, FQ=16, kvpol='nt', wpol='', fpol='', opol='',
           stamps=0, spin=1 << 19, psleep=0, defer=0, gate=0, NB1=3, DS=4, flat=1, XE=4, mst=0, nowo=0, nowq=0, noffn=0)

class G:
    def __init__(s, **kw):
        for k, v in DEF.items(): setattr(s, k, v)
        for k, v in kw.items():
            assert k in DEF, k
            setattr(s, k, v)
        s.L = []; s.nl = 0; s.sv = 62
    def a(s, t):
        for line in t.strip('\n').split('\n'):
            line = line.strip()
            if line: s.L.append(line if line.endswith(':') else '    ' + line)
    def lab(s, p):
        s.nl += 1; return f'L_{p}_{s.nl}'
    def stamp_reg(s, r):
        if s.stamps: s.a(f's_memrealtime s[{r}:{r+1}]')
    def stamp(s, idx, r=None):
        if not s.stamps: return
        s.a('s_memrealtime s[92:93]' if r is None else 's_nop 0')
        s.a('s_waitcnt lgkmcnt(0)')
        if r is not None: s.a(f's_mov_b32 s92, s{r}')
        s.a(f"""s_mov_b64 s[94:95], exec
        s_mov_b64 exec, 1
        s_lshl_b32 s93, s2, 3
        s_add_u32 s93, s93, s3
        s_lshl_b32 s93, s93, 6
        s_add_u32 s93, s93, {WS_STAMP + idx*4}
        v_mov_b32 v{s.sv}, s93
        v_mov_b32 v{s.sv+1}, s92
        global_store_dword v{s.sv}, v{s.sv+1}, s[38:39]
        s_mov_b64 exec, s[94:95]""")

    def mstamp(s, idx, r=None):
        if not s.mst: return
        keep = s.stamps; s.stamps = 1
        n0 = len(s.L)
        s.stamp(idx, r)
        s.L[n0:] = [l + ' sc1' if 'global_store' in l else l for l in s.L[n0:]]
        s.stamps = keep
    def wave_sum(s, v, sd):
        for c in ('row_ror:8', 'row_ror:4', 'row_ror:2', 'row_ror:1'):
            s.a(f's_nop 1\nv_add_f32_dpp v{v}, v{v}, v{v} {c} row_mask:0xf bank_mask:0xf')
        s.a(f's_nop 1\nv_add_f32_dpp v{v}, v{v}, v{v} row_bcast:15 row_mask:0xa bank_mask:0xf')
        s.a(f's_nop 1\nv_add_f32_dpp v{v}, v{v}, v{v} row_bcast:31 row_mask:0xc bank_mask:0xf')
        s.a(f's_nop 1\nv_readlane_b32 s{sd}, v{v}, 63')

    def layernorm(s, src, f, t, dup, o, fast):
        a = s.a
        for i in range(5):
            a(f'v_lshlrev_b32 v{f+2*i}, 16, v{src+i}\nv_and_b32 v{f+2*i+1}, 0xffff0000, v{src+i}')
        a(f's_mov_b32 s61, {f2u(1.0/640):#x}')
        if fast:
            a(f'v_readfirstlane_b32 s59, v{f}\ns_nop 1')
            a(f'v_subrev_f32 v{t}, s59, v{f+1}\nv_mul_f32 v{t+2}, v{t}, v{t}')
            for i in [0] + list(range(2, 10)):
                a(f'v_subrev_f32 v{t+1}, s59, v{f+i}\nv_add_f32 v{t}, v{t}, v{t+1}\nv_fmac_f32 v{t+2}, v{t+1}, v{t+1}')
            for c in ('row_ror:8 row_mask:0xf', 'row_ror:4 row_mask:0xf', 'row_ror:2 row_mask:0xf', 'row_ror:1 row_mask:0xf',
                      'row_bcast:15 row_mask:0xa', 'row_bcast:31 row_mask:0xc'):
                a(f's_nop 0\nv_add_f32_dpp v{t}, v{t}, v{t} {c} bank_mask:0xf\nv_add_f32_dpp v{t+2}, v{t+2}, v{t+2} {c} bank_mask:0xf')
            a(f'v_readlane_b32 s60, v{t}, 63\nv_readlane_b32 s58, v{t+2}, 63\ns_nop 0')
            a(f'v_mov_b32 v{t}, s60\nv_mov_b32 v{t+2}, s58\nv_mul_f32 v{t}, s61, v{t}\nv_mul_f32 v{t+2}, s61, v{t+2}')
            a(f'v_fma_f32 v{t+2}, -v{t}, v{t}, v{t+2}\nv_add_f32 v{t}, s59, v{t}\nv_max_f32 v{t+2}, 0, v{t+2}')
            a(f'v_cvt_pk_bf16_f32 v{t}, v{t}, v{t+2}\nv_and_b32 v{t+2}, 0xffff0000, v{t}\nv_lshlrev_b32 v{t}, 16, v{t}')
        else:
            a(f'v_add_f32 v{t}, v{f}, v{f+1}')
            for i in range(2, 10): a(f'v_add_f32 v{t}, v{t}, v{f+i}')
            s.wave_sum(t, 60)
            a(f's_nop 1\nv_mov_b32 v{t}, s60\nv_mul_f32 v{t}, s61, v{t}')
            a(f'v_sub_f32 v{t+1}, v{f}, v{t}\nv_mul_f32 v{t+2}, v{t+1}, v{t+1}')
            for i in range(1, 10):
                a(f'v_sub_f32 v{t+1}, v{f+i}, v{t}\nv_fmac_f32 v{t+2}, v{t+1}, v{t+1}')
            s.wave_sum(t+2, 60)
            a(f'v_cvt_pk_bf16_f32 v{t}, v{t}, v{t}\nv_lshlrev_b32 v{t}, 16, v{t}')
            a(f'v_mov_b32 v{t+2}, s60\nv_mul_f32 v{t+2}, s61, v{t+2}')
            a(f'v_cvt_pk_bf16_f32 v{t+2}, v{t+2}, v{t+2}\nv_lshlrev_b32 v{t+2}, 16, v{t+2}')
        a(f'v_add_f32 v{t+2}, {f2u(1e-5):#x}, v{t+2}')
        a(f'v_cvt_pk_bf16_f32 v{t+2}, v{t+2}, v{t+2}\nv_lshlrev_b32 v{t+2}, 16, v{t+2}')
        a(f'v_sqrt_f32 v{t+2}, v{t+2}')
        for i in range(10): a(f'v_sub_f32 v{f+i}, v{f+i}, v{t}')
        a(f'v_cvt_pk_bf16_f32 v{t+2}, v{t+2}, v{t+2}\nv_lshlrev_b32 v{t+2}, 16, v{t+2}')
        a(f'v_rcp_f32 v{t+3}, v{t+2}')
        for i in range(5): a(f'v_cvt_pk_bf16_f32 v{o+i}, v{f+2*i}, v{f+2*i+1}')
        for i in range(5):
            a(f'v_lshlrev_b32 v{f+2*i}, 16, v{o+i}\nv_and_b32 v{f+2*i+1}, 0xffff0000, v{o+i}')
        for i in range(10):
            if fast: a(f'v_mul_f32 v{f+i}, v{f+i}, v{t+3}')
            else: a(f'v_mul_f32 v{t}, v{f+i}, v{t+3}\nv_fma_f32 v{t+1}, -v{t}, v{t+2}, v{f+i}\nv_fma_f32 v{f+i}, v{t+1}, v{t+3}, v{t}')
        if dup:
            for i in range(10): a(f'v_cvt_pk_bf16_f32 v{f+i}, v{f+i}, v{f+i}')
        else:
            for i in range(5): a(f'v_cvt_pk_bf16_f32 v{o+i}, v{f+2*i}, v{f+2*i+1}')

    def poll(s, loads, regs, t):
        a = s.a
        lp = s.lab('poll'); ld = s.lab('polld')
        a(f's_mov_b64 s[62:63], exec\ns_mov_b32 s64, {s.spin}')
        a(f'{lp}:')
        for l in loads: a(l)
        a('s_waitcnt vmcnt(0)')
        r = list(regs)
        if len(r) == 2: a(f'v_max_u32 v{t}, v{r[0]}, v{r[1]}'); r = []
        else:
            a(f'v_max3_u32 v{t}, v{r[0]}, v{r[1]}, v{r[2]}'); r = r[3:]
        while len(r) >= 2:
            a(f'v_max3_u32 v{t}, v{t}, v{r[0]}, v{r[1]}'); r = r[2:]
        if r: a(f'v_max_u32 v{t}, v{t}, v{r[0]}')
        a(f'v_cmpx_eq_u32 vcc, -1, v{t}')
        a(f's_cbranch_execz {ld}')
        if s.psleep: a(f's_sleep {s.psleep}')
        a(f's_sub_u32 s64, s64, 1\ns_cbranch_scc0 {lp}')
        a(f'{ld}:')
        a('s_mov_b64 exec, s[62:63]\ns_nop 2')

    def roles(s):
        s.a("""s_and_b32 s12, s2, 7
        s_lshr_b32 s13, s2, 3
        s_mul_i32 s67, s12, 14
        s_add_u32 s67, s67, s13
        s_mov_b32 s66, 0
        s_cmp_ge_u32 s67, 108
        s_cselect_b32 s66, 3, s66
        s_mul_i32 s14, s12, 5
        s_add_u32 s14, s14, s13
        s_sub_u32 s14, s14, 14
        s_cmp_ge_u32 s13, 14
        s_cselect_b32 s66, 1, s66
        s_cselect_b32 s67, s14, s67
        s_sub_u32 s14, s13, 19
        s_cmp_ge_u32 s13, 19
        s_cselect_b32 s66, 2, s66
        s_cselect_b32 s67, s14, s67
        s_cmp_ge_u32 s13, 29
        s_cselect_b32 s66, 3, s66
        s_cselect_b32 s67, 0, s67""")

    def masks(s):
        s.a("""v_and_b32 v8, 15, v1
        v_and_b32 v9, 1, v1
        v_lshlrev_b32 v9, 4, v9
        v_mov_b32 v10, 0xffff
        v_lshlrev_b32 v10, v9, v10
        v_lshrrev_b32 v11, 1, v8""")
        for m in range(4):
            s.a(f'v_cmp_eq_u32 vcc, {m}, v11\ns_nop 1\nv_cndmask_b32 v{4+m}, 0, v10, vcc')

    def gen(s):
        a = s.a
        s.stamp_reg(80)
        if s.mst: a('s_memrealtime s[80:81]')
        a("""s_cmp_ge_u32 s2, 256
        s_cbranch_scc1 L_end
        s_load_dwordx16 s[16:31], s[0:1], 0
        s_load_dwordx8 s[32:39], s[0:1], 64
        v_lshrrev_b32 v2, 6, v0
        v_and_b32 v1, 63, v0
        v_readfirstlane_b32 s3, v2
        s_lshr_b32 s4, s2, 5
        s_and_b32 s5, s2, 31
        s_cmp_ge_u32 s3, 4
        s_cbranch_scc1 L_helper""")
        s.streamer()
        s.helper()
        s.tail()
        a('L_end:\ns_endpgm')

    def stage_setup(s, T):
        a = s.a
        lb = s.lab('sgB'); ld = s.lab('sgD')
        a(f"""v_lshrrev_b32 v8, 1, v{T}
        v_and_b32 v9, 1, v{T}
        s_lshl_b32 s8, s67, 5
        s_mov_b32 s71, 0x20000
        s_mov_b32 s75, 0x20000
        s_sub_u32 s70, 2211840, s8
        s_mov_b32 s74, s70
        s_mov_b32 s76, 0
        s_cmp_eq_u32 s66, 0
        s_cbranch_scc0 {lb}
        s_add_u32 s68, s28, s8
        s_addc_u32 s69, s29, 0
        s_add_u32 s72, s30, s8
        s_addc_u32 s73, s31, 0
        s_mov_b32 s7, 3456
        v_mul_lo_u32 v10, v8, s7
        v_lshl_add_u32 v10, v9, 4, v10
        v_lshlrev_b32 v11, 5, v{T}
        s_branch {ld}
        {lb}:
        s_add_u32 s68, s32, s8
        s_addc_u32 s69, s33, 0
        s_mov_b32 s72, s68
        s_mov_b32 s73, s69
        v_mul_u32_u24 v10, 1280, v8
        v_lshl_add_u32 v10, v9, 4, v10
        v_lshlrev_b32 v11, 4, v{T}
        {ld}:
        v_add_u32 v11, {IMG}, v11""")
    def ldA(s, k, R):
        srd = 's[68:71]' if (k & 1) == 0 else 's[72:75]'
        t = f'buffer_load_dwordx4 v[{R+4*k}:{R+4*k+3}], v10, {srd}, s76 offen {s.fpol}'
        post = f's_add_u32 s76, s76, {128*3456}' if k & 1 else ''
        return t, post
    def ldB(s, k, R):
        return f'buffer_load_dwordx4 v[{R+4*k}:{R+4*k+3}], v10, s[68:71], s76 offen {s.fpol}', f's_add_u32 s76, s76, {128*1280}'
    def wrA(s, kb, R):
        for q in range(4):
            s.a(f'ds_write2_b32 v11, v{R+8*kb+q}, v{R+8*kb+4+q} offset0:{2*q} offset1:{2*q+1}')
        if kb < 4: s.a('v_add_u32 v11, 8192, v11')
    def wrB(s, k, R):
        s.a(f'ds_write_b128 v11, v[{R+4*k}:{R+4*k+3}] offset:{k*4096}')

    def ffn_wregs(s, streamer):
        a = s.a
        la = s.lab('wa'); ld = s.lab('wd')
        a(f"""v_lshrrev_b32 v46, 4, v1
        v_lshlrev_b32 v46, 3, v46
        v_bfe_u32 v47, v1, 2, 2
        v_add_u32 v46, v46, v47
        v_and_b32 v47, 3, v1
        v_lshlrev_b32 v47, 3, v47
        v_add_u32 v47, {IMG}, v47
        s_cmp_eq_u32 s66, 0
        s_cbranch_scc1 {la}
        v_lshl_add_u32 v46, v46, 5, v47
        s_lshl_b32 s7, s3, 10
        v_add_u32 v46, s7, v46""")
        for i in range(7):
            a(f'ds_read_b64_tr_b16 v[{64+4*i}:{65+4*i}], v46 offset:{i*8192}')
            a(f'ds_read_b64_tr_b16 v[{66+4*i}:{67+4*i}], v46 offset:{i*8192+128}')
        a(f's_branch {ld}\n{la}:')
        if streamer:
            a(f"""s_cmp_lt_u32 s3, 2
            s_cbranch_scc1 {ld}
            v_lshl_add_u32 v46, v46, 6, v47
            s_sub_u32 s7, s3, 2
            s_lshl_b32 s7, s7, 5
            v_add_u32 v46, s7, v46""")
            for m in range(20):
                a(f'ds_read_b64_tr_b16 v[{64+4*m}:{65+4*m}], v46 offset:{m*2048}')
                a(f'ds_read_b64_tr_b16 v[{66+4*m}:{67+4*m}], v46 offset:{m*2048+256}')
        a(f'{ld}:')

    def streamer(s):
        a = s.a; D = s.D; R0 = 64; NP = s.NP; R = 16; s.sv = 62
        assert NP % 16 == 0
        slot = lambda p: f'v[{R0+4*p}:{R0+4*p+3}]'
        def issue(p, t):
            a(f'buffer_load_dwordx4 {slot(p)}, v2, s[40:43], s44 offen offset:{t*1024} {s.kvpol}')
            if t == 3: a('s_add_u32 s44, s44, 16384')
        a("""v_bfe_u32 v2, v1, 2, 2
        v_lshlrev_b32 v2, 8, v2
        v_lshrrev_b32 v3, 4, v1
        v_lshl_add_u32 v2, v3, 6, v2
        v_and_b32 v3, 3, v1
        v_lshl_add_u32 v2, v3, 4, v2
        s_lshl_b32 s6, s2, 20
        s_lshl_b32 s44, s3, 12
        s_mov_b32 s42, 0x100000
        s_mov_b32 s43, 0x20000
        s_waitcnt lgkmcnt(0)
        s_add_u32 s40, s18, s6
        s_addc_u32 s41, s19, 0""")
        s.stamp_reg(82)
        for i in range(s.D0): issue(i, i & 3)
        s.stamp(0); s.stamp(11, 80); s.stamp(12, 82)
        a("""s_add_u32 s48, s20, s6
        s_addc_u32 s49, s21, 0
        v_lshlrev_b32 v3, 4, v1""")
        s.roles()
        a("""v_and_b32 v8, 15, v1
        v_lshlrev_b32 v8, 3, v8
        s_min_u32 s8, s67, 9
        s_lshl_b32 s8, s8, 7
        s_mul_i32 s7, s12, 1280
        s_add_u32 s7, s7, s8
        v_add_u32 v44, s7, v8
        global_load_dwordx2 v[42:43], v44, s[16:17]""")
        s.masks()
        a(f"""s_mov_b32 s50, 0xaaaaaaaa
        s_mov_b32 s51, 0xaaaaaaaa
        s_mov_b32 s52, 0xcccccccc
        s_mov_b32 s53, 0xcccccccc
        s_mov_b32 s54, {f2u(128**-0.5):#x}
        s_mov_b32 s55, {f2u(L2E):#x}
        v_mov_b32 v34, 0xff7fffff
        v_mov_b32 v36, 0
        s_mul_i32 s7, s3, {SCW}
        s_add_u32 s7, s7, {SC0}
        v_and_b32 v35, 60, v1
        v_add_u32 v35, s7, v35
        v_lshrrev_b32 v8, 4, v1
        v_lshlrev_b32 v8, 2, v8
        v_and_b32 v9, 3, v1
        v_add_u32 v8, v8, v9
        v_lshlrev_b32 v45, 5, v8
        s_lshl_b32 s7, s3, 4
        v_mov_b32 v61, s7
        ds_write_b32 v61, v36 offset:{ST+8}
        v_and_b32 v8, 15, v1
        v_lshlrev_b32 v8, 5, v8
        v_lshrrev_b32 v9, 4, v1
        v_lshl_add_u32 v8, v9, 4, v8
        s_lshl_b32 s7, s3, 9
        v_add_u32 v60, s7, v8
        s_waitcnt lgkmcnt(0)""")
        for i in range(s.D0, NP):
            a(f's_waitcnt vmcnt({s.DP-1})')
            issue(i, i & 3)
        s.stamp(4)
        a('s_barrier')
        s.stamp(1)
        a(f"""ds_read_b128 v[46:49], v45 offset:{QP}
        ds_read_b128 v[50:53], v45 offset:{QP+16}
        ds_read_b128 v[54:57], v45 offset:{QP+512}
        ds_read_b128 v[16:19], v45 offset:{QP+512+16}
        ds_read_b128 v[24:27], v45 offset:{QP+1024}
        ds_read_b128 v[28:31], v45 offset:{QP+1024+16}
        ds_read_b128 v[8:11], v45 offset:{QP+1536}
        ds_read_b128 v[12:15], v45 offset:{QP+1536+16}
        s_waitcnt lgkmcnt(0)""")
        for e in range(8):
            b1 = 54+e if e < 4 else 12+e
            a(f'v_add_f32 v{46+e}, v{46+e}, v{b1}\nv_add_f32 v{24+e}, v{24+e}, v{8+e}')
        for e in range(8): a(f'v_add_f32 v{46+e}, v{46+e}, v{24+e}')
        for m in range(4): a(f'v_cvt_pk_bf16_f32 v{54+m}, v{46+2*m}, v{47+2*m}')
        for t in range(4):
            mk = 0x000f000f << (4*t)
            a(f's_mov_b32 s56, {mk:#x}\ns_mov_b32 s57, {mk:#x}')
            for m in range(4): a(f'v_cndmask_b32 v{8+4*t+m}, 0, v{54+m}, s[56:57]')
        a('s_nop 1')
        Dreg = lambda g: 24 + 4*(g & 1)
        def post1(g):
            d = Dreg(g)
            a(f"""s_nop 1
            v_cndmask_b32 v32, v{d}, v{d+1}, s[50:51]
            v_cndmask_b32 v33, v{d+2}, v{d+3}, s[50:51]
            v_cndmask_b32 v32, v32, v33, s[52:53]
            s_nop 1
            v_add_f32_dpp v32, v32, v32 quad_perm:[1,0,3,2] row_mask:0xf bank_mask:0xf
            s_nop 1
            v_add_f32_dpp v32, v32, v32 quad_perm:[2,3,0,1] row_mask:0xf bank_mask:0xf""")
        def post2a(off):
            a(f"""v_cvt_pk_bf16_f32 v32, v32, v32
            v_lshlrev_b32 v32, 16, v32
            v_mul_f32 v32, s54, v32
            v_cvt_pk_bf16_f32 v32, v32, v32
            v_lshlrev_b32 v32, 16, v32
            v_max_f32 v33, v34, v32
            ds_write_b32 v35, v32 offset:{off}""")
        def post2b():
            a("""v_sub_f32 v40, v34, v33
            v_sub_f32 v46, v32, v33
            v_mul_f32 v40, s55, v40
            v_mul_f32 v46, s55, v46
            v_exp_f32 v40, v40
            v_exp_f32 v46, v46
            v_mov_b32 v34, v33
            v_fma_f32 v36, v36, v40, v46""")
        def post2(off):
            post2a(off); post2b()
        def kcons(p, gi, t):
            d = Dreg(gi)
            c = '0' if t == 0 else f'v[{d}:{d+3}]'
            a(f'v_mfma_f32_16x16x32_bf16 v[{d}:{d+3}], {slot(p)}, v[{8+4*t}:{11+4*t}], {c}')
        nis = 0
        per = max(1, (NP - 1) // 15)
        for i in range(NP):
            gi, t = i >> 2, i & 3
            need = (NP + nis - 1) - i
            if i >= NP - s.DP: a(f's_waitcnt vmcnt({min(need, 63)})')
            kcons(i, gi, t)
            if gi > 0 and t == 2: a('s_nop 3'); post1(gi - 1)
            if gi > 0 and t == 3: post2((gi - 1) * 64)
            if nis < 15 and i >= nis and (i + 1) % per == 0:
                a(f's_waitcnt vmcnt({D-1})')
                issue(nis, nis & 3); nis += 1
        assert nis == 15, nis
        a(f'v_add_u32 v35, {(NP//4-1)*64}, v35')
        nk = (256 - NP) // R
        a('s_mov_b32 s45, 0')
        a('L_kloop:')
        for st in range(R):
            gi, t = st >> 2, st & 3
            a(f's_waitcnt vmcnt({D-1})')
            issue((st - 1) % R, (st - 1) & 3)
            if st == 0:
                a(f"""s_cmp_lg_u32 s45, {nk-1}
                s_cbranch_scc1 L_nosw
                s_mov_b32 s40, s48
                s_mov_b32 s41, s49
                s_lshl_b32 s44, s3, 12
                v_mov_b32 v2, v3
                L_nosw:""")
            kcons(st, gi, t)
            if s.flat:
                if t == 1: post1(gi - 1)
                if t == 2: post2a(gi * 64)
                if t == 3: post2b()
            else:
                if t == 2: post1(gi - 1)
                if t == 3: post2(gi * 64)
        a(f"""v_add_u32 v35, {R*16}, v35
        s_add_u32 s45, s45, 1
        s_cmp_lt_u32 s45, {nk}
        s_cbranch_scc1 L_kloop""")
        XE = s.XE; RV = 32 if XE else 16; LAG = 15 + XE
        xi = [0]
        def xissue():
            if xi[0] < XE:
                j = 15 + xi[0]; xi[0] += 1
                a(f's_waitcnt vmcnt({D-1})'); issue(j, j & 3)
        xissue()
        post1(1); post2(0)
        xissue()
        a(f"""s_nop 0
        v_max_f32_dpp v33, v34, v34 row_ror:4 row_mask:0xf bank_mask:0xf
        v_subrev_u32 v35, {63*64}, v35
        v_mov_b32 v28, 0
        v_max_f32_dpp v33, v33, v33 row_ror:8 row_mask:0xf bank_mask:0xf
        v_mov_b32 v29, 0
        v_readlane_b32 s56, v33, 0
        v_readlane_b32 s57, v33, 16
        v_readlane_b32 s58, v33, 32
        v_readlane_b32 s59, v33, 48
        v_mov_b32 v30, 0
        v_mov_b32 v48, s56
        v_max_f32 v48, s57, v48
        v_max_f32 v48, s58, v48
        v_max_f32 v48, s59, v48
        v_sub_f32 v40, v34, v48
        v_mul_f32 v40, s55, v40
        v_exp_f32 v40, v40
        v_mov_b32 v31, 0
        v_mul_f32 v36, v36, v40
        v_mov_b32 v50, 1
        v_mov_b32 v51, 1
        v_add_f32_dpp v36, v36, v36 row_ror:4 row_mask:0xf bank_mask:0xf
        s_nop 1
        v_add_f32_dpp v36, v36, v36 row_ror:8 row_mask:0xf bank_mask:0xf
        s_nop 0
        v_readlane_b32 s56, v36, 0
        v_readlane_b32 s57, v36, 16
        v_readlane_b32 s58, v36, 32
        v_readlane_b32 s59, v36, 48
        v_mov_b32 v33, 0
        v_mov_b32 v49, s56
        v_add_f32 v49, s57, v49
        v_add_f32 v49, s58, v49
        v_add_f32 v49, s59, v49
        ds_write_b128 v61, v[48:51] offset:{ST}""")
        xissue()
        a(f"""s_mov_b32 s64, {s.spin}
        L_stw:
        ds_read_b128 v[8:11], v33 offset:{ST}
        ds_read_b128 v[12:15], v33 offset:{ST+16}
        ds_read_b128 v[16:19], v33 offset:{ST+32}
        ds_read_b128 v[20:23], v33 offset:{ST+48}
        ds_read_b32 v39, v35
        s_waitcnt lgkmcnt(0)
        v_and_b32 v40, v10, v14
        v_and_b32 v46, v18, v22
        v_and_b32 v40, v40, v46
        s_nop 0
        v_readfirstlane_b32 s7, v40
        s_cmp_lg_u32 s7, 0
        s_cbranch_scc1 L_stwd
        s_sub_u32 s64, s64, 1
        s_cbranch_scc0 L_stw
        L_stwd:""")
        while xi[0] < XE: xissue()
        a(f"""v_max_f32 v41, v8, v12
        v_max3_f32 v41, v41, v16, v20
        v_sub_f32 v8, v8, v41
        v_sub_f32 v12, v12, v41
        v_sub_f32 v16, v16, v41
        v_sub_f32 v20, v20, v41
        v_mul_f32 v8, s55, v8
        v_mul_f32 v12, s55, v12
        v_mul_f32 v16, s55, v16
        v_mul_f32 v20, s55, v20
        v_exp_f32 v8, v8
        v_exp_f32 v12, v12
        v_exp_f32 v16, v16
        v_exp_f32 v20, v20
        v_mul_f32 v40, v8, v9
        v_fmac_f32 v40, v12, v13
        v_fmac_f32 v40, v16, v17
        v_fmac_f32 v40, v20, v21
        v_rcp_f32 v47, v40
        s_nop 0
        v_fma_f32 v46, -v40, v47, 1.0
        v_fmac_f32 v47, v46, v47""")
        s.stamp(2)
        def prep(g):
            a(f"""s_waitcnt lgkmcnt(0)
            v_sub_f32 v39, v39, v41
            v_mul_f32 v39, s55, v39
            v_exp_f32 v39, v39
            s_nop 0
            v_mul_f32 v39, v39, v47
            v_cvt_pk_bf16_f32 v{37+(g&1)}, v39, v39""")
        prep(0)
        a('s_nop 0')
        def vstep(st, Dv, left=None):
            gi, t = st >> 2, st & 3
            if left is None or left > LAG:
                a(f's_waitcnt vmcnt({Dv-1})')
                issue((st + LAG) % RV, (st + LAG) & 3)
            elif left - 1 < Dv:
                a(f's_waitcnt vmcnt({left-1})')
            fin = left is not None and left <= 4
            if t == 0 and not fin: a(f'ds_read_b32 v39, v35 offset:{(gi+1)*64}')
            for m in range(4):
                a(f'v_and_b32_dpp v{24+m}, v{37+(gi&1)}, v{4+m} row_newbcast:{4*t} row_mask:0xf bank_mask:0xf')
            a('s_nop 1')
            a(f'v_mfma_f32_16x16x32_bf16 v[28:31], v[24:27], {slot(st)}, v[28:31]')
            if t == 2 and not fin: prep(gi + 1)
        def vloop(name, n, Dv):
            if n == 0: return
            a(f's_mov_b32 s45, 0\n{name}:')
            for st in range(RV): vstep(st, Dv)
            a(f"""v_add_u32 v35, {RV*16}, v35
            s_add_u32 s45, s45, 1
            s_cmp_lt_u32 s45, {n}
            s_cbranch_scc1 {name}""")
        ne = s.NE * 16 // RV
        vloop('L_vloop', 256//RV - 1 - ne, D)
        vloop('L_vloop2', ne, s.DE)
        if s.defer:
            a('s_lshl_b32 s7, s3, 6\nv_add_u32 v18, s7, v1')
            s.stage_setup(18)
        for st in range(RV): vstep(st, s.DE, RV - st)
        a(f"""s_mov_b32 exec_hi, 0
        s_nop 6
        ds_write_b128 v60, v[28:31] offset:{OP}
        s_mov_b64 exec, -1
        s_waitcnt lgkmcnt(0)""")
        s.stamp(3)
        if s.mst: a('s_memrealtime s[82:83]')
        a('s_barrier')
        s.mstamp(11, 80); s.mstamp(3, 82)
        SR = 192
        if s.defer and not s.noffn:
            a('s_cmp_eq_u32 s66, 0\ns_cbranch_scc0 L_d1B')
            for k in range(s.NB1 if s.defer & 1 else 0):
                t, p = s.ldA(k, SR); a(t); a(p)
            a('s_branch L_d1D\nL_d1B:\ns_cmp_eq_u32 s66, 1\ns_cbranch_scc0 L_d1D')
            for k in range(s.NB1 if s.defer & 2 else 0):
                t, p = s.ldB(k, SR); a(t); a(p)
            a('L_d1D:')
        a(f"""s_mul_i32 s7, s12, {32*2560}
        s_lshl_b32 s8, s67, 8
        s_add_u32 s7, s7, s8
        v_lshrrev_b32 v8, 4, v1
        v_mul_u32_u24 v8, 2560, v8
        v_and_b32 v9, 15, v1
        v_lshl_add_u32 v8, v9, 4, v8
        v_add_u32 v48, s7, v8""")
        for i in range(1, 8): a(f'v_add_u32 v{48+i}, 10240, v{47+i}')
        a(f"""v_add_u32 v44, {WS_H}, v44
        s_barrier
        s_cmp_lt_u32 s66, 2
        s_cbranch_scc1 L_s_ffn
        s_cmp_eq_u32 s66, 3
        s_cbranch_scc1 L_end
        s_cmp_lg_u32 s3, 0
        s_cbranch_scc1 L_end""")
        s.stamp(8)
        s.poll([f'global_load_dwordx4 v[{160+4*i}:{163+4*i}], v{48+i}, s[38:39] sc1' for i in range(8)], list(range(160, 192)), 32)
        s.stamp(9)
        for step in (16, 8, 4):
            for r in range(step): a(f'v_add_f32 v{160+r}, v{160+r}, v{160+step+r}')
        for sw in ('v_permlane16_swap_b32', 'v_permlane32_swap_b32'):
            for r in range(4): a(f'v_mov_b32 v{164+r}, v{160+r}')
            for r in range(4): a(f'{sw} v{160+r}, v{164+r}')
            for r in range(4): a(f'v_add_f32 v{160+r}, v{160+r}, v{164+r}')
        a("""v_cvt_pk_bf16_f32 v24, v160, v161
        v_cvt_pk_bf16_f32 v26, v162, v163
        v_lshlrev_b32 v28, 16, v24
        v_and_b32 v29, 0xffff0000, v24
        v_lshlrev_b32 v30, 16, v26
        v_and_b32 v31, 0xffff0000, v26
        v_lshlrev_b32 v24, 16, v42
        v_and_b32 v25, 0xffff0000, v42
        v_lshlrev_b32 v26, 16, v43
        v_and_b32 v27, 0xffff0000, v43
        v_add_f32 v24, v24, v28
        v_add_f32 v25, v25, v29
        v_add_f32 v26, v26, v30
        v_add_f32 v27, v27, v31
        v_cvt_pk_bf16_f32 v24, v24, v25
        v_cvt_pk_bf16_f32 v25, v26, v27
        v_min_u32 v24, -2, v24
        v_min_u32 v25, -2, v25
        s_nop 0
        v_mov_b32_dpp v26, v24 quad_perm:[1,1,3,3] row_mask:0xf bank_mask:0xf
        v_mov_b32_dpp v27, v25 quad_perm:[1,1,3,3] row_mask:0xf bank_mask:0xf
        s_mov_b64 exec, 0x5555
        global_store_dwordx4 v44, v[24:27], s[38:39] sc1""")
        s.stamp(5)
        a('s_endpgm')
        a('L_s_ffn:')
        if s.defer and not s.noffn:
            a('s_cmp_eq_u32 s66, 0\ns_cbranch_scc0 L_d2B')
            if s.defer & 1:
                if s.DS: a(f's_sleep {s.DS}')
                for k in range(s.NB1, 10):
                    t, p = s.ldA(k, SR); a(t); a(p)
                for kb in range(5):
                    a(f's_waitcnt vmcnt({8-2*kb})'); s.wrA(kb, SR)
            a('s_branch L_d2D\nL_d2B:')
            if s.defer & 2:
                if s.DS: a(f's_sleep {s.DS}')
                for k in range(s.NB1, 14):
                    t, p = s.ldB(k, SR); a(t); a(p)
                for k in range(14):
                    a(f's_waitcnt vmcnt({13-k})'); s.wrB(k, SR)
            a('L_d2D:\ns_waitcnt lgkmcnt(0)')
            s.stamp(13)
        a('s_barrier')
        s.ffn_wregs(streamer=True)
        a('s_branch L_tail')

    def helper(s):
        a = s.a; W0 = 96; s.sv = 92
        wreg = lambda i: f'v[{W0+4*i}:{W0+4*i+3}]'
        a('L_helper:')
        s.stamp_reg(84)
        a(f"""s_sub_u32 s9, s3, 4
        v_lshrrev_b32 v2, 4, v1
        v_mul_u32_u24 v2, 40, v2
        s_mul_i32 s7, s9, 160
        v_add_u32 v3, s7, v2
        v_lshlrev_b32 v2, 13, v3
        v_and_b32 v8, 15, v1
        v_lshl_add_u32 v2, v8, 4, v2
        v_lshlrev_b32 v3, 3, v3
        s_mul_i32 s49, s4, 5
        s_lshr_b32 s49, s49, 2
        s_lshl_b32 s49, s49, 4
        v_add_u32 v3, s49, v3
        v_lshlrev_b32 v26, 4, v1
        v_lshlrev_b32 v27, 2, v1
        s_mul_i32 s7, s4, 1280
        s_lshl_b32 s8, s5, 8
        s_mov_b32 s47, 0x20000
        s_sub_u32 s46, 5242880, s8
        s_lshl_b32 s48, s49, 11
        s_waitcnt lgkmcnt(0)
        s_add_u32 s10, s16, s7
        s_addc_u32 s11, s17, 0
        s_add_u32 s44, s22, s8
        s_addc_u32 s45, s23, 0
        global_load_dwordx4 v[12:15], v26, s[10:11]
        global_load_dword v16, v27, s[10:11] offset:1024""")
        def wq_issue(i):
            if s.nowq: return
            a(f'buffer_load_dwordx4 {wreg(i)}, v2, s[44:47], s48 offen {s.wpol}')
            if i < 39:
                a('s_add_u32 s48, s48, 8192')
                if (i & 3) == 3: a(f's_cmp_eq_u32 s48, {40*8192}\ns_cselect_b32 s48, 0, s48')
        N0 = s.N0
        for i in range(N0): wq_issue(i)
        s.roles()
        s.masks()
        a(f"""v_mul_u32_u24 v8, 52429, v1
        v_lshrrev_b32 v8, 18, v8
        v_mul_u32_u24 v8, 160, v8
        v_lshl_add_u32 v8, v1, 5, v8
        v_add_u32 v9, 256, v1
        v_mul_u32_u24 v10, 52429, v9
        v_lshrrev_b32 v10, 20, v10
        v_mul_u32_u24 v10, 160, v10
        v_lshl_add_u32 v9, v9, 3, v10
        s_waitcnt vmcnt({0 if s.nowq else N0})""")
        s.stamp_reg(86)
        s.layernorm(12, 28, 40, True, 20, False)
        a(f"""ds_write_b128 v8, v[28:31] offset:{XD}
        ds_write_b128 v8, v[32:35] offset:{XD+16}
        ds_write_b64 v9, v[36:37] offset:{XD}
        ds_write_b128 v8, v[28:31] offset:{XD+160}
        ds_write_b128 v8, v[32:35] offset:{XD+176}
        ds_write_b64 v9, v[36:37] offset:{XD+160}
        s_waitcnt lgkmcnt(0)""")
        for i in range(10): a(f'ds_read_b128 v[{48+4*i}:{51+4*i}], v3 offset:{XD+16*i}')
        nis = N0
        for i in range(40):
            for _ in range(s.WB + (i == 0)):
                if nis < 40: wq_issue(nis); nis += 1
            if i == 0: a('s_waitcnt lgkmcnt(0)')
            ar = 28 + 4*(i & 1)
            for m in range(4): a(f'v_and_b32 v{ar+m}, v{48+i}, v{4+m}')
            a(f's_waitcnt vmcnt({nis-1-i})')
            if i == 20: s.stamp_reg(88)
            a('s_nop 0')
            a(f'v_mfma_f32_16x16x32_bf16 v[20:23], v[{ar}:{ar+3}], {wreg(i)}, ' + ('0' if i == 0 else 'v[20:23]'))
        a(f"""v_and_b32 v8, 15, v1
        v_lshlrev_b32 v8, 5, v8
        v_lshrrev_b32 v9, 4, v1
        v_lshl_add_u32 v17, v9, 4, v8
        s_lshl_b32 s7, s9, 9
        v_add_u32 v8, s7, v17
        s_nop 3
        s_mov_b32 exec_hi, 0
        ds_write_b128 v8, v[20:23] offset:{QP}
        s_mov_b64 exec, -1
        s_waitcnt lgkmcnt(0)""")
        s.stamp(1)
        for i, r in ((0, 84), (13, 86), (11, 88)): s.stamp(i, r)
        a('s_barrier')
        a(f"""v_mov_b32 v20, -1
        v_mov_b32 v21, -1
        v_mov_b32 v22, -1
        v_mov_b32 v23, -1
        s_mul_i32 s7, s2, 2560
        v_add_u32 v24, s7, v26
        s_lshl_b32 s8, s9, 10
        v_add_u32 v45, s8, v24
        s_mul_i32 s7, s12, 1280
        s_lshl_b32 s8, s67, 7
        s_add_u32 s7, s7, s8
        s_add_u32 s7, s7, {WS_H}
        s_lshl_b32 s8, s67, 8
        s_add_u32 s8, s8, {WS_ACT}
        s_cmp_eq_u32 s66, 0
        s_cselect_b32 s7, s8, s7
        v_add_u32 v25, s7, v27
        s_cmp_lg_u32 s9, 3
        s_cbranch_scc1 L_clrd
        global_store_dwordx4 v24, v[20:23], s[38:39] sc1
        global_store_dwordx4 v24, v[20:23], s[38:39] offset:1024 sc1
        global_store_dwordx4 v24, v[20:23], s[38:39] offset:1536 sc1
        s_bitcmp1_b32 s66, 0
        s_cbranch_scc1 L_clre
        s_cmp_eq_u32 s66, 0
        s_cselect_b32 exec_hi, -1, 0
        global_store_dword v25, v20, s[38:39] sc1
        L_clre:
        s_waitcnt vmcnt(0)
        s_mov_b64 exec, 1
        v_mov_b32 v8, 0
        v_mov_b32 v9, 1
        global_atomic_add v8, v9, s[36:37] sc1
        s_mov_b64 exec, -1
        L_clrd:
        s_lshl_b32 s7, s9, 6
        v_add_u32 v18, s7, v1""")
        if s.defer != 3 and not s.noffn:
            def split_load(txt, lanes):
                for q in range(64 // lanes):
                    m = ((1 << lanes) - 1) << (q * lanes)
                    if lanes < 64: a(f's_mov_b32 exec_lo, {m & 0xffffffff:#x}\ns_mov_b32 exec_hi, {m >> 32:#x}')
                    a(txt)
                    a('s_waitcnt vmcnt(0)')
                a('s_mov_b64 exec, -1')
            a('s_cmp_ge_u32 s66, 2\ns_cbranch_scc1 L_stD')
            s.stage_setup(18)
            a('s_cmp_eq_u32 s66, 0\ns_cbranch_scc0 L_stB')
            for kb in range(0 if s.defer & 1 else 5):
                for mt in range(2):
                    t, p = s.ldA(mt, 48); split_load(t, min(64, 2*s.FQ)); a(p)
                s.wrA(0 if kb < 4 else 0, 48)
                a('s_waitcnt lgkmcnt(0)')
            a('s_branch L_stD\nL_stB:')
            for k in range(0 if s.defer & 2 else 14):
                t, p = s.ldB(0, 48); split_load(t, min(64, 2*s.FQ)); a(p)
                a(f'ds_write_b128 v11, v[48:51] offset:{k*4096}\ns_waitcnt lgkmcnt(0)')
            a('L_stD:')
        a(f"""v_lshrrev_b32 v8, 4, v1
        v_lshlrev_b32 v8, 3, v8
        s_lshl_b32 s7, s9, 5
        v_add_u32 v19, s7, v8
        v_mul_u32_u24 v8, 1280, v19
        v_and_b32 v9, 15, v1
        v_lshl_add_u32 v8, v9, 4, v8
        s_mul_i32 s8, s5, {128*1280}
        s_add_u32 s44, s24, s8
        s_addc_u32 s45, s25, 0
        s_mov_b32 s46, {128*1280}
        s_mov_b32 s48, 3840
        s_mov_b32 s49, 7680""")
        for i in range(8):
            for n in range(5):
                so = ('0', 's48', 's49')[i // 3]; off = (i % 3)*1280 + n*256
                if s.nowo: continue
                a(f's_waitcnt vmcnt({s.HP-1})')
                a(f'buffer_load_dwordx4 {wreg(i*5+n)}, v8, s[44:47], {so} offen offset:{off} {s.wpol}')
        s.stamp(2)
        a(f"""v_lshlrev_b32 v44, 4, v18
        v_lshlrev_b32 v19, 2, v19
        s_mul_i32 s7, s9, 2560
        v_add_u32 v17, s7, v17
        v_mov_b32 v16, 0
        s_waitcnt vmcnt(0)
        s_cmp_lg_u32 s9, 3
        s_cbranch_scc1 L_cntd
        s_cmp_eq_u32 s66, 3
        s_cbranch_scc1 L_cntd
        s_mov_b32 s64, {s.spin}
        L_flg:
        s_sleep 32
        ds_read_b32 v8, v16 offset:{ST+8}
        s_waitcnt lgkmcnt(0)
        v_readfirstlane_b32 s7, v8
        s_cmp_lg_u32 s7, 0
        s_cbranch_scc1 L_flgd
        s_sub_u32 s64, s64, 1
        s_cbranch_scc0 L_flg
        L_flgd:
        s_mov_b32 s64, {s.spin}
        L_cnt:
        global_load_dword v8, v16, s[36:37] sc1
        s_waitcnt vmcnt(0)
        v_readfirstlane_b32 s7, v8
        s_cmp_ge_u32 s7, 256
        s_cbranch_scc1 L_cntd
        s_sleep 127
        s_sub_u32 s64, s64, 1
        s_cbranch_scc0 L_cnt
        L_cntd:
        s_waitcnt lgkmcnt(0)
        s_barrier""")
        s.stamp(3)
        for half in range(2):
            for w in range(4):
                a(f'ds_read_b128 v[{48+8*w+4*half}:{51+8*w+4*half}], v19 offset:{OP+w*512+16*half}')
        for half in range(2):
            a(f's_waitcnt lgkmcnt({4-4*half})')
            for e in range(4*half, 4*half+4):
                a(f'v_add_f32 v{48+e}, v{48+e}, v{56+e}\nv_add_f32 v{64+e}, v{64+e}, v{72+e}')
            for e in range(4*half, 4*half+4): a(f'v_add_f32 v{48+e}, v{48+e}, v{64+e}')
            for e in range(4*half, 4*half+4): a(f'v_cvt_pk_bf16_f32 v{48+e}, v{48+e}, v{48+e}')
            for i in range(4*half, 4*half+4):
                ar = 28 + 4*(i & 1)
                for m in range(4): a(f'v_and_b32 v{ar+m}, v{48+i}, v{4+m}')
                a('s_nop 1')
                for n in range(5):
                    acc = (8, 12, 20, 36, 40)[n]
                    a(f'v_mfma_f32_16x16x32_bf16 v[{acc}:{acc+3}], v[{ar}:{ar+3}], {wreg(i*5+n)}, ' + ('0' if i == 0 else f'v[{acc}:{acc+3}]'))
        a('s_mov_b32 exec_hi, 0\ns_nop 3')
        for n in range(5):
            acc = (8, 12, 20, 36, 40)[n]
            a(f'ds_write_b128 v17, v[{acc}:{acc+3}] offset:{WOP+n*512}')
        a("""s_mov_b64 exec, -1
        s_waitcnt lgkmcnt(0)
        s_barrier
        s_cmp_eq_u32 s9, 3
        s_cbranch_scc1 L_pubd""")
        for w in range(4): a(f'ds_read_b128 v[{48+4*w}:{51+4*w}], v44 offset:{WOP+w*2560}')
        a('s_cmp_eq_u32 s9, 2\ns_cselect_b32 exec_hi, 0, -1')
        a('s_waitcnt lgkmcnt(0)')
        for e in range(4): a(f'v_add_f32 v{48+e}, v{48+e}, v{52+e}\nv_add_f32 v{56+e}, v{56+e}, v{60+e}')
        for e in range(4): a(f'v_add_f32 v{48+e}, v{48+e}, v{56+e}')
        for e in range(4): a(f'v_min_u32 v{48+e}, -2, v{48+e}')
        a("""global_store_dwordx4 v45, v[48:51], s[38:39] sc1
        s_mov_b64 exec, -1""")
        s.stamp(4)
        a("""L_pubd:
        s_cmp_ge_u32 s66, 2
        s_cbranch_scc1 L_end
        s_barrier""")
        s.ffn_wregs(streamer=False)

    def tail(s):
        a = s.a; s.sv = 62
        a(f"""L_tail:
        s_cmp_eq_u32 s66, 0
        s_cbranch_scc0 L_tailB
        s_mul_i32 s7, s3, 1280
        s_add_u32 s7, s7, {WS_H}
        v_lshl_add_u32 v8, v1, 4, s7
        v_lshl_add_u32 v9, v1, 2, s7
        s_mul_i32 s7, s3, {XN2S}
        v_lshl_add_u32 v48, v1, 4, s7
        v_lshl_add_u32 v49, v1, 2, s7
        v_and_b32 v10, 7, v1
        v_mul_u32_u24 v11, {XN2S}, v10
        v_lshrrev_b32 v17, 4, v1
        v_lshl_add_u32 v11, v17, 4, v11
        v_lshlrev_b32 v10, 4, v10
        v_lshl_add_u32 v10, v17, 2, v10
        s_lshl_b32 s7, s67, 1
        s_add_u32 s7, s7, s3
        s_lshl_b32 s7, s7, 7
        s_add_u32 s7, s7, {WS_ACT - 256}
        v_add_u32 v10, s7, v10
        s_mov_b32 s55, {f2u(-L2E):#x}""")
        s.poll(['global_load_dwordx4 v[12:15], v8, s[38:39] sc1', 'global_load_dword v16, v9, s[38:39] offset:1024 sc1'],
               [12, 13, 14, 15, 16], 18)
        s.stamp(6)
        s.layernorm(12, 28, 40, False, 20, True)
        s.stamp(10)
        a(f"""ds_write_b128 v48, v[20:23] offset:{XN2}
        ds_write_b32 v49, v24 offset:{XN2+1024}
        s_waitcnt lgkmcnt(0)
        s_barrier
        s_and_b32 s7, s3, 6
        s_cmp_lg_u32 s7, 2
        s_cbranch_scc1 L_end""")
        for m in range(20): a(f'ds_read_b128 v[{144+4*m}:{147+4*m}], v11 offset:{XN2+m*64}')
        for m in range(20):
            a(f's_waitcnt lgkmcnt({min(15, 19-m)})')
            a(f'v_mfma_f32_16x16x32_bf16 v[20:23], v[{64+4*m}:{67+4*m}], v[{144+4*m}:{147+4*m}], ' + ('0' if m == 0 else 'v[20:23]'))
        a("""s_nop 7
        v_cvt_pk_bf16_f32 v20, v20, v21
        v_cvt_pk_bf16_f32 v22, v22, v23
        v_lshlrev_b32 v24, 16, v20
        v_and_b32 v25, 0xffff0000, v20
        v_mul_f32 v26, s55, v24
        v_mul_f32 v27, s55, v25
        v_exp_f32 v26, v26
        v_exp_f32 v27, v27
        v_lshlrev_b32 v28, 16, v22
        v_add_f32 v26, 1.0, v26
        v_add_f32 v27, 1.0, v27
        v_rcp_f32 v26, v26
        v_rcp_f32 v27, v27
        v_and_b32 v29, 0xffff0000, v22
        v_mul_f32 v24, v24, v26
        v_mul_f32 v25, v25, v27
        v_cvt_pk_bf16_f32 v24, v24, v25
        v_lshlrev_b32 v26, 16, v24
        v_and_b32 v27, 0xffff0000, v24
        v_mul_f32 v26, v26, v28
        v_mul_f32 v27, v27, v29
        v_cvt_pk_bf16_f32 v26, v26, v27
        v_min_u32 v24, -2, v26
        v_min_u32 v25, -2, v26
        s_nop 1
        v_permlane16_swap_b32 v24, v25
        v_mov_b32 v26, v24
        v_mov_b32 v27, v25
        s_nop 0
        v_permlane32_swap_b32 v24, v26
        v_permlane32_swap_b32 v25, v27
        s_mov_b64 exec, 0xff
        global_store_dwordx4 v10, v[24:27], s[38:39] sc1""")
        s.stamp(7)
        a('s_endpgm')
        a(f"""L_tailB:
        v_and_b32 v10, 7, v1
        v_lshrrev_b32 v17, 4, v1
        v_lshlrev_b32 v8, 4, v10
        v_lshl_add_u32 v8, v17, 7, v8
        s_lshl_b32 s7, s3, 9
        s_add_u32 s7, s7, {WS_ACT}
        v_add_u32 v8, s7, v8
        v_add_u32 v9, 0x2000, v8
        v_add_u32 v11, 0x4000, v8
        s_movk_i32 s8, 0x5000
        s_cmp_lt_u32 s3, 6
        s_cselect_b32 s8, 0x6000, s8
        v_add_u32 v12, s8, v8
        v_mul_u32_u24 v13, 1280, v10
        v_lshl_add_u32 v13, v17, 3, v13
        s_lshl_b32 s7, s67, 5
        v_add_u32 v13, s7, v13
        v_add_u32 v14, {WS_H}, v13
        v_lshlrev_b32 v60, 6, v10
        v_lshl_add_u32 v60, v17, 4, v60
        s_lshl_b32 s7, s3, 9
        v_add_u32 v61, s7, v60
        s_add_u32 s68, s38, 4096
        s_addc_u32 s69, s39, 0
        s_cmp_lg_u32 s3, 3
        s_cbranch_scc1 L_noh""")
        s.poll(['global_load_dwordx2 v[18:19], v14, s[38:39] sc1'], [18, 19], 15)
        a('L_noh:')
        if s.gate: a(f's_barrier\ns_sleep {s.gate}')
        loads = []
        for i in range(7):
            base = (8, 8, 9, 9, 11, 11, 12)[i]
            sb = 's[68:69]' if (i < 6 and (i & 1)) else 's[38:39]'
            loads.append(f'global_load_dwordx4 v[{96+4*i}:{99+4*i}], v{base}, {sb} sc1')
        s.poll(loads, list(range(96, 124)), 15)
        s.stamp(6)
        a('s_waitcnt lgkmcnt(0)')
        for i in range(7):
            a(f'v_mfma_f32_16x16x32_bf16 v[20:23], v[{64+4*i}:{67+4*i}], v[{96+4*i}:{99+4*i}], ' + ('0' if i == 0 else 'v[20:23]'))
        a(f"""s_mov_b32 exec_lo, 0x00ff00ff
        s_mov_b32 exec_hi, 0x00ff00ff
        v_lshlrev_b32 v56, 16, v18
        v_and_b32 v57, 0xffff0000, v18
        v_lshlrev_b32 v58, 16, v19
        v_and_b32 v59, 0xffff0000, v19
        s_nop 1
        ds_write_b128 v61, v[20:23] offset:{BP}
        s_waitcnt lgkmcnt(0)
        s_barrier
        s_cmp_lg_u32 s3, 3
        s_cbranch_scc1 L_end""")
        for w in range(8): a(f'ds_read_b128 v[{24+4*w}:{27+4*w}], v60 offset:{BP+w*512}')
        a('s_waitcnt lgkmcnt(0)')
        for step in (16, 8, 4):
            for r in range(step): a(f'v_add_f32 v{24+r}, v{24+r}, v{24+step+r}')
        a("""v_cvt_pk_bf16_f32 v24, v24, v25
        v_cvt_pk_bf16_f32 v26, v26, v27
        v_lshlrev_b32 v28, 16, v24
        v_and_b32 v29, 0xffff0000, v24
        v_lshlrev_b32 v30, 16, v26
        v_and_b32 v31, 0xffff0000, v26
        v_add_f32 v24, v56, v28
        v_add_f32 v25, v57, v29
        v_add_f32 v26, v58, v30
        v_add_f32 v27, v59, v31
        v_cvt_pk_bf16_f32 v24, v24, v25
        v_cvt_pk_bf16_f32 v25, v26, v27
        global_store_dwordx2 v13, v[24:25], s[34:35] """ + s.opol)
        s.stamp(7)
        s.mstamp(7)

    def text(s):
        s.gen()
        body = '\n'.join(s.L)
        k = NAME + '_kernel'
        return f"""{HEADER}; @launch grid=(256,1,1) block=(512,1,1) lds={LDS_BYTES}
.amdgcn_target "amdgcn-amd-amdhsa--gfx950"
.text
.globl {k}
.p2align 8
.type {k},@function
{k}:
{body}
.section .rodata,"a"
.p2align 6
.amdhsa_kernel {k}
  .amdhsa_next_free_vgpr 256
  .amdhsa_next_free_sgpr 102
  .amdhsa_accum_offset 256
  .amdhsa_group_segment_fixed_size 0
  .amdhsa_kernarg_size 96
  .amdhsa_user_sgpr_count 2
  .amdhsa_user_sgpr_kernarg_segment_ptr 1
  .amdhsa_system_sgpr_workgroup_id_x 1
  .amdhsa_float_denorm_mode_32 3
.end_amdhsa_kernel
"""

def parse_kw(args):
    kw = {}
    for x in args:
        k, v = x.split('=')
        try: v = int(v)
        except ValueError: v = v.replace('+', ' ').replace('-', '')
        kw[k] = v
    return kw

if __name__ == '__main__':
    open(sys.argv[1], 'w').write(G(**parse_kw(sys.argv[2:])).text())
```

```python
import sys, struct

NAME = 'sequential_preLN__mha_block_cached__swiglu_ffn__decode'
def f2u(x): return struct.unpack('<I', struct.pack('<f', x))[0]

HEADER = """; Kernarg layout for this problem (96 bytes, ptrs only, base s[0:1]):
;
"""

WS_P   = 0
WS_H   = 256*2560
WS_ACT = WS_H + 10240
WS_STAMP = 1 << 20

XD  = 0
QP  = 5120
OP  = 7168
ST  = 9216
FLG = ST + 64
SC0 = 9344
SCW = 64*64
WOP = SC0 + 4*SCW
XN2 = WOP + 10240
XN2S = 1296
BP  = XN2
IMG = XN2 + 8*XN2S
LDS_BYTES = IMG + 57344
L2E = 1.4426950408889634

DEF = dict(D=5, D0=6, DP=6, DE=8, NE=6, NP=48, N0=8, WB=40, HP=4, FQ=16, kvpol='nt', wpol='', fpol='', opol='',
           stamps=0, spin=1 << 19, psleep=0, defer=0, gate=0, NB1=3, DS=4, flat=1, XE=4, mst=0, exp=0, early=1, KP='', VP='', SG1=0, SG2=0, wofirst=0, latecnt=1, cstag=0, cpol='sc1', nopc=0, nowo=0, nowq=0, noffn=0)

class G:
    def __init__(s, **kw):
        for k, v in DEF.items(): setattr(s, k, v)
        for k, v in kw.items():
            assert k in DEF, k
            setattr(s, k, v)
        s.L = []; s.nl = 0; s.sv = 62
    def a(s, t):
        for line in t.strip('\n').split('\n'):
            line = line.strip()
            if line: s.L.append(line if line.endswith(':') else '    ' + line)
    def lab(s, p):
        s.nl += 1; return f'L_{p}_{s.nl}'
    def stamp_reg(s, r):
        if s.stamps: s.a(f's_memrealtime s[{r}:{r+1}]')
    def stamp(s, idx, r=None):
        if not s.stamps: return
        s.a('s_memrealtime s[92:93]' if r is None else 's_nop 0')
        s.a('s_waitcnt lgkmcnt(0)')
        if r is not None: s.a(f's_mov_b32 s92, s{r}')
        s.a(f"""s_mov_b64 s[94:95], exec
        s_mov_b64 exec, 1
        s_lshl_b32 s93, s2, 3
        s_add_u32 s93, s93, s3
        s_lshl_b32 s93, s93, 6
        s_add_u32 s93, s93, {WS_STAMP + idx*4}
        v_mov_b32 v{s.sv}, s93
        v_mov_b32 v{s.sv+1}, s92
        global_store_dword v{s.sv}, v{s.sv+1}, s[38:39]
        s_mov_b64 exec, s[94:95]""")

    def mstamp(s, idx, r=None):
        if not s.mst: return
        keep = s.stamps; s.stamps = 1
        n0 = len(s.L)
        s.stamp(idx, r)
        s.L[n0:] = [l + ' sc1' if 'global_store' in l else l for l in s.L[n0:]]
        s.stamps = keep
    def wave_sum(s, v, sd):
        for c in ('row_ror:8', 'row_ror:4', 'row_ror:2', 'row_ror:1'):
            s.a(f's_nop 1\nv_add_f32_dpp v{v}, v{v}, v{v} {c} row_mask:0xf bank_mask:0xf')
        s.a(f's_nop 1\nv_add_f32_dpp v{v}, v{v}, v{v} row_bcast:15 row_mask:0xa bank_mask:0xf')
        s.a(f's_nop 1\nv_add_f32_dpp v{v}, v{v}, v{v} row_bcast:31 row_mask:0xc bank_mask:0xf')
        s.a(f's_nop 1\nv_readlane_b32 s{sd}, v{v}, 63')

    def layernorm(s, src, f, t, dup, o, fast):
        a = s.a
        for i in range(5):
            a(f'v_lshlrev_b32 v{f+2*i}, 16, v{src+i}\nv_and_b32 v{f+2*i+1}, 0xffff0000, v{src+i}')
        a(f's_mov_b32 s61, {f2u(1.0/640):#x}')
        if fast:
            a(f'v_readfirstlane_b32 s59, v{f}\ns_nop 1')
            a(f'v_subrev_f32 v{t}, s59, v{f+1}\nv_mul_f32 v{t+2}, v{t}, v{t}')
            for i in [0] + list(range(2, 10)):
                a(f'v_subrev_f32 v{t+1}, s59, v{f+i}\nv_add_f32 v{t}, v{t}, v{t+1}\nv_fmac_f32 v{t+2}, v{t+1}, v{t+1}')
            for c in ('row_ror:8 row_mask:0xf', 'row_ror:4 row_mask:0xf', 'row_ror:2 row_mask:0xf', 'row_ror:1 row_mask:0xf',
                      'row_bcast:15 row_mask:0xa', 'row_bcast:31 row_mask:0xc'):
                a(f's_nop 0\nv_add_f32_dpp v{t}, v{t}, v{t} {c} bank_mask:0xf\nv_add_f32_dpp v{t+2}, v{t+2}, v{t+2} {c} bank_mask:0xf')
            a(f'v_readlane_b32 s60, v{t}, 63\nv_readlane_b32 s58, v{t+2}, 63\ns_nop 0')
            a(f'v_mov_b32 v{t}, s60\nv_mov_b32 v{t+2}, s58\nv_mul_f32 v{t}, s61, v{t}\nv_mul_f32 v{t+2}, s61, v{t+2}')
            a(f'v_fma_f32 v{t+2}, -v{t}, v{t}, v{t+2}\nv_add_f32 v{t}, s59, v{t}\nv_max_f32 v{t+2}, 0, v{t+2}')
            a(f'v_cvt_pk_bf16_f32 v{t}, v{t}, v{t+2}\nv_and_b32 v{t+2}, 0xffff0000, v{t}\nv_lshlrev_b32 v{t}, 16, v{t}')
        else:
            a(f'v_add_f32 v{t}, v{f}, v{f+1}')
            for i in range(2, 10): a(f'v_add_f32 v{t}, v{t}, v{f+i}')
            s.wave_sum(t, 60)
            a(f's_nop 1\nv_mov_b32 v{t}, s60\nv_mul_f32 v{t}, s61, v{t}')
            a(f'v_sub_f32 v{t+1}, v{f}, v{t}\nv_mul_f32 v{t+2}, v{t+1}, v{t+1}')
            for i in range(1, 10):
                a(f'v_sub_f32 v{t+1}, v{f+i}, v{t}\nv_fmac_f32 v{t+2}, v{t+1}, v{t+1}')
            s.wave_sum(t+2, 60)
            a(f'v_cvt_pk_bf16_f32 v{t}, v{t}, v{t}\nv_lshlrev_b32 v{t}, 16, v{t}')
            a(f'v_mov_b32 v{t+2}, s60\nv_mul_f32 v{t+2}, s61, v{t+2}')
            a(f'v_cvt_pk_bf16_f32 v{t+2}, v{t+2}, v{t+2}\nv_lshlrev_b32 v{t+2}, 16, v{t+2}')
        a(f'v_add_f32 v{t+2}, {f2u(1e-5):#x}, v{t+2}')
        a(f'v_cvt_pk_bf16_f32 v{t+2}, v{t+2}, v{t+2}\nv_lshlrev_b32 v{t+2}, 16, v{t+2}')
        a(f'v_sqrt_f32 v{t+2}, v{t+2}')
        for i in range(10): a(f'v_sub_f32 v{f+i}, v{f+i}, v{t}')
        a(f'v_cvt_pk_bf16_f32 v{t+2}, v{t+2}, v{t+2}\nv_lshlrev_b32 v{t+2}, 16, v{t+2}')
        a(f'v_rcp_f32 v{t+3}, v{t+2}')
        for i in range(5): a(f'v_cvt_pk_bf16_f32 v{o+i}, v{f+2*i}, v{f+2*i+1}')
        for i in range(5):
            a(f'v_lshlrev_b32 v{f+2*i}, 16, v{o+i}\nv_and_b32 v{f+2*i+1}, 0xffff0000, v{o+i}')
        for i in range(10):
            if fast: a(f'v_mul_f32 v{f+i}, v{f+i}, v{t+3}')
            else: a(f'v_mul_f32 v{t}, v{f+i}, v{t+3}\nv_fma_f32 v{t+1}, -v{t}, v{t+2}, v{f+i}\nv_fma_f32 v{f+i}, v{t+1}, v{t+3}, v{t}')
        if dup:
            for i in range(10): a(f'v_cvt_pk_bf16_f32 v{f+i}, v{f+i}, v{f+i}')
        else:
            for i in range(5): a(f'v_cvt_pk_bf16_f32 v{o+i}, v{f+2*i}, v{f+2*i+1}')

    def poll(s, loads, regs, t):
        a = s.a
        lp = s.lab('poll'); ld = s.lab('polld')
        a(f's_mov_b64 s[62:63], exec\ns_mov_b32 s64, {s.spin}')
        a(f'{lp}:')
        for l in loads: a(l)
        a('s_waitcnt vmcnt(0)')
        r = list(regs)
        if len(r) == 2: a(f'v_max_u32 v{t}, v{r[0]}, v{r[1]}'); r = []
        else:
            a(f'v_max3_u32 v{t}, v{r[0]}, v{r[1]}, v{r[2]}'); r = r[3:]
        while len(r) >= 2:
            a(f'v_max3_u32 v{t}, v{t}, v{r[0]}, v{r[1]}'); r = r[2:]
        if r: a(f'v_max_u32 v{t}, v{t}, v{r[0]}')
        a(f'v_cmpx_eq_u32 vcc, -1, v{t}')
        a(f's_cbranch_execz {ld}')
        if s.psleep: a(f's_sleep {s.psleep}')
        a(f's_sub_u32 s64, s64, 1\ns_cbranch_scc0 {lp}')
        a(f'{ld}:')
        a('s_mov_b64 exec, s[62:63]\ns_nop 2')

    def roles(s):
        s.a("""s_and_b32 s12, s2, 7
        s_lshr_b32 s13, s2, 3
        s_min_u32 s14, s12, 3
        s_lshl_b32 s14, s14, 2
        s_mul_i32 s67, s12, 12
        s_add_u32 s67, s67, s14
        s_add_u32 s67, s67, s13
        s_cmp_lt_u32 s12, 3
        s_cselect_b32 s14, 16, 12
        s_mov_b32 s66, 0
        s_sub_u32 s13, s13, s14
        s_cbranch_scc1 L_role%d
        s_sub_u32 s14, s12, 3
        s_max_i32 s14, s14, 0
        s_min_i32 s14, s14, 2
        s_add_u32 s14, s14, s12
        s_lshl_b32 s14, s14, 2
        s_add_u32 s67, s14, s13
        s_sub_u32 s14, s12, 3
        s_cmp_lt_u32 s14, 2
        s_cselect_b32 s14, 8, 4
        s_mov_b32 s66, 1
        s_sub_u32 s13, s13, s14
        s_cbranch_scc1 L_role%d
        s_mov_b32 s67, s13
        s_mov_b32 s66, 2
        s_cmp_lt_u32 s13, 10
        s_cbranch_scc1 L_role%d
        s_mov_b32 s66, 3
        s_mov_b32 s67, 0
        L_role%d:""" % ((s.nl,)*4))
        s.nl += 1

    def masks(s):
        s.a("""v_and_b32 v8, 15, v1
        v_and_b32 v9, 1, v1
        v_lshlrev_b32 v9, 4, v9
        v_mov_b32 v10, 0xffff
        v_lshlrev_b32 v10, v9, v10
        v_lshrrev_b32 v11, 1, v8""")
        for m in range(4):
            s.a(f'v_cmp_eq_u32 vcc, {m}, v11\ns_nop 1\nv_cndmask_b32 v{4+m}, 0, v10, vcc')

    def gen(s):
        a = s.a
        s.stamp_reg(80)
        if s.mst: a('s_memrealtime s[80:81]')
        a("""s_cmp_ge_u32 s2, 256
        s_cbranch_scc1 L_end
        s_load_dwordx16 s[16:31], s[0:1], 0
        s_load_dwordx8 s[32:39], s[0:1], 64
        v_lshrrev_b32 v2, 6, v0
        v_and_b32 v1, 63, v0
        v_readfirstlane_b32 s3, v2
        s_lshr_b32 s4, s2, 5
        s_and_b32 s5, s2, 31
        s_cmp_ge_u32 s3, 4
        s_cbranch_scc1 L_helper""")
        s.streamer()
        s.helper()
        s.tail()
        a('L_end:\ns_endpgm')

    def stage_setup(s, T):
        a = s.a
        lb = s.lab('sgB'); ld = s.lab('sgD')
        a(f"""v_lshrrev_b32 v8, 1, v{T}
        v_and_b32 v9, 1, v{T}
        s_lshl_b32 s8, s67, 5
        s_mov_b32 s71, 0x20000
        s_mov_b32 s75, 0x20000
        s_sub_u32 s70, 2211840, s8
        s_mov_b32 s74, s70
        s_mov_b32 s76, 0
        s_cmp_eq_u32 s66, 0
        s_cbranch_scc0 {lb}
        s_add_u32 s68, s28, s8
        s_addc_u32 s69, s29, 0
        s_add_u32 s72, s30, s8
        s_addc_u32 s73, s31, 0
        s_mov_b32 s7, 3456
        v_mul_lo_u32 v10, v8, s7
        v_lshl_add_u32 v10, v9, 4, v10
        v_lshlrev_b32 v11, 5, v{T}
        s_branch {ld}
        {lb}:
        s_add_u32 s68, s32, s8
        s_addc_u32 s69, s33, 0
        s_mov_b32 s72, s68
        s_mov_b32 s73, s69
        v_mul_u32_u24 v10, 1280, v8
        v_lshl_add_u32 v10, v9, 4, v10
        v_lshlrev_b32 v11, 4, v{T}
        {ld}:
        v_add_u32 v11, {IMG}, v11""")
    def ldA(s, k, R):
        srd = 's[68:71]' if (k & 1) == 0 else 's[72:75]'
        t = f'buffer_load_dwordx4 v[{R+4*k}:{R+4*k+3}], v10, {srd}, s76 offen {s.fpol}'
        post = f's_add_u32 s76, s76, {128*3456}' if k & 1 else ''
        return t, post
    def ldB(s, k, R):
        return f'buffer_load_dwordx4 v[{R+4*k}:{R+4*k+3}], v10, s[68:71], s76 offen {s.fpol}', f's_add_u32 s76, s76, {128*1280}'
    def wrA(s, kb, R):
        for q in range(4):
            s.a(f'ds_write2_b32 v11, v{R+8*kb+q}, v{R+8*kb+4+q} offset0:{2*q} offset1:{2*q+1}')
        if kb < 4: s.a('v_add_u32 v11, 8192, v11')
    def wrB(s, k, R):
        s.a(f'ds_write_b128 v11, v[{R+4*k}:{R+4*k+3}] offset:{k*4096}')

    def ffn_wregs(s, streamer):
        a = s.a
        la = s.lab('wa'); ld = s.lab('wd')
        a(f"""v_lshrrev_b32 v46, 4, v1
        v_lshlrev_b32 v46, 3, v46
        v_bfe_u32 v47, v1, 2, 2
        v_add_u32 v46, v46, v47
        v_and_b32 v47, 3, v1
        v_lshlrev_b32 v47, 3, v47
        v_add_u32 v47, {IMG}, v47
        s_cmp_eq_u32 s66, 0
        s_cbranch_scc1 {la}
        v_lshl_add_u32 v46, v46, 5, v47
        s_lshl_b32 s7, s3, 10
        v_add_u32 v46, s7, v46""")
        for i in range(7):
            a(f'ds_read_b64_tr_b16 v[{64+4*i}:{65+4*i}], v46 offset:{i*8192}')
            a(f'ds_read_b64_tr_b16 v[{66+4*i}:{67+4*i}], v46 offset:{i*8192+128}')
        a(f's_branch {ld}\n{la}:')
        if streamer:
            a(f"""s_cmp_lt_u32 s3, 2
            s_cbranch_scc1 {ld}
            v_lshl_add_u32 v46, v46, 6, v47
            s_sub_u32 s7, s3, 2
            s_lshl_b32 s7, s7, 5
            v_add_u32 v46, s7, v46""")
            for m in range(20):
                a(f'ds_read_b64_tr_b16 v[{64+4*m}:{65+4*m}], v46 offset:{m*2048}')
                a(f'ds_read_b64_tr_b16 v[{66+4*m}:{67+4*m}], v46 offset:{m*2048+256}')
        a(f'{ld}:')

    def streamer(s):
        a = s.a; D = s.D; R0 = 64; NP = s.NP; R = 16; s.sv = 62
        assert NP % 16 == 0
        slot = lambda p: f'v[{R0+4*p}:{R0+4*p+3}]'
        def issue(p, t):
            a(f'buffer_load_dwordx4 {slot(p)}, v2, s[40:43], s44 offen offset:{t*1024} {s.kvpol}')
            if t == 3: a('s_add_u32 s44, s44, 16384')
        a("""v_bfe_u32 v2, v1, 2, 2
        v_lshlrev_b32 v2, 8, v2
        v_lshrrev_b32 v3, 4, v1
        v_lshl_add_u32 v2, v3, 6, v2
        v_and_b32 v3, 3, v1
        v_lshl_add_u32 v2, v3, 4, v2
        s_lshl_b32 s6, s2, 20
        s_lshl_b32 s44, s3, 12
        s_mov_b32 s42, 0x100000
        s_mov_b32 s43, 0x20000
        s_waitcnt lgkmcnt(0)
        s_add_u32 s40, s18, s6
        s_addc_u32 s41, s19, 0""")
        s.stamp_reg(82)
        for i in range(s.D0): issue(i, i & 3)
        s.stamp(0); s.stamp(11, 80); s.stamp(12, 82)
        a("""s_add_u32 s48, s20, s6
        s_addc_u32 s49, s21, 0
        v_lshlrev_b32 v3, 4, v1""")
        s.roles()
        a("""v_and_b32 v8, 15, v1
        v_lshlrev_b32 v8, 3, v8
        s_min_u32 s8, s67, 9
        s_lshl_b32 s8, s8, 7
        s_mul_i32 s7, s12, 1280
        s_add_u32 s7, s7, s8
        v_add_u32 v44, s7, v8
        global_load_dwordx2 v[42:43], v44, s[16:17]""")
        s.masks()
        a(f"""s_mov_b32 s50, 0xaaaaaaaa
        s_mov_b32 s51, 0xaaaaaaaa
        s_mov_b32 s52, 0xcccccccc
        s_mov_b32 s53, 0xcccccccc
        s_mov_b32 s54, {f2u(128**-0.5):#x}
        s_mov_b32 s55, {f2u(L2E):#x}
        v_mov_b32 v34, 0xff7fffff
        v_mov_b32 v36, 0
        s_mul_i32 s7, s3, {SCW}
        s_add_u32 s7, s7, {SC0}
        v_and_b32 v35, 60, v1
        v_add_u32 v35, s7, v35
        v_lshrrev_b32 v8, 4, v1
        v_lshlrev_b32 v8, 2, v8
        v_and_b32 v9, 3, v1
        v_add_u32 v8, v8, v9
        v_lshlrev_b32 v45, 5, v8
        s_lshl_b32 s7, s3, 4
        v_mov_b32 v61, s7
        ds_write_b32 v61, v36 offset:{ST+8}
        ds_write_b32 v36, v36 offset:{FLG}
        v_and_b32 v8, 15, v1
        v_lshlrev_b32 v8, 5, v8
        v_lshrrev_b32 v9, 4, v1
        v_lshl_add_u32 v8, v9, 4, v8
        s_lshl_b32 s7, s3, 9
        v_add_u32 v60, s7, v8
        s_waitcnt lgkmcnt(0)""")
        for i in range(s.D0, NP):
            a(f's_waitcnt vmcnt({s.DP-1})')
            issue(i, i & 3)
        s.stamp(4)
        a('s_barrier')
        s.stamp(1)
        a(f"""ds_read_b128 v[46:49], v45 offset:{QP}
        ds_read_b128 v[50:53], v45 offset:{QP+16}
        ds_read_b128 v[54:57], v45 offset:{QP+512}
        ds_read_b128 v[16:19], v45 offset:{QP+512+16}
        ds_read_b128 v[24:27], v45 offset:{QP+1024}
        ds_read_b128 v[28:31], v45 offset:{QP+1024+16}
        ds_read_b128 v[8:11], v45 offset:{QP+1536}
        ds_read_b128 v[12:15], v45 offset:{QP+1536+16}
        s_waitcnt lgkmcnt(0)""")
        for e in range(8):
            b1 = 54+e if e < 4 else 12+e
            a(f'v_add_f32 v{46+e}, v{46+e}, v{b1}\nv_add_f32 v{24+e}, v{24+e}, v{8+e}')
        for e in range(8): a(f'v_add_f32 v{46+e}, v{46+e}, v{24+e}')
        for m in range(4): a(f'v_cvt_pk_bf16_f32 v{54+m}, v{46+2*m}, v{47+2*m}')
        for t in range(4):
            mk = 0x000f000f << (4*t)
            a(f's_mov_b32 s56, {mk:#x}\ns_mov_b32 s57, {mk:#x}')
            for m in range(4): a(f'v_cndmask_b32 v{8+4*t+m}, 0, v{54+m}, s[56:57]')
        a('s_nop 1')
        Dreg = lambda g: 24 + 4*(g & 1)
        def post1(g):
            if s.exp & 2: return
            d = Dreg(g)
            a(f"""s_nop 1
            v_cndmask_b32 v32, v{d}, v{d+1}, s[50:51]
            v_cndmask_b32 v33, v{d+2}, v{d+3}, s[50:51]
            v_cndmask_b32 v32, v32, v33, s[52:53]
            s_nop 1
            v_add_f32_dpp v32, v32, v32 quad_perm:[1,0,3,2] row_mask:0xf bank_mask:0xf
            s_nop 1
            v_add_f32_dpp v32, v32, v32 quad_perm:[2,3,0,1] row_mask:0xf bank_mask:0xf""")
        def post2a(off):
            if s.exp & 2: return
            a(f"""v_cvt_pk_bf16_f32 v32, v32, v32
            v_lshlrev_b32 v32, 16, v32
            v_mul_f32 v32, s54, v32
            v_cvt_pk_bf16_f32 v32, v32, v32
            v_lshlrev_b32 v32, 16, v32
            v_max_f32 v33, v34, v32
            ds_write_b32 v35, v32 offset:{off}""")
        def post2b():
            if s.exp & 2: return
            a("""v_sub_f32 v40, v34, v33
            v_sub_f32 v46, v32, v33
            v_mul_f32 v40, s55, v40
            v_mul_f32 v46, s55, v46
            v_exp_f32 v40, v40
            v_exp_f32 v46, v46
            v_mov_b32 v34, v33
            v_fma_f32 v36, v36, v40, v46""")
        def post2(off):
            post2a(off); post2b()
        def kcons(p, gi, t):
            d = Dreg(gi)
            c = '0' if t == 0 else f'v[{d}:{d+3}]'
            if not s.exp & 4: a(f'v_mfma_f32_16x16x32_bf16 v[{d}:{d+3}], {slot(p)}, v[{8+4*t}:{11+4*t}], {c}')
        nis = 0
        per = max(1, (NP - 1) // 15)
        for i in range(NP):
            gi, t = i >> 2, i & 3
            need = (NP + nis - 1) - i
            if i >= NP - s.DP: a(f's_waitcnt vmcnt({min(need, 63)})')
            kcons(i, gi, t)
            if gi > 0 and t == 2: a('s_nop 3'); post1(gi - 1)
            if gi > 0 and t == 3: post2((gi - 1) * 64)
            if nis < 15 and i >= nis and (i + 1) % per == 0:
                a(f's_waitcnt vmcnt({D-1})')
                issue(nis, nis & 3); nis += 1
        assert nis == 15, nis
        a(f'v_add_u32 v35, {(NP//4-1)*64}, v35')
        nk = (256 - NP) // R
        a('s_mov_b32 s45, 0')
        a('L_kloop:')
        KP = [int(c) for c in str(s.KP)] or [D]
        VP = [int(c) for c in str(s.VP)] or [D]
        for st in range(R):
            gi, t = st >> 2, st & 3
            a(f's_waitcnt vmcnt({KP[st % len(KP)]-1})')
            issue((st - 1) % R, (st - 1) & 3)
            if st == 0:
                a(f"""s_cmp_lg_u32 s45, {nk-1}
                s_cbranch_scc1 L_nosw
                s_mov_b32 s40, s48
                s_mov_b32 s41, s49
                s_lshl_b32 s44, s3, 12
                v_mov_b32 v2, v3
                L_nosw:""")
            kcons(st, gi, t)
            if s.flat:
                if t == 1: post1(gi - 1)
                if t == 2: post2a(gi * 64)
                if t == 3: post2b()
            else:
                if t == 2: post1(gi - 1)
                if t == 3: post2(gi * 64)
        a(f"""v_add_u32 v35, {R*16}, v35
        s_add_u32 s45, s45, 1
        s_cmp_lt_u32 s45, {nk}
        s_cbranch_scc1 L_kloop""")
        XE = s.XE; RV = 32 if XE else 16; LAG = 15 + XE
        xi = [0]
        def xissue():
            if xi[0] < XE:
                j = 15 + xi[0]; xi[0] += 1
                a(f's_waitcnt vmcnt({D-1})'); issue(j, j & 3)
        xissue()
        post1(1); post2(0)
        xissue()
        a(f"""s_nop 0
        v_max_f32_dpp v33, v34, v34 row_ror:4 row_mask:0xf bank_mask:0xf
        v_subrev_u32 v35, {63*64}, v35
        v_mov_b32 v28, 0
        v_max_f32_dpp v33, v33, v33 row_ror:8 row_mask:0xf bank_mask:0xf
        v_mov_b32 v29, 0
        v_readlane_b32 s56, v33, 0
        v_readlane_b32 s57, v33, 16
        v_readlane_b32 s58, v33, 32
        v_readlane_b32 s59, v33, 48
        v_mov_b32 v30, 0
        v_mov_b32 v48, s56
        v_max_f32 v48, s57, v48
        v_max_f32 v48, s58, v48
        v_max_f32 v48, s59, v48
        v_sub_f32 v40, v34, v48
        v_mul_f32 v40, s55, v40
        v_exp_f32 v40, v40
        v_mov_b32 v31, 0
        v_mul_f32 v36, v36, v40
        v_mov_b32 v50, 1
        v_mov_b32 v51, 1
        v_add_f32_dpp v36, v36, v36 row_ror:4 row_mask:0xf bank_mask:0xf
        s_nop 1
        v_add_f32_dpp v36, v36, v36 row_ror:8 row_mask:0xf bank_mask:0xf
        s_nop 0
        v_readlane_b32 s56, v36, 0
        v_readlane_b32 s57, v36, 16
        v_readlane_b32 s58, v36, 32
        v_readlane_b32 s59, v36, 48
        v_mov_b32 v33, 0
        v_mov_b32 v49, s56
        v_add_f32 v49, s57, v49
        v_add_f32 v49, s58, v49
        v_add_f32 v49, s59, v49
        ds_write_b128 v61, v[48:51] offset:{ST}""")
        xissue()
        a(f"""s_mov_b32 s64, {s.spin}
        L_stw:
        ds_read_b128 v[8:11], v33 offset:{ST}
        ds_read_b128 v[12:15], v33 offset:{ST+16}
        ds_read_b128 v[16:19], v33 offset:{ST+32}
        ds_read_b128 v[20:23], v33 offset:{ST+48}
        ds_read_b32 v39, v35
        s_waitcnt lgkmcnt(0)
        v_and_b32 v40, v10, v14
        v_and_b32 v46, v18, v22
        v_and_b32 v40, v40, v46
        s_nop 0
        v_readfirstlane_b32 s7, v40
        s_cmp_lg_u32 s7, 0
        s_cbranch_scc1 L_stwd
        s_sub_u32 s64, s64, 1
        s_cbranch_scc0 L_stw
        L_stwd:""")
        while xi[0] < XE: xissue()
        a(f"""v_max_f32 v41, v8, v12
        v_max3_f32 v41, v41, v16, v20
        v_sub_f32 v8, v8, v41
        v_sub_f32 v12, v12, v41
        v_sub_f32 v16, v16, v41
        v_sub_f32 v20, v20, v41
        v_mul_f32 v8, s55, v8
        v_mul_f32 v12, s55, v12
        v_mul_f32 v16, s55, v16
        v_mul_f32 v20, s55, v20
        v_exp_f32 v8, v8
        v_exp_f32 v12, v12
        v_exp_f32 v16, v16
        v_exp_f32 v20, v20
        v_mul_f32 v40, v8, v9
        v_fmac_f32 v40, v12, v13
        v_fmac_f32 v40, v16, v17
        v_fmac_f32 v40, v20, v21
        v_rcp_f32 v47, v40
        s_nop 0
        v_fma_f32 v46, -v40, v47, 1.0
        v_fmac_f32 v47, v46, v47""")
        s.stamp(2)
        def prep(g):
            if s.exp & 2: return
            a(f"""s_waitcnt lgkmcnt(0)
            v_sub_f32 v39, v39, v41
            v_mul_f32 v39, s55, v39
            v_exp_f32 v39, v39
            s_nop 0
            v_mul_f32 v39, v39, v47
            v_cvt_pk_bf16_f32 v{37+(g&1)}, v39, v39""")
        prep(0)
        a('s_nop 0')
        def vstep(st, Dv, left=None):
            gi, t = st >> 2, st & 3
            if left is None or left > LAG:
                a(f's_waitcnt vmcnt({Dv-1})')
                issue((st + LAG) % RV, (st + LAG) & 3)
            elif left - 1 < Dv:
                a(f's_waitcnt vmcnt({left-1})')
            fin = left is not None and left <= 4
            if t == 0 and not fin: a(f'ds_read_b32 v39, v35 offset:{(gi+1)*64}')
            for m in range(4):
                a(f'v_and_b32_dpp v{24+m}, v{37+(gi&1)}, v{4+m} row_newbcast:{4*t} row_mask:0xf bank_mask:0xf')
            a('s_nop 1')
            if not s.exp & 4: a(f'v_mfma_f32_16x16x32_bf16 v[28:31], v[24:27], {slot(st)}, v[28:31]')
            if t == 2 and not fin: prep(gi + 1)
        def vloop(name, n, Dv):
            if n == 0: return
            a(f's_mov_b32 s45, 0\n{name}:')
            for st in range(RV): vstep(st, Dv[st % len(Dv)])
            a(f"""v_add_u32 v35, {RV*16}, v35
            s_add_u32 s45, s45, 1
            s_cmp_lt_u32 s45, {n}
            s_cbranch_scc1 {name}""")
        ne = s.NE * 16 // RV
        vloop('L_vloop', 256//RV - 1 - ne, VP)
        a(f'v_mov_b32 v33, 0\nds_write_b32 v33, v50 offset:{FLG}')
        vloop('L_vloop2', ne, [s.DE])
        if s.defer:
            a('s_lshl_b32 s7, s3, 6\nv_add_u32 v18, s7, v1')
            s.stage_setup(18)
        for st in range(RV): vstep(st, s.DE, RV - st)
        a(f"""s_mov_b32 exec_hi, 0
        s_nop 6
        ds_write_b128 v60, v[28:31] offset:{OP}
        s_mov_b64 exec, -1
        s_waitcnt lgkmcnt(0)""")
        s.stamp(3)
        if s.mst: a('s_memrealtime s[82:83]')
        a('s_barrier')
        s.mstamp(11, 80); s.mstamp(3, 82)
        if s.exp & 17: s.mstamp(7); a('s_endpgm')
        SR = 192
        if s.defer and not s.noffn:
            a('s_cmp_eq_u32 s66, 0\ns_cbranch_scc0 L_d1B')
            for k in range(s.NB1 if s.defer & 1 else 0):
                t, p = s.ldA(k, SR); a(t); a(p)
            a('s_branch L_d1D\nL_d1B:\ns_cmp_eq_u32 s66, 1\ns_cbranch_scc0 L_d1D')
            for k in range(s.NB1 if s.defer & 2 else 0):
                t, p = s.ldB(k, SR); a(t); a(p)
            a('L_d1D:')
        a(f"""s_mul_i32 s7, s12, {32*2560}
        s_lshl_b32 s8, s67, 8
        s_add_u32 s7, s7, s8
        v_lshrrev_b32 v8, 4, v1
        v_mul_u32_u24 v8, 2560, v8
        v_and_b32 v9, 15, v1
        v_lshl_add_u32 v8, v9, 4, v8
        v_add_u32 v48, s7, v8""")
        for i in range(1, 8): a(f'v_add_u32 v{48+i}, 10240, v{47+i}')
        a(f"""v_add_u32 v44, {WS_H}, v44
        s_barrier
        s_cmp_lt_u32 s66, 2
        s_cbranch_scc1 L_s_ffn
        s_cmp_eq_u32 s66, 3
        s_cbranch_scc1 L_end
        s_cmp_lg_u32 s3, 0
        s_cbranch_scc1 L_end""")
        s.stamp(8)
        s.poll([f'global_load_dwordx4 v[{160+4*i}:{163+4*i}], v{48+i}, s[38:39] sc1' for i in range(8)], list(range(160, 192)), 32)
        s.stamp(9)
        for step in (16, 8, 4):
            for r in range(step): a(f'v_add_f32 v{160+r}, v{160+r}, v{160+step+r}')
        for sw in ('v_permlane16_swap_b32', 'v_permlane32_swap_b32'):
            for r in range(4): a(f'v_mov_b32 v{164+r}, v{160+r}')
            for r in range(4): a(f'{sw} v{160+r}, v{164+r}')
            for r in range(4): a(f'v_add_f32 v{160+r}, v{160+r}, v{164+r}')
        a("""v_cvt_pk_bf16_f32 v24, v160, v161
        v_cvt_pk_bf16_f32 v26, v162, v163
        v_lshlrev_b32 v28, 16, v24
        v_and_b32 v29, 0xffff0000, v24
        v_lshlrev_b32 v30, 16, v26
        v_and_b32 v31, 0xffff0000, v26
        v_lshlrev_b32 v24, 16, v42
        v_and_b32 v25, 0xffff0000, v42
        v_lshlrev_b32 v26, 16, v43
        v_and_b32 v27, 0xffff0000, v43
        v_add_f32 v24, v24, v28
        v_add_f32 v25, v25, v29
        v_add_f32 v26, v26, v30
        v_add_f32 v27, v27, v31
        v_cvt_pk_bf16_f32 v24, v24, v25
        v_cvt_pk_bf16_f32 v25, v26, v27
        v_min_u32 v24, -2, v24
        v_min_u32 v25, -2, v25
        s_nop 0
        v_mov_b32_dpp v26, v24 quad_perm:[1,1,3,3] row_mask:0xf bank_mask:0xf
        v_mov_b32_dpp v27, v25 quad_perm:[1,1,3,3] row_mask:0xf bank_mask:0xf
        s_mov_b64 exec, 0x5555
        global_store_dwordx4 v44, v[24:27], s[38:39] sc1""")
        s.stamp(5)
        a('s_endpgm')
        a('L_s_ffn:')
        if s.defer and not s.noffn:
            a('s_cmp_eq_u32 s66, 0\ns_cbranch_scc0 L_d2B')
            if s.defer & 1:
                if s.DS: a(f's_sleep {s.DS}')
                for k in range(s.NB1, 10):
                    t, p = s.ldA(k, SR); a(t); a(p)
                for kb in range(5):
                    a(f's_waitcnt vmcnt({8-2*kb})'); s.wrA(kb, SR)
            a('s_branch L_d2D\nL_d2B:')
            if s.defer & 2:
                if s.DS: a(f's_sleep {s.DS}')
                for k in range(s.NB1, 14):
                    t, p = s.ldB(k, SR); a(t); a(p)
                for k in range(14):
                    a(f's_waitcnt vmcnt({13-k})'); s.wrB(k, SR)
            a('L_d2D:\ns_waitcnt lgkmcnt(0)')
            s.stamp(13)
        a('s_barrier')
        s.ffn_wregs(streamer=True)
        a('s_branch L_tail')

    def helper(s):
        a = s.a; W0 = 96; s.sv = 92
        wreg = lambda i: f'v[{W0+4*i}:{W0+4*i+3}]'
        a('L_helper:')
        if s.exp & 1: a('s_endpgm')
        s.stamp_reg(84)
        a(f"""s_sub_u32 s9, s3, 4
        v_lshrrev_b32 v2, 4, v1
        v_mul_u32_u24 v2, 40, v2
        s_mul_i32 s7, s9, 160
        v_add_u32 v3, s7, v2
        v_lshlrev_b32 v2, 13, v3
        v_and_b32 v8, 15, v1
        v_lshl_add_u32 v2, v8, 4, v2
        v_lshlrev_b32 v3, 3, v3
        s_mul_i32 s49, s4, 5
        s_lshr_b32 s49, s49, 2
        s_lshl_b32 s49, s49, 4
        v_add_u32 v3, s49, v3
        v_lshlrev_b32 v26, 4, v1
        v_lshlrev_b32 v27, 2, v1
        s_mul_i32 s7, s4, 1280
        s_lshl_b32 s8, s5, 8
        s_mov_b32 s47, 0x20000
        s_sub_u32 s46, 5242880, s8
        s_lshl_b32 s48, s49, 11
        s_waitcnt lgkmcnt(0)
        s_add_u32 s10, s16, s7
        s_addc_u32 s11, s17, 0
        s_add_u32 s44, s22, s8
        s_addc_u32 s45, s23, 0""")
        def clears():
            a(f"""v_mov_b32 v20, -1
            v_mov_b32 v21, -1
            v_mov_b32 v22, -1
            v_mov_b32 v23, -1
            s_mul_i32 s7, s2, 2560
            v_add_u32 v24, s7, v26
            s_lshl_b32 s8, s9, 10
            v_add_u32 v45, s8, v24
            s_mul_i32 s7, s12, 1280
            s_lshl_b32 s8, s67, 7
            s_add_u32 s7, s7, s8
            s_add_u32 s7, s7, {WS_H}
            s_lshl_b32 s8, s67, 8
            s_add_u32 s8, s8, {WS_ACT}
            s_cmp_eq_u32 s66, 0
            s_cselect_b32 s7, s8, s7
            v_add_u32 v25, s7, v27
            s_cmp_lg_u32 s9, {9 if s.exp & 8 else 3}
            s_cbranch_scc1 L_clrd
            {'s_branch L_nopc' if s.nopc else ''}
            global_store_dwordx4 v24, v[20:23], s[38:39] {s.cpol}
            global_store_dwordx4 v24, v[20:23], s[38:39] offset:1024 {s.cpol}
            global_store_dwordx4 v24, v[20:23], s[38:39] offset:1536 {s.cpol}
            L_nopc:
            s_bitcmp1_b32 s66, 0
            s_cbranch_scc1 L_clrd
            s_cmp_eq_u32 s66, 0
            s_cselect_b32 exec_hi, -1, 0
            global_store_dword v25, v20, s[38:39] sc1
            s_mov_b64 exec, -1
            L_clrd:""")
        s.roles()
        if s.early: clears()
        a("""global_load_dwordx4 v[12:15], v26, s[10:11]
        global_load_dword v16, v27, s[10:11] offset:1024""")
        def wq_issue(i):
            if s.nowq: return
            a(f'buffer_load_dwordx4 {wreg(i)}, v2, s[44:47], s48 offen {s.wpol}')
            if i < 39:
                a('s_add_u32 s48, s48, 8192')
                if (i & 3) == 3: a(f's_cmp_eq_u32 s48, {40*8192}\ns_cselect_b32 s48, 0, s48')
        N0 = s.N0
        for i in range(N0): wq_issue(i)
        s.masks()
        a(f"""v_mul_u32_u24 v8, 52429, v1
        v_lshrrev_b32 v8, 18, v8
        v_mul_u32_u24 v8, 160, v8
        v_lshl_add_u32 v8, v1, 5, v8
        v_add_u32 v9, 256, v1
        v_mul_u32_u24 v10, 52429, v9
        v_lshrrev_b32 v10, 20, v10
        v_mul_u32_u24 v10, 160, v10
        v_lshl_add_u32 v9, v9, 3, v10
        s_waitcnt vmcnt({0 if s.nowq else N0})""")
        s.stamp_reg(86)
        s.layernorm(12, 28, 40, True, 20, False)
        a(f"""ds_write_b128 v8, v[28:31] offset:{XD}
        ds_write_b128 v8, v[32:35] offset:{XD+16}
        ds_write_b64 v9, v[36:37] offset:{XD}
        ds_write_b128 v8, v[28:31] offset:{XD+160}
        ds_write_b128 v8, v[32:35] offset:{XD+176}
        ds_write_b64 v9, v[36:37] offset:{XD+160}
        s_waitcnt lgkmcnt(0)""")
        for i in range(10): a(f'ds_read_b128 v[{48+4*i}:{51+4*i}], v3 offset:{XD+16*i}')
        nis = N0
        for i in range(40):
            for _ in range(s.WB + (i == 0)):
                if nis < 40: wq_issue(nis); nis += 1
            if i == 0: a('s_waitcnt lgkmcnt(0)')
            ar = 28 + 4*(i & 1)
            for m in range(4): a(f'v_and_b32 v{ar+m}, v{48+i}, v{4+m}')
            a(f's_waitcnt vmcnt({nis-1-i})')
            if i == 20: s.stamp_reg(88)
            a('s_nop 0')
            a(f'v_mfma_f32_16x16x32_bf16 v[20:23], v[{ar}:{ar+3}], {wreg(i)}, ' + ('0' if i == 0 else 'v[20:23]'))
        a(f"""v_and_b32 v8, 15, v1
        v_lshlrev_b32 v8, 5, v8
        v_lshrrev_b32 v9, 4, v1
        v_lshl_add_u32 v17, v9, 4, v8
        s_lshl_b32 s7, s9, 9
        v_add_u32 v8, s7, v17
        s_nop 3
        s_mov_b32 exec_hi, 0
        ds_write_b128 v8, v[20:23] offset:{QP}
        s_mov_b64 exec, -1
        s_waitcnt lgkmcnt(0)""")
        s.stamp(1)
        for i, r in ((0, 84), (13, 86), (11, 88)): s.stamp(i, r)
        a('s_barrier')
        if not s.early: clears()
        def count():
            a(f"""s_cmp_lg_u32 s9, {9 if s.exp & 72 else 3}
            s_cbranch_scc1 L_cnta
            s_waitcnt vmcnt(0)""")
            if s.cstag:
                a(f"""s_lshr_b32 s7, s2, 2
                L_cst:
                s_sleep {s.cstag}
                s_sub_u32 s7, s7, 1
                s_cbranch_scc0 L_cst""")
            a("""s_mov_b64 exec, 1
            s_and_b32 s7, s2, 3
            s_lshl_b32 s7, s7, 6
            v_mov_b32 v10, s7
            v_mov_b32 v11, 1
            global_atomic_add v10, v11, s[36:37] sc1
            s_mov_b64 exec, -1
            L_cnta:""")
        if not s.latecnt: count()
        a("""s_lshl_b32 s7, s9, 6
        v_add_u32 v18, s7, v1""")
        def stagger(expr, unit):
            if not unit: return
            l = s.lab('sg'); e = s.lab('sge')
            a(expr)
            a(f'{l}:\ns_sub_u32 s7, s7, 1\ns_cbranch_scc1 {e}\ns_sleep {unit}\ns_branch {l}\n{e}:')
        def do_ffn():
            stagger('s_and_b32 s7, s67, 3', s.SG1)
            if s.defer != 3 and not s.noffn:
                def split_load(txt, lanes):
                    for q in range(64 // lanes):
                        m = ((1 << lanes) - 1) << (q * lanes)
                        if lanes < 64: a(f's_mov_b32 exec_lo, {m & 0xffffffff:#x}\ns_mov_b32 exec_hi, {m >> 32:#x}')
                        a(txt)
                        a('s_waitcnt vmcnt(0)')
                    a('s_mov_b64 exec, -1')
                a('s_cmp_ge_u32 s66, 2\ns_cbranch_scc1 L_stD')
                s.stage_setup(18)
                a('s_cmp_eq_u32 s66, 0\ns_cbranch_scc0 L_stB')
                for kb in range(0 if s.defer & 1 else 5):
                    for mt in range(2):
                        t, p = s.ldA(mt, 48); split_load(t, min(64, 2*s.FQ)); a(p)
                    s.wrA(0 if kb < 4 else 0, 48)
                    a('s_waitcnt lgkmcnt(0)')
                a('s_branch L_stD\nL_stB:')
                for k in range(0 if s.defer & 2 else 14):
                    t, p = s.ldB(0, 48); split_load(t, min(64, 2*s.FQ)); a(p)
                    a(f'ds_write_b128 v11, v[48:51] offset:{k*4096}\ns_waitcnt lgkmcnt(0)')
                a('L_stD:')
        def do_wo():
            stagger('s_mov_b32 s7, s4', s.SG2)
            a(f"""v_lshrrev_b32 v8, 4, v1
            v_lshlrev_b32 v8, 3, v8
            s_lshl_b32 s7, s9, 5
            v_add_u32 v19, s7, v8
            v_mul_u32_u24 v8, 1280, v19
            v_and_b32 v9, 15, v1
            v_lshl_add_u32 v8, v9, 4, v8
            s_mul_i32 s8, s5, {128*1280}
            s_add_u32 s44, s24, s8
            s_addc_u32 s45, s25, 0
            s_mov_b32 s46, {128*1280}
            s_mov_b32 s48, 3840
            s_mov_b32 s49, 7680""")
            for i in range(8):
                for n in range(5):
                    so = ('0', 's48', 's49')[i // 3]; off = (i % 3)*1280 + n*256
                    if s.nowo: continue
                    a(f's_waitcnt vmcnt({s.HP-1})')
                    a(f'buffer_load_dwordx4 {wreg(i*5+n)}, v8, s[44:47], {so} offen offset:{off} {s.wpol}')
        if s.wofirst: do_wo(); do_ffn()
        else: do_ffn(); do_wo()
        s.stamp(2)
        if s.latecnt: count()
        a(f"""v_lshlrev_b32 v44, 4, v18
        v_lshlrev_b32 v19, 2, v19
        s_mul_i32 s7, s9, 2560
        v_add_u32 v17, s7, v17
        v_mov_b32 v16, 0
        s_waitcnt vmcnt(0)
        s_cmp_lg_u32 s9, {9 if s.exp & 40 else 3}
        s_cbranch_scc1 L_cntd
        s_cmp_eq_u32 s66, 3
        s_cbranch_scc1 L_cntd
        s_mov_b32 s64, {s.spin}
        L_flg:
        s_sleep 32
        ds_read_b32 v8, v16 offset:{FLG}
        s_waitcnt lgkmcnt(0)
        v_readfirstlane_b32 s7, v8
        s_cmp_lg_u32 s7, 0
        s_cbranch_scc1 L_flgd
        s_sub_u32 s64, s64, 1
        s_cbranch_scc0 L_flg
        L_flgd:
        s_mov_b32 s64, {s.spin}
        v_and_b32 v9, 3, v1
        v_lshlrev_b32 v9, 6, v9
        L_cnt:
        global_load_dword v8, v9, s[36:37] sc1
        s_waitcnt vmcnt(0)
        v_cmp_gt_u32 vcc, 64, v8
        s_cbranch_vccz L_cntd
        s_sleep 127
        s_sub_u32 s64, s64, 1
        s_cbranch_scc0 L_cnt
        L_cntd:
        s_waitcnt lgkmcnt(0)
        s_barrier""")
        if s.exp & 16: a('s_endpgm')
        s.stamp(3)
        for half in range(2):
            for w in range(4):
                a(f'ds_read_b128 v[{48+8*w+4*half}:{51+8*w+4*half}], v19 offset:{OP+w*512+16*half}')
        for half in range(2):
            a(f's_waitcnt lgkmcnt({4-4*half})')
            for e in range(4*half, 4*half+4):
                a(f'v_add_f32 v{48+e}, v{48+e}, v{56+e}\nv_add_f32 v{64+e}, v{64+e}, v{72+e}')
            for e in range(4*half, 4*half+4): a(f'v_add_f32 v{48+e}, v{48+e}, v{64+e}')
            for e in range(4*half, 4*half+4): a(f'v_cvt_pk_bf16_f32 v{48+e}, v{48+e}, v{48+e}')
            for i in range(4*half, 4*half+4):
                ar = 28 + 4*(i & 1)
                for m in range(4): a(f'v_and_b32 v{ar+m}, v{48+i}, v{4+m}')
                a('s_nop 1')
                for n in range(5):
                    acc = (8, 12, 20, 36, 40)[n]
                    a(f'v_mfma_f32_16x16x32_bf16 v[{acc}:{acc+3}], v[{ar}:{ar+3}], {wreg(i*5+n)}, ' + ('0' if i == 0 else f'v[{acc}:{acc+3}]'))
        a('s_mov_b32 exec_hi, 0\ns_nop 3')
        for n in range(5):
            acc = (8, 12, 20, 36, 40)[n]
            a(f'ds_write_b128 v17, v[{acc}:{acc+3}] offset:{WOP+n*512}')
        a("""s_mov_b64 exec, -1
        s_waitcnt lgkmcnt(0)
        s_barrier
        s_cmp_eq_u32 s9, 3
        s_cbranch_scc1 L_pubd""")
        for w in range(4): a(f'ds_read_b128 v[{48+4*w}:{51+4*w}], v44 offset:{WOP+w*2560}')
        a('s_cmp_eq_u32 s9, 2\ns_cselect_b32 exec_hi, 0, -1')
        a('s_waitcnt lgkmcnt(0)')
        for e in range(4): a(f'v_add_f32 v{48+e}, v{48+e}, v{52+e}\nv_add_f32 v{56+e}, v{56+e}, v{60+e}')
        for e in range(4): a(f'v_add_f32 v{48+e}, v{48+e}, v{56+e}')
        for e in range(4): a(f'v_min_u32 v{48+e}, -2, v{48+e}')
        a("""global_store_dwordx4 v45, v[48:51], s[38:39] sc1
        s_mov_b64 exec, -1""")
        s.stamp(4)
        a("""L_pubd:
        s_cmp_ge_u32 s66, 2
        s_cbranch_scc1 L_end
        s_barrier""")
        s.ffn_wregs(streamer=False)

    def tail(s):
        a = s.a; s.sv = 62
        a(f"""L_tail:
        s_cmp_eq_u32 s66, 0
        s_cbranch_scc0 L_tailB
        s_mul_i32 s7, s3, 1280
        s_add_u32 s7, s7, {WS_H}
        v_lshl_add_u32 v8, v1, 4, s7
        v_lshl_add_u32 v9, v1, 2, s7
        s_mul_i32 s7, s3, {XN2S}
        v_lshl_add_u32 v48, v1, 4, s7
        v_lshl_add_u32 v49, v1, 2, s7
        v_and_b32 v10, 7, v1
        v_mul_u32_u24 v11, {XN2S}, v10
        v_lshrrev_b32 v17, 4, v1
        v_lshl_add_u32 v11, v17, 4, v11
        v_lshlrev_b32 v10, 4, v10
        v_lshl_add_u32 v10, v17, 2, v10
        s_lshl_b32 s7, s67, 1
        s_add_u32 s7, s7, s3
        s_lshl_b32 s7, s7, 7
        s_add_u32 s7, s7, {WS_ACT - 256}
        v_add_u32 v10, s7, v10
        s_mov_b32 s55, {f2u(-L2E):#x}""")
        s.poll(['global_load_dwordx4 v[12:15], v8, s[38:39] sc1', 'global_load_dword v16, v9, s[38:39] offset:1024 sc1'],
               [12, 13, 14, 15, 16], 18)
        s.stamp(6)
        s.layernorm(12, 28, 40, False, 20, True)
        s.stamp(10)
        a(f"""ds_write_b128 v48, v[20:23] offset:{XN2}
        ds_write_b32 v49, v24 offset:{XN2+1024}
        s_waitcnt lgkmcnt(0)
        s_barrier
        s_and_b32 s7, s3, 6
        s_cmp_lg_u32 s7, 2
        s_cbranch_scc1 L_end""")
        for m in range(20): a(f'ds_read_b128 v[{144+4*m}:{147+4*m}], v11 offset:{XN2+m*64}')
        for m in range(20):
            a(f's_waitcnt lgkmcnt({min(15, 19-m)})')
            a(f'v_mfma_f32_16x16x32_bf16 v[20:23], v[{64+4*m}:{67+4*m}], v[{144+4*m}:{147+4*m}], ' + ('0' if m == 0 else 'v[20:23]'))
        a("""s_nop 7
        v_cvt_pk_bf16_f32 v20, v20, v21
        v_cvt_pk_bf16_f32 v22, v22, v23
        v_lshlrev_b32 v24, 16, v20
        v_and_b32 v25, 0xffff0000, v20
        v_mul_f32 v26, s55, v24
        v_mul_f32 v27, s55, v25
        v_exp_f32 v26, v26
        v_exp_f32 v27, v27
        v_lshlrev_b32 v28, 16, v22
        v_add_f32 v26, 1.0, v26
        v_add_f32 v27, 1.0, v27
        v_rcp_f32 v26, v26
        v_rcp_f32 v27, v27
        v_and_b32 v29, 0xffff0000, v22
        v_mul_f32 v24, v24, v26
        v_mul_f32 v25, v25, v27
        v_cvt_pk_bf16_f32 v24, v24, v25
        v_lshlrev_b32 v26, 16, v24
        v_and_b32 v27, 0xffff0000, v24
        v_mul_f32 v26, v26, v28
        v_mul_f32 v27, v27, v29
        v_cvt_pk_bf16_f32 v26, v26, v27
        v_min_u32 v24, -2, v26
        v_min_u32 v25, -2, v26
        s_nop 1
        v_permlane16_swap_b32 v24, v25
        v_mov_b32 v26, v24
        v_mov_b32 v27, v25
        s_nop 0
        v_permlane32_swap_b32 v24, v26
        v_permlane32_swap_b32 v25, v27
        s_mov_b64 exec, 0xff
        global_store_dwordx4 v10, v[24:27], s[38:39] sc1""")
        s.stamp(7)
        a('s_endpgm')
        a(f"""L_tailB:
        v_and_b32 v10, 7, v1
        v_lshrrev_b32 v17, 4, v1
        v_lshlrev_b32 v8, 4, v10
        v_lshl_add_u32 v8, v17, 7, v8
        s_lshl_b32 s7, s3, 9
        s_add_u32 s7, s7, {WS_ACT}
        v_add_u32 v8, s7, v8
        v_add_u32 v9, 0x2000, v8
        v_add_u32 v11, 0x4000, v8
        s_movk_i32 s8, 0x5000
        s_cmp_lt_u32 s3, 6
        s_cselect_b32 s8, 0x6000, s8
        v_add_u32 v12, s8, v8
        v_mul_u32_u24 v13, 1280, v10
        v_lshl_add_u32 v13, v17, 3, v13
        s_lshl_b32 s7, s67, 5
        v_add_u32 v13, s7, v13
        v_add_u32 v14, {WS_H}, v13
        v_lshlrev_b32 v60, 6, v10
        v_lshl_add_u32 v60, v17, 4, v60
        s_lshl_b32 s7, s3, 9
        v_add_u32 v61, s7, v60
        s_add_u32 s68, s38, 4096
        s_addc_u32 s69, s39, 0
        s_cmp_lg_u32 s3, 3
        s_cbranch_scc1 L_noh""")
        s.poll(['global_load_dwordx2 v[18:19], v14, s[38:39] sc1'], [18, 19], 15)
        a('L_noh:')
        if s.gate: a(f's_barrier\ns_sleep {s.gate}')
        loads = []
        for i in range(7):
            base = (8, 8, 9, 9, 11, 11, 12)[i]
            sb = 's[68:69]' if (i < 6 and (i & 1)) else 's[38:39]'
            loads.append(f'global_load_dwordx4 v[{96+4*i}:{99+4*i}], v{base}, {sb} sc1')
        s.poll(loads, list(range(96, 124)), 15)
        s.stamp(6)
        a('s_waitcnt lgkmcnt(0)')
        for i in range(7):
            a(f'v_mfma_f32_16x16x32_bf16 v[20:23], v[{64+4*i}:{67+4*i}], v[{96+4*i}:{99+4*i}], ' + ('0' if i == 0 else 'v[20:23]'))
        a(f"""s_mov_b32 exec_lo, 0x00ff00ff
        s_mov_b32 exec_hi, 0x00ff00ff
        v_lshlrev_b32 v56, 16, v18
        v_and_b32 v57, 0xffff0000, v18
        v_lshlrev_b32 v58, 16, v19
        v_and_b32 v59, 0xffff0000, v19
        s_nop 1
        ds_write_b128 v61, v[20:23] offset:{BP}
        s_waitcnt lgkmcnt(0)
        s_barrier
        s_cmp_lg_u32 s3, 3
        s_cbranch_scc1 L_end""")
        for w in range(8): a(f'ds_read_b128 v[{24+4*w}:{27+4*w}], v60 offset:{BP+w*512}')
        a('s_waitcnt lgkmcnt(0)')
        for step in (16, 8, 4):
            for r in range(step): a(f'v_add_f32 v{24+r}, v{24+r}, v{24+step+r}')
        a("""v_cvt_pk_bf16_f32 v24, v24, v25
        v_cvt_pk_bf16_f32 v26, v26, v27
        v_lshlrev_b32 v28, 16, v24
        v_and_b32 v29, 0xffff0000, v24
        v_lshlrev_b32 v30, 16, v26
        v_and_b32 v31, 0xffff0000, v26
        v_add_f32 v24, v56, v28
        v_add_f32 v25, v57, v29
        v_add_f32 v26, v58, v30
        v_add_f32 v27, v59, v31
        v_cvt_pk_bf16_f32 v24, v24, v25
        v_cvt_pk_bf16_f32 v25, v26, v27
        global_store_dwordx2 v13, v[24:25], s[34:35] """ + s.opol)
        s.stamp(7)
        s.mstamp(7)

    def text(s):
        s.gen()
        body = '\n'.join(s.L)
        k = NAME + '_kernel'
        return f"""{HEADER}; @launch grid=(256,1,1) block=(512,1,1) lds={LDS_BYTES}
.amdgcn_target "amdgcn-amd-amdhsa--gfx950"
.text
.globl {k}
.p2align 8
.type {k},@function
{k}:
{body}
.section .rodata,"a"
.p2align 6
.amdhsa_kernel {k}
  .amdhsa_next_free_vgpr 256
  .amdhsa_next_free_sgpr 102
  .amdhsa_accum_offset 256
  .amdhsa_group_segment_fixed_size 0
  .amdhsa_kernarg_size 96
  .amdhsa_user_sgpr_count 2
  .amdhsa_user_sgpr_kernarg_segment_ptr 1
  .amdhsa_system_sgpr_workgroup_id_x 1
  .amdhsa_float_denorm_mode_32 3
.end_amdhsa_kernel
"""

def parse_kw(args):
    kw = {}
    for x in args:
        k, v = x.split('=')
        try: v = int(v)
        except ValueError: v = v.replace('+', ' ').replace('-', '')
        kw[k] = v
    return kw

if __name__ == '__main__':
    open(sys.argv[1], 'w').write(G(**parse_kw(sys.argv[2:])).text())
```

```python
import sys, struct

NAME = 'sequential_preLN__mha_block_cached__swiglu_ffn__decode'
def f2u(x): return struct.unpack('<I', struct.pack('<f', x))[0]

HEADER = """; Kernarg layout for this problem (96 bytes, ptrs only, base s[0:1]):
;
"""

WS_P   = 0
WS_H   = 256*2560
WS_ACT = WS_H + 10240
WS_STAMP = 1 << 20

XD  = 0
QP  = 5120
OP  = 7168
ST  = 9216
FLG = ST + 64
SC0 = 9344
SCW = 64*64
WOP = SC0 + 4*SCW
XN2 = WOP + 10240
XN2S = 1296
BP  = XN2
IMG = XN2 + 8*XN2S
LDS_BYTES = IMG + 57344
L2E = 1.4426950408889634

DEF = dict(D=5, D0=6, DP=6, DE=8, NE=6, NP=48, N0=8, WB=40, HP=4, FQ=16, kvpol='nt', wpol='', fpol='', opol='',
           stamps=0, spin=1 << 19, psleep=0, defer=0, gate=0, NB1=3, DS=4, flat=1, XE=4, mst=0, exp=0, early=1, KP='', VP='', SG1=0, SG2=0, wofirst=0, latecnt=1, cstag=0, cpol='sc1', nopc=0, nowo=0, nowq=0, noffn=0)

class G:
    def __init__(s, **kw):
        for k, v in DEF.items(): setattr(s, k, v)
        for k, v in kw.items():
            assert k in DEF, k
            setattr(s, k, v)
        s.L = []; s.nl = 0; s.sv = 62
    def a(s, t):
        for line in t.strip('\n').split('\n'):
            line = line.strip()
            if line: s.L.append(line if line.endswith(':') else '    ' + line)
    def lab(s, p):
        s.nl += 1; return f'L_{p}_{s.nl}'
    def stamp_reg(s, r):
        if s.stamps: s.a(f's_memrealtime s[{r}:{r+1}]')
    def stamp(s, idx, r=None):
        if not s.stamps: return
        s.a('s_memrealtime s[92:93]' if r is None else 's_nop 0')
        s.a('s_waitcnt lgkmcnt(0)')
        if r is not None: s.a(f's_mov_b32 s92, s{r}')
        s.a(f"""s_mov_b64 s[94:95], exec
        s_mov_b64 exec, 1
        s_lshl_b32 s93, s2, 3
        s_add_u32 s93, s93, s3
        s_lshl_b32 s93, s93, 6
        s_add_u32 s93, s93, {WS_STAMP + idx*4}
        v_mov_b32 v{s.sv}, s93
        v_mov_b32 v{s.sv+1}, s92
        global_store_dword v{s.sv}, v{s.sv+1}, s[38:39]
        s_mov_b64 exec, s[94:95]""")

    def mstamp(s, idx, r=None):
        if not s.mst: return
        keep = s.stamps; s.stamps = 1
        n0 = len(s.L)
        s.stamp(idx, r)
        s.L[n0:] = [l + ' sc1' if 'global_store' in l else l for l in s.L[n0:]]
        s.stamps = keep
    def wave_sum(s, v, sd):
        for c in ('row_ror:8', 'row_ror:4', 'row_ror:2', 'row_ror:1'):
            s.a(f's_nop 1\nv_add_f32_dpp v{v}, v{v}, v{v} {c} row_mask:0xf bank_mask:0xf')
        s.a(f's_nop 1\nv_add_f32_dpp v{v}, v{v}, v{v} row_bcast:15 row_mask:0xa bank_mask:0xf')
        s.a(f's_nop 1\nv_add_f32_dpp v{v}, v{v}, v{v} row_bcast:31 row_mask:0xc bank_mask:0xf')
        s.a(f's_nop 1\nv_readlane_b32 s{sd}, v{v}, 63')

    def layernorm(s, src, f, t, dup, o, fast):
        a = s.a
        for i in range(5):
            a(f'v_lshlrev_b32 v{f+2*i}, 16, v{src+i}\nv_and_b32 v{f+2*i+1}, 0xffff0000, v{src+i}')
        a(f's_mov_b32 s61, {f2u(1.0/640):#x}')
        if fast:
            a(f'v_readfirstlane_b32 s59, v{f}\ns_nop 1')
            a(f'v_subrev_f32 v{t}, s59, v{f+1}\nv_mul_f32 v{t+2}, v{t}, v{t}')
            for i in [0] + list(range(2, 10)):
                a(f'v_subrev_f32 v{t+1}, s59, v{f+i}\nv_add_f32 v{t}, v{t}, v{t+1}\nv_fmac_f32 v{t+2}, v{t+1}, v{t+1}')
            for c in ('row_ror:8 row_mask:0xf', 'row_ror:4 row_mask:0xf', 'row_ror:2 row_mask:0xf', 'row_ror:1 row_mask:0xf',
                      'row_bcast:15 row_mask:0xa', 'row_bcast:31 row_mask:0xc'):
                a(f's_nop 0\nv_add_f32_dpp v{t}, v{t}, v{t} {c} bank_mask:0xf\nv_add_f32_dpp v{t+2}, v{t+2}, v{t+2} {c} bank_mask:0xf')
            a(f'v_readlane_b32 s60, v{t}, 63\nv_readlane_b32 s58, v{t+2}, 63\ns_nop 0')
            a(f'v_mov_b32 v{t}, s60\nv_mov_b32 v{t+2}, s58\nv_mul_f32 v{t}, s61, v{t}\nv_mul_f32 v{t+2}, s61, v{t+2}')
            a(f'v_fma_f32 v{t+2}, -v{t}, v{t}, v{t+2}\nv_add_f32 v{t}, s59, v{t}\nv_max_f32 v{t+2}, 0, v{t+2}')
            a(f'v_cvt_pk_bf16_f32 v{t}, v{t}, v{t+2}\nv_and_b32 v{t+2}, 0xffff0000, v{t}\nv_lshlrev_b32 v{t}, 16, v{t}')
        else:
            a(f'v_add_f32 v{t}, v{f}, v{f+1}')
            for i in range(2, 10): a(f'v_add_f32 v{t}, v{t}, v{f+i}')
            s.wave_sum(t, 60)
            a(f's_nop 1\nv_mov_b32 v{t}, s60\nv_mul_f32 v{t}, s61, v{t}')
            a(f'v_sub_f32 v{t+1}, v{f}, v{t}\nv_mul_f32 v{t+2}, v{t+1}, v{t+1}')
            for i in range(1, 10):
                a(f'v_sub_f32 v{t+1}, v{f+i}, v{t}\nv_fmac_f32 v{t+2}, v{t+1}, v{t+1}')
            s.wave_sum(t+2, 60)
            a(f'v_cvt_pk_bf16_f32 v{t}, v{t}, v{t}\nv_lshlrev_b32 v{t}, 16, v{t}')
            a(f'v_mov_b32 v{t+2}, s60\nv_mul_f32 v{t+2}, s61, v{t+2}')
            a(f'v_cvt_pk_bf16_f32 v{t+2}, v{t+2}, v{t+2}\nv_lshlrev_b32 v{t+2}, 16, v{t+2}')
        a(f'v_add_f32 v{t+2}, {f2u(1e-5):#x}, v{t+2}')
        a(f'v_cvt_pk_bf16_f32 v{t+2}, v{t+2}, v{t+2}\nv_lshlrev_b32 v{t+2}, 16, v{t+2}')
        a(f'v_sqrt_f32 v{t+2}, v{t+2}')
        for i in range(10): a(f'v_sub_f32 v{f+i}, v{f+i}, v{t}')
        a(f'v_cvt_pk_bf16_f32 v{t+2}, v{t+2}, v{t+2}\nv_lshlrev_b32 v{t+2}, 16, v{t+2}')
        a(f'v_rcp_f32 v{t+3}, v{t+2}')
        for i in range(5): a(f'v_cvt_pk_bf16_f32 v{o+i}, v{f+2*i}, v{f+2*i+1}')
        for i in range(5):
            a(f'v_lshlrev_b32 v{f+2*i}, 16, v{o+i}\nv_and_b32 v{f+2*i+1}, 0xffff0000, v{o+i}')
        for i in range(10):
            if fast: a(f'v_mul_f32 v{f+i}, v{f+i}, v{t+3}')
            else: a(f'v_mul_f32 v{t}, v{f+i}, v{t+3}\nv_fma_f32 v{t+1}, -v{t}, v{t+2}, v{f+i}\nv_fma_f32 v{f+i}, v{t+1}, v{t+3}, v{t}')
        if dup:
            for i in range(10): a(f'v_cvt_pk_bf16_f32 v{f+i}, v{f+i}, v{f+i}')
        else:
            for i in range(5): a(f'v_cvt_pk_bf16_f32 v{o+i}, v{f+2*i}, v{f+2*i+1}')

    def poll(s, loads, regs, t):
        a = s.a
        lp = s.lab('poll'); ld = s.lab('polld')
        a(f's_mov_b64 s[62:63], exec\ns_mov_b32 s64, {s.spin}')
        a(f'{lp}:')
        for l in loads: a(l)
        a('s_waitcnt vmcnt(0)')
        r = list(regs)
        if len(r) == 2: a(f'v_max_u32 v{t}, v{r[0]}, v{r[1]}'); r = []
        else:
            a(f'v_max3_u32 v{t}, v{r[0]}, v{r[1]}, v{r[2]}'); r = r[3:]
        while len(r) >= 2:
            a(f'v_max3_u32 v{t}, v{t}, v{r[0]}, v{r[1]}'); r = r[2:]
        if r: a(f'v_max_u32 v{t}, v{t}, v{r[0]}')
        a(f'v_cmpx_eq_u32 vcc, -1, v{t}')
        a(f's_cbranch_execz {ld}')
        if s.psleep: a(f's_sleep {s.psleep}')
        a(f's_sub_u32 s64, s64, 1\ns_cbranch_scc0 {lp}')
        a(f'{ld}:')
        a('s_mov_b64 exec, s[62:63]\ns_nop 2')

    def roles(s):
        s.a("""s_and_b32 s12, s2, 7
        s_lshr_b32 s13, s2, 3
        s_min_u32 s14, s12, 3
        s_lshl_b32 s14, s14, 2
        s_mul_i32 s67, s12, 12
        s_add_u32 s67, s67, s14
        s_add_u32 s67, s67, s13
        s_cmp_lt_u32 s12, 3
        s_cselect_b32 s14, 16, 12
        s_mov_b32 s66, 0
        s_sub_u32 s13, s13, s14
        s_cbranch_scc1 L_role%d
        s_sub_u32 s14, s12, 3
        s_max_i32 s14, s14, 0
        s_min_i32 s14, s14, 2
        s_add_u32 s14, s14, s12
        s_lshl_b32 s14, s14, 2
        s_add_u32 s67, s14, s13
        s_sub_u32 s14, s12, 3
        s_cmp_lt_u32 s14, 2
        s_cselect_b32 s14, 8, 4
        s_mov_b32 s66, 1
        s_sub_u32 s13, s13, s14
        s_cbranch_scc1 L_role%d
        s_mov_b32 s67, s13
        s_mov_b32 s66, 2
        s_cmp_lt_u32 s13, 10
        s_cbranch_scc1 L_role%d
        s_mov_b32 s66, 3
        s_mov_b32 s67, 0
        L_role%d:""" % ((s.nl,)*4))
        s.nl += 1

    def masks(s):
        s.a("""v_and_b32 v8, 15, v1
        v_and_b32 v9, 1, v1
        v_lshlrev_b32 v9, 4, v9
        v_mov_b32 v10, 0xffff
        v_lshlrev_b32 v10, v9, v10
        v_lshrrev_b32 v11, 1, v8""")
        for m in range(4):
            s.a(f'v_cmp_eq_u32 vcc, {m}, v11\ns_nop 1\nv_cndmask_b32 v{4+m}, 0, v10, vcc')

    def gen(s):
        a = s.a
        s.stamp_reg(80)
        if s.mst: a('s_memrealtime s[80:81]')
        a("""s_cmp_ge_u32 s2, 256
        s_cbranch_scc1 L_end
        s_load_dwordx16 s[16:31], s[0:1], 0
        s_load_dwordx8 s[32:39], s[0:1], 64
        v_lshrrev_b32 v2, 6, v0
        v_and_b32 v1, 63, v0
        v_readfirstlane_b32 s3, v2
        s_lshr_b32 s4, s2, 5
        s_and_b32 s5, s2, 31
        s_cmp_ge_u32 s3, 4
        s_cbranch_scc1 L_helper""")
        s.streamer()
        s.helper()
        s.tail()
        a('L_end:\ns_endpgm')

    def stage_setup(s, T):
        a = s.a
        lb = s.lab('sgB'); ld = s.lab('sgD')
        a(f"""v_lshrrev_b32 v8, 1, v{T}
        v_and_b32 v9, 1, v{T}
        s_lshl_b32 s8, s67, 5
        s_mov_b32 s71, 0x20000
        s_mov_b32 s75, 0x20000
        s_sub_u32 s70, 2211840, s8
        s_mov_b32 s74, s70
        s_mov_b32 s76, 0
        s_cmp_eq_u32 s66, 0
        s_cbranch_scc0 {lb}
        s_add_u32 s68, s28, s8
        s_addc_u32 s69, s29, 0
        s_add_u32 s72, s30, s8
        s_addc_u32 s73, s31, 0
        s_mov_b32 s7, 3456
        v_mul_lo_u32 v10, v8, s7
        v_lshl_add_u32 v10, v9, 4, v10
        v_lshlrev_b32 v11, 5, v{T}
        s_branch {ld}
        {lb}:
        s_add_u32 s68, s32, s8
        s_addc_u32 s69, s33, 0
        s_mov_b32 s72, s68
        s_mov_b32 s73, s69
        v_mul_u32_u24 v10, 1280, v8
        v_lshl_add_u32 v10, v9, 4, v10
        v_lshlrev_b32 v11, 4, v{T}
        {ld}:
        v_add_u32 v11, {IMG}, v11""")
    def ldA(s, k, R):
        srd = 's[68:71]' if (k & 1) == 0 else 's[72:75]'
        t = f'buffer_load_dwordx4 v[{R+4*k}:{R+4*k+3}], v10, {srd}, s76 offen {s.fpol}'
        post = f's_add_u32 s76, s76, {128*3456}' if k & 1 else ''
        return t, post
    def ldB(s, k, R):
        return f'buffer_load_dwordx4 v[{R+4*k}:{R+4*k+3}], v10, s[68:71], s76 offen {s.fpol}', f's_add_u32 s76, s76, {128*1280}'
    def wrA(s, kb, R):
        for q in range(4):
            s.a(f'ds_write2_b32 v11, v{R+8*kb+q}, v{R+8*kb+4+q} offset0:{2*q} offset1:{2*q+1}')
        if kb < 4: s.a('v_add_u32 v11, 8192, v11')
    def wrB(s, k, R):
        s.a(f'ds_write_b128 v11, v[{R+4*k}:{R+4*k+3}] offset:{k*4096}')

    def ffn_wregs(s, streamer):
        a = s.a
        la = s.lab('wa'); ld = s.lab('wd')
        a(f"""v_lshrrev_b32 v46, 4, v1
        v_lshlrev_b32 v46, 3, v46
        v_bfe_u32 v47, v1, 2, 2
        v_add_u32 v46, v46, v47
        v_and_b32 v47, 3, v1
        v_lshlrev_b32 v47, 3, v47
        v_add_u32 v47, {IMG}, v47
        s_cmp_eq_u32 s66, 0
        s_cbranch_scc1 {la}
        v_lshl_add_u32 v46, v46, 5, v47
        s_lshl_b32 s7, s3, 10
        v_add_u32 v46, s7, v46""")
        for i in range(7):
            a(f'ds_read_b64_tr_b16 v[{64+4*i}:{65+4*i}], v46 offset:{i*8192}')
            a(f'ds_read_b64_tr_b16 v[{66+4*i}:{67+4*i}], v46 offset:{i*8192+128}')
        a(f's_branch {ld}\n{la}:')
        if streamer:
            a(f"""s_cmp_lt_u32 s3, 2
            s_cbranch_scc1 {ld}
            v_lshl_add_u32 v46, v46, 6, v47
            s_sub_u32 s7, s3, 2
            s_lshl_b32 s7, s7, 5
            v_add_u32 v46, s7, v46""")
            for m in range(20):
                a(f'ds_read_b64_tr_b16 v[{64+4*m}:{65+4*m}], v46 offset:{m*2048}')
                a(f'ds_read_b64_tr_b16 v[{66+4*m}:{67+4*m}], v46 offset:{m*2048+256}')
        a(f'{ld}:')

    def streamer(s):
        a = s.a; D = s.D; R0 = 64; NP = s.NP; R = 16; s.sv = 62
        assert NP % 16 == 0
        slot = lambda p: f'v[{R0+4*p}:{R0+4*p+3}]'
        def issue(p, t):
            a(f'buffer_load_dwordx4 {slot(p)}, v2, s[40:43], s44 offen offset:{t*1024} {s.kvpol}')
            if t == 3: a('s_add_u32 s44, s44, 16384')
        a("""v_bfe_u32 v2, v1, 2, 2
        v_lshlrev_b32 v2, 8, v2
        v_lshrrev_b32 v3, 4, v1
        v_lshl_add_u32 v2, v3, 6, v2
        v_and_b32 v3, 3, v1
        v_lshl_add_u32 v2, v3, 4, v2
        s_lshl_b32 s6, s2, 20
        s_lshl_b32 s44, s3, 12
        s_mov_b32 s42, 0x100000
        s_mov_b32 s43, 0x20000
        s_waitcnt lgkmcnt(0)
        s_add_u32 s40, s18, s6
        s_addc_u32 s41, s19, 0""")
        s.stamp_reg(82)
        for i in range(s.D0): issue(i, i & 3)
        s.stamp(0); s.stamp(11, 80); s.stamp(12, 82)
        a("""s_add_u32 s48, s20, s6
        s_addc_u32 s49, s21, 0
        v_lshlrev_b32 v3, 4, v1""")
        s.roles()
        a("""v_and_b32 v8, 15, v1
        v_lshlrev_b32 v8, 3, v8
        s_min_u32 s8, s67, 9
        s_lshl_b32 s8, s8, 7
        s_mul_i32 s7, s12, 1280
        s_add_u32 s7, s7, s8
        v_add_u32 v44, s7, v8
        global_load_dwordx2 v[42:43], v44, s[16:17]""")
        s.masks()
        a(f"""s_mov_b32 s50, 0xaaaaaaaa
        s_mov_b32 s51, 0xaaaaaaaa
        s_mov_b32 s52, 0xcccccccc
        s_mov_b32 s53, 0xcccccccc
        s_mov_b32 s54, {f2u(128**-0.5):#x}
        s_mov_b32 s55, {f2u(L2E):#x}
        v_mov_b32 v34, 0xff7fffff
        v_mov_b32 v36, 0
        s_mul_i32 s7, s3, {SCW}
        s_add_u32 s7, s7, {SC0}
        v_and_b32 v35, 60, v1
        v_add_u32 v35, s7, v35
        v_lshrrev_b32 v8, 4, v1
        v_lshlrev_b32 v8, 2, v8
        v_and_b32 v9, 3, v1
        v_add_u32 v8, v8, v9
        v_lshlrev_b32 v45, 5, v8
        s_lshl_b32 s7, s3, 4
        v_mov_b32 v61, s7
        ds_write_b32 v61, v36 offset:{ST+8}
        ds_write_b32 v36, v36 offset:{FLG}
        v_and_b32 v8, 15, v1
        v_lshlrev_b32 v8, 5, v8
        v_lshrrev_b32 v9, 4, v1
        v_lshl_add_u32 v8, v9, 4, v8
        s_lshl_b32 s7, s3, 9
        v_add_u32 v60, s7, v8
        s_waitcnt lgkmcnt(0)""")
        for i in range(s.D0, NP):
            a(f's_waitcnt vmcnt({s.DP-1})')
            issue(i, i & 3)
        s.stamp(4)
        a('s_barrier')
        s.stamp(1)
        a(f"""ds_read_b128 v[46:49], v45 offset:{QP}
        ds_read_b128 v[50:53], v45 offset:{QP+16}
        ds_read_b128 v[54:57], v45 offset:{QP+512}
        ds_read_b128 v[16:19], v45 offset:{QP+512+16}
        ds_read_b128 v[24:27], v45 offset:{QP+1024}
        ds_read_b128 v[28:31], v45 offset:{QP+1024+16}
        ds_read_b128 v[8:11], v45 offset:{QP+1536}
        ds_read_b128 v[12:15], v45 offset:{QP+1536+16}
        s_waitcnt lgkmcnt(0)""")
        for e in range(8):
            b1 = 54+e if e < 4 else 12+e
            a(f'v_add_f32 v{46+e}, v{46+e}, v{b1}\nv_add_f32 v{24+e}, v{24+e}, v{8+e}')
        for e in range(8): a(f'v_add_f32 v{46+e}, v{46+e}, v{24+e}')
        for m in range(4): a(f'v_cvt_pk_bf16_f32 v{54+m}, v{46+2*m}, v{47+2*m}')
        for t in range(4):
            mk = 0x000f000f << (4*t)
            a(f's_mov_b32 s56, {mk:#x}\ns_mov_b32 s57, {mk:#x}')
            for m in range(4): a(f'v_cndmask_b32 v{8+4*t+m}, 0, v{54+m}, s[56:57]')
        a('s_nop 1')
        Dreg = lambda g: 24 + 4*(g & 1)
        def post1(g):
            if s.exp & 2: return
            d = Dreg(g)
            a(f"""s_nop 1
            v_cndmask_b32 v32, v{d}, v{d+1}, s[50:51]
            v_cndmask_b32 v33, v{d+2}, v{d+3}, s[50:51]
            v_cndmask_b32 v32, v32, v33, s[52:53]
            s_nop 1
            v_add_f32_dpp v32, v32, v32 quad_perm:[1,0,3,2] row_mask:0xf bank_mask:0xf
            s_nop 1
            v_add_f32_dpp v32, v32, v32 quad_perm:[2,3,0,1] row_mask:0xf bank_mask:0xf""")
        def post2a(off):
            if s.exp & 2: return
            a(f"""v_cvt_pk_bf16_f32 v32, v32, v32
            v_lshlrev_b32 v32, 16, v32
            v_mul_f32 v32, s54, v32
            v_cvt_pk_bf16_f32 v32, v32, v32
            v_lshlrev_b32 v32, 16, v32
            v_max_f32 v33, v34, v32
            ds_write_b32 v35, v32 offset:{off}""")
        def post2b():
            if s.exp & 2: return
            a("""v_sub_f32 v40, v34, v33
            v_sub_f32 v46, v32, v33
            v_mul_f32 v40, s55, v40
            v_mul_f32 v46, s55, v46
            v_exp_f32 v40, v40
            v_exp_f32 v46, v46
            v_mov_b32 v34, v33
            v_fma_f32 v36, v36, v40, v46""")
        def post2(off):
            post2a(off); post2b()
        def kcons(p, gi, t):
            d = Dreg(gi)
            c = '0' if t == 0 else f'v[{d}:{d+3}]'
            if not s.exp & 4: a(f'v_mfma_f32_16x16x32_bf16 v[{d}:{d+3}], {slot(p)}, v[{8+4*t}:{11+4*t}], {c}')
        nis = 0
        per = max(1, (NP - 1) // 15)
        for i in range(NP):
            gi, t = i >> 2, i & 3
            need = (NP + nis - 1) - i
            if i >= NP - s.DP: a(f's_waitcnt vmcnt({min(need, 63)})')
            kcons(i, gi, t)
            if gi > 0 and t == 2: a('s_nop 3'); post1(gi - 1)
            if gi > 0 and t == 3: post2((gi - 1) * 64)
            if nis < 15 and i >= nis and (i + 1) % per == 0:
                a(f's_waitcnt vmcnt({D-1})')
                issue(nis, nis & 3); nis += 1
        assert nis == 15, nis
        a(f'v_add_u32 v35, {(NP//4-1)*64}, v35')
        nk = (256 - NP) // R
        a('s_mov_b32 s45, 0')
        a('L_kloop:')
        KP = [int(c) for c in str(s.KP)] or [D]
        VP = [int(c) for c in str(s.VP)] or [D]
        for st in range(R):
            gi, t = st >> 2, st & 3
            a(f's_waitcnt vmcnt({KP[st % len(KP)]-1})')
            issue((st - 1) % R, (st - 1) & 3)
            if st == 0:
                a(f"""s_cmp_lg_u32 s45, {nk-1}
                s_cbranch_scc1 L_nosw
                s_mov_b32 s40, s48
                s_mov_b32 s41, s49
                s_lshl_b32 s44, s3, 12
                v_mov_b32 v2, v3
                L_nosw:""")
            kcons(st, gi, t)
            if s.flat:
                if t == 1: post1(gi - 1)
                if t == 2: post2a(gi * 64)
                if t == 3: post2b()
            else:
                if t == 2: post1(gi - 1)
                if t == 3: post2(gi * 64)
        a(f"""v_add_u32 v35, {R*16}, v35
        s_add_u32 s45, s45, 1
        s_cmp_lt_u32 s45, {nk}
        s_cbranch_scc1 L_kloop""")
        XE = s.XE; RV = 32 if XE else 16; LAG = 15 + XE
        xi = [0]
        def xissue():
            if xi[0] < XE:
                j = 15 + xi[0]; xi[0] += 1
                a(f's_waitcnt vmcnt({D-1})'); issue(j, j & 3)
        xissue()
        post1(1); post2(0)
        xissue()
        a(f"""s_nop 0
        v_max_f32_dpp v33, v34, v34 row_ror:4 row_mask:0xf bank_mask:0xf
        v_subrev_u32 v35, {63*64}, v35
        v_mov_b32 v28, 0
        v_max_f32_dpp v33, v33, v33 row_ror:8 row_mask:0xf bank_mask:0xf
        v_mov_b32 v29, 0
        v_readlane_b32 s56, v33, 0
        v_readlane_b32 s57, v33, 16
        v_readlane_b32 s58, v33, 32
        v_readlane_b32 s59, v33, 48
        v_mov_b32 v30, 0
        v_mov_b32 v48, s56
        v_max_f32 v48, s57, v48
        v_max_f32 v48, s58, v48
        v_max_f32 v48, s59, v48
        v_sub_f32 v40, v34, v48
        v_mul_f32 v40, s55, v40
        v_exp_f32 v40, v40
        v_mov_b32 v31, 0
        v_mul_f32 v36, v36, v40
        v_mov_b32 v50, 1
        v_mov_b32 v51, 1
        v_add_f32_dpp v36, v36, v36 row_ror:4 row_mask:0xf bank_mask:0xf
        s_nop 1
        v_add_f32_dpp v36, v36, v36 row_ror:8 row_mask:0xf bank_mask:0xf
        s_nop 0
        v_readlane_b32 s56, v36, 0
        v_readlane_b32 s57, v36, 16
        v_readlane_b32 s58, v36, 32
        v_readlane_b32 s59, v36, 48
        v_mov_b32 v33, 0
        v_mov_b32 v49, s56
        v_add_f32 v49, s57, v49
        v_add_f32 v49, s58, v49
        v_add_f32 v49, s59, v49
        ds_write_b128 v61, v[48:51] offset:{ST}""")
        xissue()
        a(f"""s_mov_b32 s64, {s.spin}
        L_stw:
        ds_read_b128 v[8:11], v33 offset:{ST}
        ds_read_b128 v[12:15], v33 offset:{ST+16}
        ds_read_b128 v[16:19], v33 offset:{ST+32}
        ds_read_b128 v[20:23], v33 offset:{ST+48}
        ds_read_b32 v39, v35
        s_waitcnt lgkmcnt(0)
        v_and_b32 v40, v10, v14
        v_and_b32 v46, v18, v22
        v_and_b32 v40, v40, v46
        s_nop 0
        v_readfirstlane_b32 s7, v40
        s_cmp_lg_u32 s7, 0
        s_cbranch_scc1 L_stwd
        s_sub_u32 s64, s64, 1
        s_cbranch_scc0 L_stw
        L_stwd:""")
        while xi[0] < XE: xissue()
        a(f"""v_max_f32 v41, v8, v12
        v_max3_f32 v41, v41, v16, v20
        v_sub_f32 v8, v8, v41
        v_sub_f32 v12, v12, v41
        v_sub_f32 v16, v16, v41
        v_sub_f32 v20, v20, v41
        v_mul_f32 v8, s55, v8
        v_mul_f32 v12, s55, v12
        v_mul_f32 v16, s55, v16
        v_mul_f32 v20, s55, v20
        v_exp_f32 v8, v8
        v_exp_f32 v12, v12
        v_exp_f32 v16, v16
        v_exp_f32 v20, v20
        v_mul_f32 v40, v8, v9
        v_fmac_f32 v40, v12, v13
        v_fmac_f32 v40, v16, v17
        v_fmac_f32 v40, v20, v21
        v_rcp_f32 v47, v40
        s_nop 0
        v_fma_f32 v46, -v40, v47, 1.0
        v_fmac_f32 v47, v46, v47""")
        s.stamp(2)
        def prep(g):
            if s.exp & 2: return
            a(f"""s_waitcnt lgkmcnt(0)
            v_sub_f32 v39, v39, v41
            v_mul_f32 v39, s55, v39
            v_exp_f32 v39, v39
            s_nop 0
            v_mul_f32 v39, v39, v47
            v_cvt_pk_bf16_f32 v{37+(g&1)}, v39, v39""")
        prep(0)
        a('s_nop 0')
        def vstep(st, Dv, left=None):
            gi, t = st >> 2, st & 3
            if left is None or left > LAG:
                a(f's_waitcnt vmcnt({Dv-1})')
                issue((st + LAG) % RV, (st + LAG) & 3)
            elif left - 1 < Dv:
                a(f's_waitcnt vmcnt({left-1})')
            fin = left is not None and left <= 4
            if t == 0 and not fin: a(f'ds_read_b32 v39, v35 offset:{(gi+1)*64}')
            for m in range(4):
                a(f'v_and_b32_dpp v{24+m}, v{37+(gi&1)}, v{4+m} row_newbcast:{4*t} row_mask:0xf bank_mask:0xf')
            a('s_nop 1')
            if not s.exp & 4: a(f'v_mfma_f32_16x16x32_bf16 v[28:31], v[24:27], {slot(st)}, v[28:31]')
            if t == 2 and not fin: prep(gi + 1)
        def vloop(name, n, Dv):
            if n == 0: return
            a(f's_mov_b32 s45, 0\n{name}:')
            for st in range(RV): vstep(st, Dv[st % len(Dv)])
            a(f"""v_add_u32 v35, {RV*16}, v35
            s_add_u32 s45, s45, 1
            s_cmp_lt_u32 s45, {n}
            s_cbranch_scc1 {name}""")
        ne = s.NE * 16 // RV
        vloop('L_vloop', 256//RV - 1 - ne, VP)
        a(f'v_mov_b32 v33, 0\nds_write_b32 v33, v50 offset:{FLG}')
        vloop('L_vloop2', ne, [s.DE])
        if s.defer:
            a('s_lshl_b32 s7, s3, 6\nv_add_u32 v18, s7, v1')
            s.stage_setup(18)
        for st in range(RV): vstep(st, s.DE, RV - st)
        a(f"""s_mov_b32 exec_hi, 0
        s_nop 6
        ds_write_b128 v60, v[28:31] offset:{OP}
        s_mov_b64 exec, -1
        s_waitcnt lgkmcnt(0)""")
        s.stamp(3)
        if s.mst: a('s_memrealtime s[82:83]')
        a('s_barrier')
        s.mstamp(11, 80); s.mstamp(3, 82)
        if s.exp & 17: s.mstamp(7); a('s_endpgm')
        SR = 192
        if s.defer and not s.noffn:
            a('s_cmp_eq_u32 s66, 0\ns_cbranch_scc0 L_d1B')
            for k in range(s.NB1 if s.defer & 1 else 0):
                t, p = s.ldA(k, SR); a(t); a(p)
            a('s_branch L_d1D\nL_d1B:\ns_cmp_eq_u32 s66, 1\ns_cbranch_scc0 L_d1D')
            for k in range(s.NB1 if s.defer & 2 else 0):
                t, p = s.ldB(k, SR); a(t); a(p)
            a('L_d1D:')
        a(f"""s_mul_i32 s7, s12, {32*2560}
        s_lshl_b32 s8, s67, 8
        s_add_u32 s7, s7, s8
        v_lshrrev_b32 v8, 4, v1
        v_mul_u32_u24 v8, 2560, v8
        v_and_b32 v9, 15, v1
        v_lshl_add_u32 v8, v9, 4, v8
        v_add_u32 v48, s7, v8""")
        for i in range(1, 8): a(f'v_add_u32 v{48+i}, 10240, v{47+i}')
        a(f"""v_add_u32 v44, {WS_H}, v44
        s_barrier
        s_cmp_lt_u32 s66, 2
        s_cbranch_scc1 L_s_ffn
        s_cmp_eq_u32 s66, 3
        s_cbranch_scc1 L_end
        s_cmp_lg_u32 s3, 0
        s_cbranch_scc1 L_end""")
        s.stamp(8)
        s.poll([f'global_load_dwordx4 v[{160+4*i}:{163+4*i}], v{48+i}, s[38:39] sc1' for i in range(8)], list(range(160, 192)), 32)
        s.stamp(9)
        for step in (16, 8, 4):
            for r in range(step): a(f'v_add_f32 v{160+r}, v{160+r}, v{160+step+r}')
        for sw in ('v_permlane16_swap_b32', 'v_permlane32_swap_b32'):
            for r in range(4): a(f'v_mov_b32 v{164+r}, v{160+r}')
            for r in range(4): a(f'{sw} v{160+r}, v{164+r}')
            for r in range(4): a(f'v_add_f32 v{160+r}, v{160+r}, v{164+r}')
        a("""v_cvt_pk_bf16_f32 v24, v160, v161
        v_cvt_pk_bf16_f32 v26, v162, v163
        v_lshlrev_b32 v28, 16, v24
        v_and_b32 v29, 0xffff0000, v24
        v_lshlrev_b32 v30, 16, v26
        v_and_b32 v31, 0xffff0000, v26
        v_lshlrev_b32 v24, 16, v42
        v_and_b32 v25, 0xffff0000, v42
        v_lshlrev_b32 v26, 16, v43
        v_and_b32 v27, 0xffff0000, v43
        v_add_f32 v24, v24, v28
        v_add_f32 v25, v25, v29
        v_add_f32 v26, v26, v30
        v_add_f32 v27, v27, v31
        v_cvt_pk_bf16_f32 v24, v24, v25
        v_cvt_pk_bf16_f32 v25, v26, v27
        v_min_u32 v24, -2, v24
        v_min_u32 v25, -2, v25
        s_nop 0
        v_mov_b32_dpp v26, v24 quad_perm:[1,1,3,3] row_mask:0xf bank_mask:0xf
        v_mov_b32_dpp v27, v25 quad_perm:[1,1,3,3] row_mask:0xf bank_mask:0xf
        s_mov_b64 exec, 0x5555
        global_store_dwordx4 v44, v[24:27], s[38:39] sc1""")
        s.stamp(5)
        a('s_endpgm')
        a('L_s_ffn:')
        if s.defer and not s.noffn:
            a('s_cmp_eq_u32 s66, 0\ns_cbranch_scc0 L_d2B')
            if s.defer & 1:
                if s.DS: a(f's_sleep {s.DS}')
                for k in range(s.NB1, 10):
                    t, p = s.ldA(k, SR); a(t); a(p)
                for kb in range(5):
                    a(f's_waitcnt vmcnt({8-2*kb})'); s.wrA(kb, SR)
            a('s_branch L_d2D\nL_d2B:')
            if s.defer & 2:
                if s.DS: a(f's_sleep {s.DS}')
                for k in range(s.NB1, 14):
                    t, p = s.ldB(k, SR); a(t); a(p)
                for k in range(14):
                    a(f's_waitcnt vmcnt({13-k})'); s.wrB(k, SR)
            a('L_d2D:\ns_waitcnt lgkmcnt(0)')
            s.stamp(13)
        a('s_barrier')
        s.ffn_wregs(streamer=True)
        a('s_branch L_tail')

    def helper(s):
        a = s.a; W0 = 96; s.sv = 92
        wreg = lambda i: f'v[{W0+4*i}:{W0+4*i+3}]'
        a('L_helper:')
        if s.exp & 1: a('s_endpgm')
        s.stamp_reg(84)
        a(f"""s_sub_u32 s9, s3, 4
        v_lshrrev_b32 v2, 4, v1
        v_mul_u32_u24 v2, 40, v2
        s_mul_i32 s7, s9, 160
        v_add_u32 v3, s7, v2
        v_lshlrev_b32 v2, 13, v3
        v_and_b32 v8, 15, v1
        v_lshl_add_u32 v2, v8, 4, v2
        v_lshlrev_b32 v3, 3, v3
        s_mul_i32 s49, s4, 5
        s_lshr_b32 s49, s49, 2
        s_lshl_b32 s49, s49, 4
        v_add_u32 v3, s49, v3
        v_lshlrev_b32 v26, 4, v1
        v_lshlrev_b32 v27, 2, v1
        s_mul_i32 s7, s4, 1280
        s_lshl_b32 s8, s5, 8
        s_mov_b32 s47, 0x20000
        s_sub_u32 s46, 5242880, s8
        s_lshl_b32 s48, s49, 11
        s_waitcnt lgkmcnt(0)
        s_add_u32 s10, s16, s7
        s_addc_u32 s11, s17, 0
        s_add_u32 s44, s22, s8
        s_addc_u32 s45, s23, 0""")
        def clears():
            a(f"""v_mov_b32 v20, -1
            v_mov_b32 v21, -1
            v_mov_b32 v22, -1
            v_mov_b32 v23, -1
            s_mul_i32 s7, s2, 2560
            v_add_u32 v24, s7, v26
            s_lshl_b32 s8, s9, 10
            v_add_u32 v45, s8, v24
            s_mul_i32 s7, s12, 1280
            s_lshl_b32 s8, s67, 7
            s_add_u32 s7, s7, s8
            s_add_u32 s7, s7, {WS_H}
            s_lshl_b32 s8, s67, 8
            s_add_u32 s8, s8, {WS_ACT}
            s_cmp_eq_u32 s66, 0
            s_cselect_b32 s7, s8, s7
            v_add_u32 v25, s7, v27
            s_cmp_lg_u32 s9, {9 if s.exp & 8 else 3}
            s_cbranch_scc1 L_clrd
            {'s_branch L_nopc' if s.nopc else ''}
            global_store_dwordx4 v24, v[20:23], s[38:39] {s.cpol}
            global_store_dwordx4 v24, v[20:23], s[38:39] offset:1024 {s.cpol}
            global_store_dwordx4 v24, v[20:23], s[38:39] offset:1536 {s.cpol}
            L_nopc:
            s_bitcmp1_b32 s66, 0
            s_cbranch_scc1 L_clrd
            s_cmp_eq_u32 s66, 0
            s_cselect_b32 exec_hi, -1, 0
            global_store_dword v25, v20, s[38:39] sc1
            s_mov_b64 exec, -1
            L_clrd:""")
        s.roles()
        if s.early: clears()
        a("""global_load_dwordx4 v[12:15], v26, s[10:11]
        global_load_dword v16, v27, s[10:11] offset:1024""")
        def wq_issue(i):
            if s.nowq: return
            a(f'buffer_load_dwordx4 {wreg(i)}, v2, s[44:47], s48 offen {s.wpol}')
            if i < 39:
                a('s_add_u32 s48, s48, 8192')
                if (i & 3) == 3: a(f's_cmp_eq_u32 s48, {40*8192}\ns_cselect_b32 s48, 0, s48')
        N0 = s.N0
        for i in range(N0): wq_issue(i)
        s.masks()
        a(f"""v_mul_u32_u24 v8, 52429, v1
        v_lshrrev_b32 v8, 18, v8
        v_mul_u32_u24 v8, 160, v8
        v_lshl_add_u32 v8, v1, 5, v8
        v_add_u32 v9, 256, v1
        v_mul_u32_u24 v10, 52429, v9
        v_lshrrev_b32 v10, 20, v10
        v_mul_u32_u24 v10, 160, v10
        v_lshl_add_u32 v9, v9, 3, v10
        s_waitcnt vmcnt({0 if s.nowq else N0})""")
        s.stamp_reg(86)
        s.layernorm(12, 28, 40, True, 20, False)
        a(f"""ds_write_b128 v8, v[28:31] offset:{XD}
        ds_write_b128 v8, v[32:35] offset:{XD+16}
        ds_write_b64 v9, v[36:37] offset:{XD}
        ds_write_b128 v8, v[28:31] offset:{XD+160}
        ds_write_b128 v8, v[32:35] offset:{XD+176}
        ds_write_b64 v9, v[36:37] offset:{XD+160}
        s_waitcnt lgkmcnt(0)""")
        for i in range(10): a(f'ds_read_b128 v[{48+4*i}:{51+4*i}], v3 offset:{XD+16*i}')
        nis = N0
        for i in range(40):
            for _ in range(s.WB + (i == 0)):
                if nis < 40: wq_issue(nis); nis += 1
            if i == 0: a('s_waitcnt lgkmcnt(0)')
            ar = 28 + 4*(i & 1)
            for m in range(4): a(f'v_and_b32 v{ar+m}, v{48+i}, v{4+m}')
            a(f's_waitcnt vmcnt({nis-1-i})')
            if i == 20: s.stamp_reg(88)
            a('s_nop 0')
            a(f'v_mfma_f32_16x16x32_bf16 v[20:23], v[{ar}:{ar+3}], {wreg(i)}, ' + ('0' if i == 0 else 'v[20:23]'))
        a(f"""v_and_b32 v8, 15, v1
        v_lshlrev_b32 v8, 5, v8
        v_lshrrev_b32 v9, 4, v1
        v_lshl_add_u32 v17, v9, 4, v8
        s_lshl_b32 s7, s9, 9
        v_add_u32 v8, s7, v17
        s_nop 3
        s_mov_b32 exec_hi, 0
        ds_write_b128 v8, v[20:23] offset:{QP}
        s_mov_b64 exec, -1
        s_waitcnt lgkmcnt(0)""")
        s.stamp(1)
        for i, r in ((0, 84), (13, 86), (11, 88)): s.stamp(i, r)
        a('s_barrier')
        if not s.early: clears()
        def count():
            a(f"""s_cmp_lg_u32 s9, {9 if s.exp & 72 else 3}
            s_cbranch_scc1 L_cnta
            s_waitcnt vmcnt(0)""")
            if s.cstag:
                a(f"""s_lshr_b32 s7, s2, 2
                L_cst:
                s_sleep {s.cstag}
                s_sub_u32 s7, s7, 1
                s_cbranch_scc0 L_cst""")
            a("""s_mov_b64 exec, 1
            v_mov_b32 v10, 0
            v_mov_b32 v11, 1
            global_atomic_add v10, v11, s[36:37] sc1
            s_mov_b64 exec, -1
            L_cnta:""")
        if not s.latecnt: count()
        a("""s_lshl_b32 s7, s9, 6
        v_add_u32 v18, s7, v1""")
        def stagger(expr, unit):
            if not unit: return
            l = s.lab('sg'); e = s.lab('sge')
            a(expr)
            a(f'{l}:\ns_sub_u32 s7, s7, 1\ns_cbranch_scc1 {e}\ns_sleep {unit}\ns_branch {l}\n{e}:')
        def do_ffn():
            stagger('s_and_b32 s7, s67, 3', s.SG1)
            if s.defer != 3 and not s.noffn:
                def split_load(txt, lanes):
                    for q in range(64 // lanes):
                        m = ((1 << lanes) - 1) << (q * lanes)
                        if lanes < 64: a(f's_mov_b32 exec_lo, {m & 0xffffffff:#x}\ns_mov_b32 exec_hi, {m >> 32:#x}')
                        a(txt)
                        a('s_waitcnt vmcnt(0)')
                    a('s_mov_b64 exec, -1')
                a('s_cmp_ge_u32 s66, 2\ns_cbranch_scc1 L_stD')
                s.stage_setup(18)
                a('s_cmp_eq_u32 s66, 0\ns_cbranch_scc0 L_stB')
                for kb in range(0 if s.defer & 1 else 5):
                    for mt in range(2):
                        t, p = s.ldA(mt, 48); split_load(t, min(64, 2*s.FQ)); a(p)
                    s.wrA(0 if kb < 4 else 0, 48)
                    a('s_waitcnt lgkmcnt(0)')
                a('s_branch L_stD\nL_stB:')
                for k in range(0 if s.defer & 2 else 14):
                    t, p = s.ldB(0, 48); split_load(t, min(64, 2*s.FQ)); a(p)
                    a(f'ds_write_b128 v11, v[48:51] offset:{k*4096}\ns_waitcnt lgkmcnt(0)')
                a('L_stD:')
        def do_wo():
            stagger('s_mov_b32 s7, s4', s.SG2)
            a(f"""v_lshrrev_b32 v8, 4, v1
            v_lshlrev_b32 v8, 3, v8
            s_lshl_b32 s7, s9, 5
            v_add_u32 v19, s7, v8
            v_mul_u32_u24 v8, 1280, v19
            v_and_b32 v9, 15, v1
            v_lshl_add_u32 v8, v9, 4, v8
            s_mul_i32 s8, s5, {128*1280}
            s_add_u32 s44, s24, s8
            s_addc_u32 s45, s25, 0
            s_mov_b32 s46, {128*1280}
            s_mov_b32 s48, 3840
            s_mov_b32 s49, 7680""")
            for i in range(8):
                for n in range(5):
                    so = ('0', 's48', 's49')[i // 3]; off = (i % 3)*1280 + n*256
                    if s.nowo: continue
                    a(f's_waitcnt vmcnt({s.HP-1})')
                    a(f'buffer_load_dwordx4 {wreg(i*5+n)}, v8, s[44:47], {so} offen offset:{off} {s.wpol}')
        if s.wofirst: do_wo(); do_ffn()
        else: do_ffn(); do_wo()
        s.stamp(2)
        if s.latecnt: count()
        a(f"""v_lshlrev_b32 v44, 4, v18
        v_lshlrev_b32 v19, 2, v19
        s_mul_i32 s7, s9, 2560
        v_add_u32 v17, s7, v17
        v_mov_b32 v16, 0
        s_waitcnt vmcnt(0)
        s_cmp_lg_u32 s9, {9 if s.exp & 40 else 3}
        s_cbranch_scc1 L_cntd
        s_cmp_eq_u32 s66, 3
        s_cbranch_scc1 L_cntd
        s_mov_b32 s64, {s.spin}
        L_flg:
        s_sleep 32
        ds_read_b32 v8, v16 offset:{FLG}
        s_waitcnt lgkmcnt(0)
        v_readfirstlane_b32 s7, v8
        s_cmp_lg_u32 s7, 0
        s_cbranch_scc1 L_flgd
        s_sub_u32 s64, s64, 1
        s_cbranch_scc0 L_flg
        L_flgd:
        s_mov_b32 s64, {s.spin}
        L_cnt:
        global_load_dword v8, v16, s[36:37] sc1
        s_waitcnt vmcnt(0)
        v_readfirstlane_b32 s7, v8
        s_cmp_ge_u32 s7, 256
        s_cbranch_scc1 L_cntd
        s_sleep 127
        s_sub_u32 s64, s64, 1
        s_cbranch_scc0 L_cnt
        L_cntd:
        s_waitcnt lgkmcnt(0)
        s_barrier""")
        if s.exp & 16: a('s_endpgm')
        s.stamp(3)
        for half in range(2):
            for w in range(4):
                a(f'ds_read_b128 v[{48+8*w+4*half}:{51+8*w+4*half}], v19 offset:{OP+w*512+16*half}')
        for half in range(2):
            a(f's_waitcnt lgkmcnt({4-4*half})')
            for e in range(4*half, 4*half+4):
                a(f'v_add_f32 v{48+e}, v{48+e}, v{56+e}\nv_add_f32 v{64+e}, v{64+e}, v{72+e}')
            for e in range(4*half, 4*half+4): a(f'v_add_f32 v{48+e}, v{48+e}, v{64+e}')
            for e in range(4*half, 4*half+4): a(f'v_cvt_pk_bf16_f32 v{48+e}, v{48+e}, v{48+e}')
            for i in range(4*half, 4*half+4):
                ar = 28 + 4*(i & 1)
                for m in range(4): a(f'v_and_b32 v{ar+m}, v{48+i}, v{4+m}')
                a('s_nop 1')
                for n in range(5):
                    acc = (8, 12, 20, 36, 40)[n]
                    a(f'v_mfma_f32_16x16x32_bf16 v[{acc}:{acc+3}], v[{ar}:{ar+3}], {wreg(i*5+n)}, ' + ('0' if i == 0 else f'v[{acc}:{acc+3}]'))
        a('s_mov_b32 exec_hi, 0\ns_nop 3')
        for n in range(5):
            acc = (8, 12, 20, 36, 40)[n]
            a(f'ds_write_b128 v17, v[{acc}:{acc+3}] offset:{WOP+n*512}')
        a("""s_mov_b64 exec, -1
        s_waitcnt lgkmcnt(0)
        s_barrier
        s_cmp_eq_u32 s9, 3
        s_cbranch_scc1 L_pubd""")
        for w in range(4): a(f'ds_read_b128 v[{48+4*w}:{51+4*w}], v44 offset:{WOP+w*2560}')
        a('s_cmp_eq_u32 s9, 2\ns_cselect_b32 exec_hi, 0, -1')
        a('s_waitcnt lgkmcnt(0)')
        for e in range(4): a(f'v_add_f32 v{48+e}, v{48+e}, v{52+e}\nv_add_f32 v{56+e}, v{56+e}, v{60+e}')
        for e in range(4): a(f'v_add_f32 v{48+e}, v{48+e}, v{56+e}')
        for e in range(4): a(f'v_min_u32 v{48+e}, -2, v{48+e}')
        a("""global_store_dwordx4 v45, v[48:51], s[38:39] sc1
        s_mov_b64 exec, -1""")
        s.stamp(4)
        a("""L_pubd:
        s_cmp_ge_u32 s66, 2
        s_cbranch_scc1 L_end
        s_barrier""")
        s.ffn_wregs(streamer=False)

    def tail(s):
        a = s.a; s.sv = 62
        a(f"""L_tail:
        s_cmp_eq_u32 s66, 0
        s_cbranch_scc0 L_tailB
        s_mul_i32 s7, s3, 1280
        s_add_u32 s7, s7, {WS_H}
        v_lshl_add_u32 v8, v1, 4, s7
        v_lshl_add_u32 v9, v1, 2, s7
        s_mul_i32 s7, s3, {XN2S}
        v_lshl_add_u32 v48, v1, 4, s7
        v_lshl_add_u32 v49, v1, 2, s7
        v_and_b32 v10, 7, v1
        v_mul_u32_u24 v11, {XN2S}, v10
        v_lshrrev_b32 v17, 4, v1
        v_lshl_add_u32 v11, v17, 4, v11
        v_lshlrev_b32 v10, 4, v10
        v_lshl_add_u32 v10, v17, 2, v10
        s_lshl_b32 s7, s67, 1
        s_add_u32 s7, s7, s3
        s_lshl_b32 s7, s7, 7
        s_add_u32 s7, s7, {WS_ACT - 256}
        v_add_u32 v10, s7, v10
        s_mov_b32 s55, {f2u(-L2E):#x}""")
        s.poll(['global_load_dwordx4 v[12:15], v8, s[38:39] sc1', 'global_load_dword v16, v9, s[38:39] offset:1024 sc1'],
               [12, 13, 14, 15, 16], 18)
        s.stamp(6)
        s.layernorm(12, 28, 40, False, 20, True)
        s.stamp(10)
        a(f"""ds_write_b128 v48, v[20:23] offset:{XN2}
        ds_write_b32 v49, v24 offset:{XN2+1024}
        s_waitcnt lgkmcnt(0)
        s_barrier
        s_and_b32 s7, s3, 6
        s_cmp_lg_u32 s7, 2
        s_cbranch_scc1 L_end""")
        for m in range(20): a(f'ds_read_b128 v[{144+4*m}:{147+4*m}], v11 offset:{XN2+m*64}')
        for m in range(20):
            a(f's_waitcnt lgkmcnt({min(15, 19-m)})')
            a(f'v_mfma_f32_16x16x32_bf16 v[20:23], v[{64+4*m}:{67+4*m}], v[{144+4*m}:{147+4*m}], ' + ('0' if m == 0 else 'v[20:23]'))
        a("""s_nop 7
        v_cvt_pk_bf16_f32 v20, v20, v21
        v_cvt_pk_bf16_f32 v22, v22, v23
        v_lshlrev_b32 v24, 16, v20
        v_and_b32 v25, 0xffff0000, v20
        v_mul_f32 v26, s55, v24
        v_mul_f32 v27, s55, v25
        v_exp_f32 v26, v26
        v_exp_f32 v27, v27
        v_lshlrev_b32 v28, 16, v22
        v_add_f32 v26, 1.0, v26
        v_add_f32 v27, 1.0, v27
        v_rcp_f32 v26, v26
        v_rcp_f32 v27, v27
        v_and_b32 v29, 0xffff0000, v22
        v_mul_f32 v24, v24, v26
        v_mul_f32 v25, v25, v27
        v_cvt_pk_bf16_f32 v24, v24, v25
        v_lshlrev_b32 v26, 16, v24
        v_and_b32 v27, 0xffff0000, v24
        v_mul_f32 v26, v26, v28
        v_mul_f32 v27, v27, v29
        v_cvt_pk_bf16_f32 v26, v26, v27
        v_min_u32 v24, -2, v26
        v_min_u32 v25, -2, v26
        s_nop 1
        v_permlane16_swap_b32 v24, v25
        v_mov_b32 v26, v24
        v_mov_b32 v27, v25
        s_nop 0
        v_permlane32_swap_b32 v24, v26
        v_permlane32_swap_b32 v25, v27
        s_mov_b64 exec, 0xff
        global_store_dwordx4 v10, v[24:27], s[38:39] sc1""")
        s.stamp(7)
        a('s_endpgm')
        a(f"""L_tailB:
        v_and_b32 v10, 7, v1
        v_lshrrev_b32 v17, 4, v1
        v_lshlrev_b32 v8, 4, v10
        v_lshl_add_u32 v8, v17, 7, v8
        s_lshl_b32 s7, s3, 9
        s_add_u32 s7, s7, {WS_ACT}
        v_add_u32 v8, s7, v8
        v_add_u32 v9, 0x2000, v8
        v_add_u32 v11, 0x4000, v8
        s_movk_i32 s8, 0x5000
        s_cmp_lt_u32 s3, 6
        s_cselect_b32 s8, 0x6000, s8
        v_add_u32 v12, s8, v8
        v_mul_u32_u24 v13, 1280, v10
        v_lshl_add_u32 v13, v17, 3, v13
        s_lshl_b32 s7, s67, 5
        v_add_u32 v13, s7, v13
        v_add_u32 v14, {WS_H}, v13
        v_lshlrev_b32 v60, 6, v10
        v_lshl_add_u32 v60, v17, 4, v60
        s_lshl_b32 s7, s3, 9
        v_add_u32 v61, s7, v60
        s_add_u32 s68, s38, 4096
        s_addc_u32 s69, s39, 0
        s_cmp_lg_u32 s3, 3
        s_cbranch_scc1 L_noh""")
        s.poll(['global_load_dwordx2 v[18:19], v14, s[38:39] sc1'], [18, 19], 15)
        a('L_noh:')
        if s.gate: a(f's_barrier\ns_sleep {s.gate}')
        loads = []
        for i in range(7):
            base = (8, 8, 9, 9, 11, 11, 12)[i]
            sb = 's[68:69]' if (i < 6 and (i & 1)) else 's[38:39]'
            loads.append(f'global_load_dwordx4 v[{96+4*i}:{99+4*i}], v{base}, {sb} sc1')
        s.poll(loads, list(range(96, 124)), 15)
        s.stamp(6)
        a('s_waitcnt lgkmcnt(0)')
        for i in range(7):
            a(f'v_mfma_f32_16x16x32_bf16 v[20:23], v[{64+4*i}:{67+4*i}], v[{96+4*i}:{99+4*i}], ' + ('0' if i == 0 else 'v[20:23]'))
        a(f"""s_mov_b32 exec_lo, 0x00ff00ff
        s_mov_b32 exec_hi, 0x00ff00ff
        v_lshlrev_b32 v56, 16, v18
        v_and_b32 v57, 0xffff0000, v18
        v_lshlrev_b32 v58, 16, v19
        v_and_b32 v59, 0xffff0000, v19
        s_nop 1
        ds_write_b128 v61, v[20:23] offset:{BP}
        s_waitcnt lgkmcnt(0)
        s_barrier
        s_cmp_lg_u32 s3, 3
        s_cbranch_scc1 L_end""")
        for w in range(8): a(f'ds_read_b128 v[{24+4*w}:{27+4*w}], v60 offset:{BP+w*512}')
        a('s_waitcnt lgkmcnt(0)')
        for step in (16, 8, 4):
            for r in range(step): a(f'v_add_f32 v{24+r}, v{24+r}, v{24+step+r}')
        a("""v_cvt_pk_bf16_f32 v24, v24, v25
        v_cvt_pk_bf16_f32 v26, v26, v27
        v_lshlrev_b32 v28, 16, v24
        v_and_b32 v29, 0xffff0000, v24
        v_lshlrev_b32 v30, 16, v26
        v_and_b32 v31, 0xffff0000, v26
        v_add_f32 v24, v56, v28
        v_add_f32 v25, v57, v29
        v_add_f32 v26, v58, v30
        v_add_f32 v27, v59, v31
        v_cvt_pk_bf16_f32 v24, v24, v25
        v_cvt_pk_bf16_f32 v25, v26, v27
        global_store_dwordx2 v13, v[24:25], s[34:35] """ + s.opol)
        s.stamp(7)
        s.mstamp(7)

    def text(s):
        s.gen()
        body = '\n'.join(s.L)
        k = NAME + '_kernel'
        return f"""{HEADER}; @launch grid=(256,1,1) block=(512,1,1) lds={LDS_BYTES}
.amdgcn_target "amdgcn-amd-amdhsa--gfx950"
.text
.globl {k}
.p2align 8
.type {k},@function
{k}:
{body}
.section .rodata,"a"
.p2align 6
.amdhsa_kernel {k}
  .amdhsa_next_free_vgpr 256
  .amdhsa_next_free_sgpr 102
  .amdhsa_accum_offset 256
  .amdhsa_group_segment_fixed_size 0
  .amdhsa_kernarg_size 96
  .amdhsa_user_sgpr_count 2
  .amdhsa_user_sgpr_kernarg_segment_ptr 1
  .amdhsa_system_sgpr_workgroup_id_x 1
  .amdhsa_float_denorm_mode_32 3
.end_amdhsa_kernel
"""

def parse_kw(args):
    kw = {}
    for x in args:
        k, v = x.split('=')
        try: v = int(v)
        except ValueError: v = v.replace('+', ' ').replace('-', '')
        kw[k] = v
    return kw

if __name__ == '__main__':
    open(sys.argv[1], 'w').write(G(**parse_kw(sys.argv[2:])).text())
```

```python
import sys, struct

NAME = 'sequential_preLN__mha_block_cached__swiglu_ffn__decode'
def f2u(x): return struct.unpack('<I', struct.pack('<f', x))[0]

HEADER = """; Kernarg layout for this problem (96 bytes, ptrs only, base s[0:1]):
;
"""

WS_P   = 0
WS_H   = 256*2560
WS_ACT = WS_H + 10240
WS_STAMP = 1 << 20

XD  = 0
QP  = 5120
OP  = 7168
ST  = 9216
FLG = ST + 64
SC0 = 9344
SCW = 64*64
WOP = SC0 + 4*SCW
XN2 = WOP + 10240
XN2S = 1296
BP  = XN2
IMG = XN2 + 8*XN2S
LDS_BYTES = IMG + 57344
L2E = 1.4426950408889634

DEF = dict(D=5, D0=6, DP=6, DE=8, NE=6, NP=48, N0=8, WB=40, HP=4, FQ=16, kvpol='nt', wpol='', fpol='', opol='',
           stamps=0, spin=1 << 19, psleep=0, defer=3, gate=0, NB1=2, DS=0, flat=1, XE=0, mst=0, exp=0, early=1, tlb=0, RD=0, KP='', VP='', SG1=0, SG2=0, wofirst=0, latecnt=1, cstag=0, cpol='sc1', nopc=0, nowo=0, nowq=0, noffn=0)

class G:
    def __init__(s, **kw):
        for k, v in DEF.items(): setattr(s, k, v)
        for k, v in kw.items():
            assert k in DEF, k
            setattr(s, k, v)
        s.L = []; s.nl = 0; s.sv = 62
    def a(s, t):
        for line in t.strip('\n').split('\n'):
            line = line.strip()
            if line: s.L.append(line if line.endswith(':') else '    ' + line)
    def lab(s, p):
        s.nl += 1; return f'L_{p}_{s.nl}'
    def stamp_reg(s, r):
        if s.stamps: s.a(f's_memrealtime s[{r}:{r+1}]')
    def stamp(s, idx, r=None):
        if not s.stamps: return
        s.a('s_memrealtime s[92:93]' if r is None else 's_nop 0')
        s.a('s_waitcnt lgkmcnt(0)')
        if r is not None: s.a(f's_mov_b32 s92, s{r}')
        s.a(f"""s_mov_b64 s[94:95], exec
        s_mov_b64 exec, 1
        s_lshl_b32 s93, s2, 3
        s_add_u32 s93, s93, s3
        s_lshl_b32 s93, s93, 6
        s_add_u32 s93, s93, {WS_STAMP + idx*4}
        v_mov_b32 v{s.sv}, s93
        v_mov_b32 v{s.sv+1}, s92
        global_store_dword v{s.sv}, v{s.sv+1}, s[38:39]
        s_mov_b64 exec, s[94:95]""")

    def mstamp(s, idx, r=None):
        if not s.mst: return
        keep = s.stamps; s.stamps = 1
        n0 = len(s.L)
        s.stamp(idx, r)
        s.L[n0:] = [l + ' sc1' if 'global_store' in l else l for l in s.L[n0:]]
        s.stamps = keep
    def wave_sum(s, v, sd):
        for c in ('row_ror:8', 'row_ror:4', 'row_ror:2', 'row_ror:1'):
            s.a(f's_nop 1\nv_add_f32_dpp v{v}, v{v}, v{v} {c} row_mask:0xf bank_mask:0xf')
        s.a(f's_nop 1\nv_add_f32_dpp v{v}, v{v}, v{v} row_bcast:15 row_mask:0xa bank_mask:0xf')
        s.a(f's_nop 1\nv_add_f32_dpp v{v}, v{v}, v{v} row_bcast:31 row_mask:0xc bank_mask:0xf')
        s.a(f's_nop 1\nv_readlane_b32 s{sd}, v{v}, 63')

    def layernorm(s, src, f, t, dup, o, fast):
        a = s.a
        for i in range(5):
            a(f'v_lshlrev_b32 v{f+2*i}, 16, v{src+i}\nv_and_b32 v{f+2*i+1}, 0xffff0000, v{src+i}')
        a(f's_mov_b32 s61, {f2u(1.0/640):#x}')
        if fast:
            a(f'v_readfirstlane_b32 s59, v{f}\ns_nop 1')
            a(f'v_subrev_f32 v{t}, s59, v{f+1}\nv_mul_f32 v{t+2}, v{t}, v{t}')
            for i in [0] + list(range(2, 10)):
                a(f'v_subrev_f32 v{t+1}, s59, v{f+i}\nv_add_f32 v{t}, v{t}, v{t+1}\nv_fmac_f32 v{t+2}, v{t+1}, v{t+1}')
            for c in ('row_ror:8 row_mask:0xf', 'row_ror:4 row_mask:0xf', 'row_ror:2 row_mask:0xf', 'row_ror:1 row_mask:0xf',
                      'row_bcast:15 row_mask:0xa', 'row_bcast:31 row_mask:0xc'):
                a(f's_nop 0\nv_add_f32_dpp v{t}, v{t}, v{t} {c} bank_mask:0xf\nv_add_f32_dpp v{t+2}, v{t+2}, v{t+2} {c} bank_mask:0xf')
            a(f'v_readlane_b32 s60, v{t}, 63\nv_readlane_b32 s58, v{t+2}, 63\ns_nop 0')
            a(f'v_mov_b32 v{t}, s60\nv_mov_b32 v{t+2}, s58\nv_mul_f32 v{t}, s61, v{t}\nv_mul_f32 v{t+2}, s61, v{t+2}')
            a(f'v_fma_f32 v{t+2}, -v{t}, v{t}, v{t+2}\nv_add_f32 v{t}, s59, v{t}\nv_max_f32 v{t+2}, 0, v{t+2}')
            a(f'v_cvt_pk_bf16_f32 v{t}, v{t}, v{t+2}\nv_and_b32 v{t+2}, 0xffff0000, v{t}\nv_lshlrev_b32 v{t}, 16, v{t}')
        else:
            a(f'v_add_f32 v{t}, v{f}, v{f+1}')
            for i in range(2, 10): a(f'v_add_f32 v{t}, v{t}, v{f+i}')
            s.wave_sum(t, 60)
            a(f's_nop 1\nv_mov_b32 v{t}, s60\nv_mul_f32 v{t}, s61, v{t}')
            a(f'v_sub_f32 v{t+1}, v{f}, v{t}\nv_mul_f32 v{t+2}, v{t+1}, v{t+1}')
            for i in range(1, 10):
                a(f'v_sub_f32 v{t+1}, v{f+i}, v{t}\nv_fmac_f32 v{t+2}, v{t+1}, v{t+1}')
            s.wave_sum(t+2, 60)
            a(f'v_cvt_pk_bf16_f32 v{t}, v{t}, v{t}\nv_lshlrev_b32 v{t}, 16, v{t}')
            a(f'v_mov_b32 v{t+2}, s60\nv_mul_f32 v{t+2}, s61, v{t+2}')
            a(f'v_cvt_pk_bf16_f32 v{t+2}, v{t+2}, v{t+2}\nv_lshlrev_b32 v{t+2}, 16, v{t+2}')
        a(f'v_add_f32 v{t+2}, {f2u(1e-5):#x}, v{t+2}')
        a(f'v_cvt_pk_bf16_f32 v{t+2}, v{t+2}, v{t+2}\nv_lshlrev_b32 v{t+2}, 16, v{t+2}')
        a(f'v_sqrt_f32 v{t+2}, v{t+2}')
        for i in range(10): a(f'v_sub_f32 v{f+i}, v{f+i}, v{t}')
        a(f'v_cvt_pk_bf16_f32 v{t+2}, v{t+2}, v{t+2}\nv_lshlrev_b32 v{t+2}, 16, v{t+2}')
        a(f'v_rcp_f32 v{t+3}, v{t+2}')
        for i in range(5): a(f'v_cvt_pk_bf16_f32 v{o+i}, v{f+2*i}, v{f+2*i+1}')
        for i in range(5):
            a(f'v_lshlrev_b32 v{f+2*i}, 16, v{o+i}\nv_and_b32 v{f+2*i+1}, 0xffff0000, v{o+i}')
        for i in range(10):
            if fast: a(f'v_mul_f32 v{f+i}, v{f+i}, v{t+3}')
            else: a(f'v_mul_f32 v{t}, v{f+i}, v{t+3}\nv_fma_f32 v{t+1}, -v{t}, v{t+2}, v{f+i}\nv_fma_f32 v{f+i}, v{t+1}, v{t+3}, v{t}')
        if dup:
            for i in range(10): a(f'v_cvt_pk_bf16_f32 v{f+i}, v{f+i}, v{f+i}')
        else:
            for i in range(5): a(f'v_cvt_pk_bf16_f32 v{o+i}, v{f+2*i}, v{f+2*i+1}')

    def poll(s, loads, regs, t):
        a = s.a
        lp = s.lab('poll'); ld = s.lab('polld')
        a(f's_mov_b64 s[62:63], exec\ns_mov_b32 s64, {s.spin}')
        a(f'{lp}:')
        for l in loads: a(l)
        a('s_waitcnt vmcnt(0)')
        r = list(regs)
        if len(r) == 2: a(f'v_max_u32 v{t}, v{r[0]}, v{r[1]}'); r = []
        else:
            a(f'v_max3_u32 v{t}, v{r[0]}, v{r[1]}, v{r[2]}'); r = r[3:]
        while len(r) >= 2:
            a(f'v_max3_u32 v{t}, v{t}, v{r[0]}, v{r[1]}'); r = r[2:]
        if r: a(f'v_max_u32 v{t}, v{t}, v{r[0]}')
        a(f'v_cmpx_eq_u32 vcc, -1, v{t}')
        a(f's_cbranch_execz {ld}')
        if s.psleep: a(f's_sleep {s.psleep}')
        a(f's_sub_u32 s64, s64, 1\ns_cbranch_scc0 {lp}')
        a(f'{ld}:')
        a('s_mov_b64 exec, s[62:63]\ns_nop 2')

    def roles(s):
        s.a("""s_and_b32 s12, s2, 7
        s_lshr_b32 s13, s2, 3
        s_min_u32 s14, s12, 3
        s_lshl_b32 s14, s14, 2
        s_mul_i32 s67, s12, 12
        s_add_u32 s67, s67, s14
        s_add_u32 s67, s67, s13
        s_cmp_lt_u32 s12, 3
        s_cselect_b32 s14, 16, 12
        s_mov_b32 s66, 0
        s_sub_u32 s13, s13, s14
        s_cbranch_scc1 L_role%d
        s_sub_u32 s14, s12, 3
        s_max_i32 s14, s14, 0
        s_min_i32 s14, s14, 2
        s_add_u32 s14, s14, s12
        s_lshl_b32 s14, s14, 2
        s_add_u32 s67, s14, s13
        s_sub_u32 s14, s12, 3
        s_cmp_lt_u32 s14, 2
        s_cselect_b32 s14, 8, 4
        s_mov_b32 s66, 1
        s_sub_u32 s13, s13, s14
        s_cbranch_scc1 L_role%d
        s_mov_b32 s67, s13
        s_mov_b32 s66, 2
        s_cmp_lt_u32 s13, 10
        s_cbranch_scc1 L_role%d
        s_mov_b32 s66, 3
        s_mov_b32 s67, 0
        L_role%d:""" % ((s.nl,)*4))
        s.nl += 1

    def masks(s):
        s.a("""v_and_b32 v8, 15, v1
        v_and_b32 v9, 1, v1
        v_lshlrev_b32 v9, 4, v9
        v_mov_b32 v10, 0xffff
        v_lshlrev_b32 v10, v9, v10
        v_lshrrev_b32 v11, 1, v8""")
        for m in range(4):
            s.a(f'v_cmp_eq_u32 vcc, {m}, v11\ns_nop 1\nv_cndmask_b32 v{4+m}, 0, v10, vcc')

    def gen(s):
        a = s.a
        s.stamp_reg(80)
        if s.mst: a('s_memrealtime s[80:81]')
        a("""s_cmp_ge_u32 s2, 256
        s_cbranch_scc1 L_end
        s_load_dwordx16 s[16:31], s[0:1], 0
        s_load_dwordx8 s[32:39], s[0:1], 64
        v_lshrrev_b32 v2, 6, v0
        v_and_b32 v1, 63, v0
        v_readfirstlane_b32 s3, v2
        s_lshr_b32 s4, s2, 5
        s_and_b32 s5, s2, 31
        s_cmp_ge_u32 s3, 4
        s_cbranch_scc1 L_helper""")
        s.streamer()
        s.helper()
        s.tail()
        a('L_end:\ns_endpgm')

    def stage_setup(s, T):
        a = s.a
        lb = s.lab('sgB'); ld = s.lab('sgD')
        a(f"""v_lshrrev_b32 v8, 1, v{T}
        v_and_b32 v9, 1, v{T}
        s_lshl_b32 s8, s67, 5
        s_mov_b32 s71, 0x20000
        s_mov_b32 s75, 0x20000
        s_sub_u32 s70, 2211840, s8
        s_mov_b32 s74, s70
        s_mov_b32 s76, 0
        s_cmp_eq_u32 s66, 0
        s_cbranch_scc0 {lb}
        s_add_u32 s68, s28, s8
        s_addc_u32 s69, s29, 0
        s_add_u32 s72, s30, s8
        s_addc_u32 s73, s31, 0
        s_mov_b32 s7, 3456
        v_mul_lo_u32 v10, v8, s7
        v_lshl_add_u32 v10, v9, 4, v10
        v_lshlrev_b32 v11, 5, v{T}
        s_branch {ld}
        {lb}:
        s_add_u32 s68, s32, s8
        s_addc_u32 s69, s33, 0
        s_mov_b32 s72, s68
        s_mov_b32 s73, s69
        v_mul_u32_u24 v10, 1280, v8
        v_lshl_add_u32 v10, v9, 4, v10
        v_lshlrev_b32 v11, 4, v{T}
        {ld}:
        v_add_u32 v11, {IMG}, v11""")
    def ldA(s, k, R):
        srd = 's[68:71]' if (k & 1) == 0 else 's[72:75]'
        t = f'buffer_load_dwordx4 v[{R+4*k}:{R+4*k+3}], v10, {srd}, s76 offen {s.fpol}'
        post = f's_add_u32 s76, s76, {128*3456}' if k & 1 else ''
        return t, post
    def ldB(s, k, R):
        return f'buffer_load_dwordx4 v[{R+4*k}:{R+4*k+3}], v10, s[68:71], s76 offen {s.fpol}', f's_add_u32 s76, s76, {128*1280}'
    def wrA(s, kb, R):
        for q in range(4):
            s.a(f'ds_write2_b32 v11, v{R+8*kb+q}, v{R+8*kb+4+q} offset0:{2*q} offset1:{2*q+1}')
        if kb < 4: s.a('v_add_u32 v11, 8192, v11')
    def wrB(s, k, R):
        s.a(f'ds_write_b128 v11, v[{R+4*k}:{R+4*k+3}] offset:{k*4096}')

    def ffn_wregs(s, streamer):
        a = s.a
        la = s.lab('wa'); ld = s.lab('wd')
        a(f"""v_lshrrev_b32 v46, 4, v1
        v_lshlrev_b32 v46, 3, v46
        v_bfe_u32 v47, v1, 2, 2
        v_add_u32 v46, v46, v47
        v_and_b32 v47, 3, v1
        v_lshlrev_b32 v47, 3, v47
        v_add_u32 v47, {IMG}, v47
        s_cmp_eq_u32 s66, 0
        s_cbranch_scc1 {la}
        v_lshl_add_u32 v46, v46, 5, v47
        s_lshl_b32 s7, s3, 10
        v_add_u32 v46, s7, v46""")
        for i in range(7):
            a(f'ds_read_b64_tr_b16 v[{64+4*i}:{65+4*i}], v46 offset:{i*8192}')
            a(f'ds_read_b64_tr_b16 v[{66+4*i}:{67+4*i}], v46 offset:{i*8192+128}')
        a(f's_branch {ld}\n{la}:')
        if streamer:
            a(f"""s_cmp_lt_u32 s3, 2
            s_cbranch_scc1 {ld}
            v_lshl_add_u32 v46, v46, 6, v47
            s_sub_u32 s7, s3, 2
            s_lshl_b32 s7, s7, 5
            v_add_u32 v46, s7, v46""")
            for m in range(20):
                a(f'ds_read_b64_tr_b16 v[{64+4*m}:{65+4*m}], v46 offset:{m*2048}')
                a(f'ds_read_b64_tr_b16 v[{66+4*m}:{67+4*m}], v46 offset:{m*2048+256}')
        a(f'{ld}:')

    def streamer(s):
        a = s.a; D = s.D; R0 = 64; NP = s.NP; R = 16; s.sv = 62
        assert NP % 16 == 0
        slot = lambda p: f'v[{R0+4*p}:{R0+4*p+3}]'
        def issue(p, t):
            a(f'buffer_load_dwordx4 {slot(p)}, v2, s[40:43], s44 offen offset:{t*1024} {s.kvpol}')
            if t == 3: a('s_add_u32 s44, s44, 16384')
        a("""v_bfe_u32 v2, v1, 2, 2
        v_lshlrev_b32 v2, 8, v2
        v_lshrrev_b32 v3, 4, v1
        v_lshl_add_u32 v2, v3, 6, v2
        v_and_b32 v3, 3, v1
        v_lshl_add_u32 v2, v3, 4, v2
        s_lshl_b32 s6, s2, 20
        s_lshl_b32 s44, s3, 12
        s_mov_b32 s42, 0x100000
        s_mov_b32 s43, 0x20000
        s_waitcnt lgkmcnt(0)
        s_add_u32 s40, s18, s6
        s_addc_u32 s41, s19, 0""")
        s.stamp_reg(82)
        for i in range(s.D0): issue(i, i & 3)
        s.stamp(0); s.stamp(11, 80); s.stamp(12, 82)
        a("""s_add_u32 s48, s20, s6
        s_addc_u32 s49, s21, 0
        v_lshlrev_b32 v3, 4, v1""")
        s.roles()
        a("""v_and_b32 v8, 15, v1
        v_lshlrev_b32 v8, 3, v8
        s_min_u32 s8, s67, 9
        s_lshl_b32 s8, s8, 7
        s_mul_i32 s7, s12, 1280
        s_add_u32 s7, s7, s8
        v_add_u32 v44, s7, v8
        global_load_dwordx2 v[42:43], v44, s[16:17]""")
        s.masks()
        a(f"""s_mov_b32 s50, 0xaaaaaaaa
        s_mov_b32 s51, 0xaaaaaaaa
        s_mov_b32 s52, 0xcccccccc
        s_mov_b32 s53, 0xcccccccc
        s_mov_b32 s54, {f2u(128**-0.5):#x}
        s_mov_b32 s55, {f2u(L2E):#x}
        v_mov_b32 v34, 0xff7fffff
        v_mov_b32 v36, 0
        s_mul_i32 s7, s3, {SCW}
        s_add_u32 s7, s7, {SC0}
        v_and_b32 v35, 60, v1
        v_add_u32 v35, s7, v35
        v_lshrrev_b32 v8, 4, v1
        v_lshlrev_b32 v8, 2, v8
        v_and_b32 v9, 3, v1
        v_add_u32 v8, v8, v9
        v_lshlrev_b32 v45, 5, v8
        s_lshl_b32 s7, s3, 4
        v_mov_b32 v61, s7
        ds_write_b32 v61, v36 offset:{ST+8}
        ds_write_b32 v36, v36 offset:{FLG}
        v_and_b32 v8, 15, v1
        v_lshlrev_b32 v8, 5, v8
        v_lshrrev_b32 v9, 4, v1
        v_lshl_add_u32 v8, v9, 4, v8
        s_lshl_b32 s7, s3, 9
        v_add_u32 v60, s7, v8
        s_waitcnt lgkmcnt(0)""")
        for i in range(s.D0, NP):
            a(f's_waitcnt vmcnt({s.DP-1})')
            issue(i, i & 3)
        s.stamp(4)
        a('s_barrier')
        s.stamp(1)
        a(f"""ds_read_b128 v[46:49], v45 offset:{QP}
        ds_read_b128 v[50:53], v45 offset:{QP+16}
        ds_read_b128 v[54:57], v45 offset:{QP+512}
        ds_read_b128 v[16:19], v45 offset:{QP+512+16}
        ds_read_b128 v[24:27], v45 offset:{QP+1024}
        ds_read_b128 v[28:31], v45 offset:{QP+1024+16}
        ds_read_b128 v[8:11], v45 offset:{QP+1536}
        ds_read_b128 v[12:15], v45 offset:{QP+1536+16}
        s_waitcnt lgkmcnt(0)""")
        for e in range(8):
            b1 = 54+e if e < 4 else 12+e
            a(f'v_add_f32 v{46+e}, v{46+e}, v{b1}\nv_add_f32 v{24+e}, v{24+e}, v{8+e}')
        for e in range(8): a(f'v_add_f32 v{46+e}, v{46+e}, v{24+e}')
        for m in range(4): a(f'v_cvt_pk_bf16_f32 v{54+m}, v{46+2*m}, v{47+2*m}')
        for t in range(4):
            mk = 0x000f000f << (4*t)
            a(f's_mov_b32 s56, {mk:#x}\ns_mov_b32 s57, {mk:#x}')
            for m in range(4): a(f'v_cndmask_b32 v{8+4*t+m}, 0, v{54+m}, s[56:57]')
        a('s_nop 1')
        Dreg = lambda g: 24 + 4*(g & 1)
        def post1(g):
            if s.exp & 2: return
            d = Dreg(g)
            a(f"""s_nop 1
            v_cndmask_b32 v32, v{d}, v{d+1}, s[50:51]
            v_cndmask_b32 v33, v{d+2}, v{d+3}, s[50:51]
            v_cndmask_b32 v32, v32, v33, s[52:53]
            s_nop 1
            v_add_f32_dpp v32, v32, v32 quad_perm:[1,0,3,2] row_mask:0xf bank_mask:0xf
            s_nop 1
            v_add_f32_dpp v32, v32, v32 quad_perm:[2,3,0,1] row_mask:0xf bank_mask:0xf""")
        def post2a(off):
            if s.exp & 2: return
            a(f"""v_cvt_pk_bf16_f32 v32, v32, v32
            v_lshlrev_b32 v32, 16, v32
            v_mul_f32 v32, s54, v32
            v_cvt_pk_bf16_f32 v32, v32, v32
            v_lshlrev_b32 v32, 16, v32
            v_max_f32 v33, v34, v32
            ds_write_b32 v35, v32 offset:{off}""")
        def post2b():
            if s.exp & 2: return
            a("""v_sub_f32 v40, v34, v33
            v_sub_f32 v46, v32, v33
            v_mul_f32 v40, s55, v40
            v_mul_f32 v46, s55, v46
            v_exp_f32 v40, v40
            v_exp_f32 v46, v46
            v_mov_b32 v34, v33
            v_fma_f32 v36, v36, v40, v46""")
        def post2(off):
            post2a(off); post2b()
        def kcons(p, gi, t):
            d = Dreg(gi)
            c = '0' if t == 0 else f'v[{d}:{d+3}]'
            if not s.exp & 4: a(f'v_mfma_f32_16x16x32_bf16 v[{d}:{d+3}], {slot(p)}, v[{8+4*t}:{11+4*t}], {c}')
        nis = 0
        per = max(1, (NP - 1) // 15)
        for i in range(NP):
            gi, t = i >> 2, i & 3
            need = (NP + nis - 1) - i
            if i >= NP - s.DP: a(f's_waitcnt vmcnt({min(need, 63)})')
            kcons(i, gi, t)
            if gi > 0 and t == 2: a('s_nop 3'); post1(gi - 1)
            if gi > 0 and t == 3: post2((gi - 1) * 64)
            if nis < 15 and i >= nis and (i + 1) % per == 0:
                a(f's_waitcnt vmcnt({D-1})')
                issue(nis, nis & 3); nis += 1
        assert nis == 15, nis
        a(f'v_add_u32 v35, {(NP//4-1)*64}, v35')
        nk = (256 - NP) // R
        a('s_mov_b32 s45, 0')
        if s.RD: a('s_cmp_lt_u32 s66, 2\ns_cselect_b64 vcc, -1, 0')
        a('L_kloop:')
        KP = [int(c) for c in str(s.KP)] or [D]
        VP = [int(c) for c in str(s.VP)] or [D]
        for st in range(R):
            gi, t = st >> 2, st & 3
            if s.RD and st % s.RD == 0:
                l = s.lab('rd'); a(f's_cbranch_vccnz {l}\ns_waitcnt vmcnt({D-1})\n{l}:\ns_waitcnt vmcnt({D})')
            else: a(f's_waitcnt vmcnt({KP[st % len(KP)]-1})')
            issue((st - 1) % R, (st - 1) & 3)
            if st == 0:
                a(f"""s_cmp_lg_u32 s45, {nk-1}
                s_cbranch_scc1 L_nosw
                s_mov_b32 s40, s48
                s_mov_b32 s41, s49
                s_lshl_b32 s44, s3, 12
                v_mov_b32 v2, v3
                L_nosw:""")
            kcons(st, gi, t)
            if s.flat:
                if t == 1: post1(gi - 1)
                if t == 2: post2a(gi * 64)
                if t == 3: post2b()
            else:
                if t == 2: post1(gi - 1)
                if t == 3: post2(gi * 64)
        a(f"""v_add_u32 v35, {R*16}, v35
        s_add_u32 s45, s45, 1
        s_cmp_lt_u32 s45, {nk}
        s_cbranch_scc1 L_kloop""")
        XE = s.XE; RV = 32 if XE else 16; LAG = 15 + XE
        xi = [0]
        def xissue():
            if xi[0] < XE:
                j = 15 + xi[0]; xi[0] += 1
                a(f's_waitcnt vmcnt({D-1})'); issue(j, j & 3)
        xissue()
        post1(1); post2(0)
        xissue()
        a(f"""s_nop 0
        v_max_f32_dpp v33, v34, v34 row_ror:4 row_mask:0xf bank_mask:0xf
        v_subrev_u32 v35, {63*64}, v35
        v_mov_b32 v28, 0
        v_max_f32_dpp v33, v33, v33 row_ror:8 row_mask:0xf bank_mask:0xf
        v_mov_b32 v29, 0
        v_readlane_b32 s56, v33, 0
        v_readlane_b32 s57, v33, 16
        v_readlane_b32 s58, v33, 32
        v_readlane_b32 s59, v33, 48
        v_mov_b32 v30, 0
        v_mov_b32 v48, s56
        v_max_f32 v48, s57, v48
        v_max_f32 v48, s58, v48
        v_max_f32 v48, s59, v48
        v_sub_f32 v40, v34, v48
        v_mul_f32 v40, s55, v40
        v_exp_f32 v40, v40
        v_mov_b32 v31, 0
        v_mul_f32 v36, v36, v40
        v_mov_b32 v50, 1
        v_mov_b32 v51, 1
        v_add_f32_dpp v36, v36, v36 row_ror:4 row_mask:0xf bank_mask:0xf
        s_nop 1
        v_add_f32_dpp v36, v36, v36 row_ror:8 row_mask:0xf bank_mask:0xf
        s_nop 0
        v_readlane_b32 s56, v36, 0
        v_readlane_b32 s57, v36, 16
        v_readlane_b32 s58, v36, 32
        v_readlane_b32 s59, v36, 48
        v_mov_b32 v33, 0
        v_mov_b32 v49, s56
        v_add_f32 v49, s57, v49
        v_add_f32 v49, s58, v49
        v_add_f32 v49, s59, v49
        ds_write_b128 v61, v[48:51] offset:{ST}""")
        xissue()
        a(f"""s_mov_b32 s64, {s.spin}
        L_stw:
        ds_read_b128 v[8:11], v33 offset:{ST}
        ds_read_b128 v[12:15], v33 offset:{ST+16}
        ds_read_b128 v[16:19], v33 offset:{ST+32}
        ds_read_b128 v[20:23], v33 offset:{ST+48}
        ds_read_b32 v39, v35
        s_waitcnt lgkmcnt(0)
        v_and_b32 v40, v10, v14
        v_and_b32 v46, v18, v22
        v_and_b32 v40, v40, v46
        s_nop 0
        v_readfirstlane_b32 s7, v40
        s_cmp_lg_u32 s7, 0
        s_cbranch_scc1 L_stwd
        s_sub_u32 s64, s64, 1
        s_cbranch_scc0 L_stw
        L_stwd:""")
        while xi[0] < XE: xissue()
        a(f"""v_max_f32 v41, v8, v12
        v_max3_f32 v41, v41, v16, v20
        v_sub_f32 v8, v8, v41
        v_sub_f32 v12, v12, v41
        v_sub_f32 v16, v16, v41
        v_sub_f32 v20, v20, v41
        v_mul_f32 v8, s55, v8
        v_mul_f32 v12, s55, v12
        v_mul_f32 v16, s55, v16
        v_mul_f32 v20, s55, v20
        v_exp_f32 v8, v8
        v_exp_f32 v12, v12
        v_exp_f32 v16, v16
        v_exp_f32 v20, v20
        v_mul_f32 v40, v8, v9
        v_fmac_f32 v40, v12, v13
        v_fmac_f32 v40, v16, v17
        v_fmac_f32 v40, v20, v21
        v_rcp_f32 v47, v40
        s_nop 0
        v_fma_f32 v46, -v40, v47, 1.0
        v_fmac_f32 v47, v46, v47""")
        s.stamp(2)
        def prep(g):
            if s.exp & 2: return
            a(f"""s_waitcnt lgkmcnt(0)
            v_sub_f32 v39, v39, v41
            v_mul_f32 v39, s55, v39
            v_exp_f32 v39, v39
            s_nop 0
            v_mul_f32 v39, v39, v47
            v_cvt_pk_bf16_f32 v{37+(g&1)}, v39, v39""")
        prep(0)
        a('s_nop 0')
        def vstep(st, Dv, left=None):
            gi, t = st >> 2, st & 3
            if left is None or left > LAG:
                a(f's_waitcnt vmcnt({Dv-1})')
                issue((st + LAG) % RV, (st + LAG) & 3)
            elif left - 1 < Dv:
                a(f's_waitcnt vmcnt({left-1})')
            fin = left is not None and left <= 4
            if t == 0 and not fin: a(f'ds_read_b32 v39, v35 offset:{(gi+1)*64}')
            for m in range(4):
                a(f'v_and_b32_dpp v{24+m}, v{37+(gi&1)}, v{4+m} row_newbcast:{4*t} row_mask:0xf bank_mask:0xf')
            a('s_nop 1')
            if not s.exp & 4: a(f'v_mfma_f32_16x16x32_bf16 v[28:31], v[24:27], {slot(st)}, v[28:31]')
            if t == 2 and not fin: prep(gi + 1)
        def vloop(name, n, Dv):
            if n == 0: return
            a(f's_mov_b32 s45, 0\n{name}:')
            for st in range(RV): vstep(st, Dv[st % len(Dv)])
            a(f"""v_add_u32 v35, {RV*16}, v35
            s_add_u32 s45, s45, 1
            s_cmp_lt_u32 s45, {n}
            s_cbranch_scc1 {name}""")
        ne = s.NE * 16 // RV
        vloop('L_vloop', 256//RV - 1 - ne, VP)
        a(f'v_mov_b32 v33, 0\nds_write_b32 v33, v50 offset:{FLG}')
        vloop('L_vloop2', ne, [s.DE])
        if s.defer:
            a('s_lshl_b32 s7, s3, 6\nv_add_u32 v18, s7, v1')
            s.stage_setup(18)
        for st in range(RV): vstep(st, s.DE, RV - st)
        a(f"""s_mov_b32 exec_hi, 0
        s_nop 6
        ds_write_b128 v60, v[28:31] offset:{OP}
        s_mov_b64 exec, -1
        s_waitcnt lgkmcnt(0)""")
        s.stamp(3)
        if s.mst: a('s_memrealtime s[82:83]')
        a('s_barrier')
        s.mstamp(11, 80); s.mstamp(3, 82)
        if s.exp & 17: s.mstamp(7); a('s_endpgm')
        SR = 192
        if s.defer and not s.noffn:
            a('s_cmp_eq_u32 s66, 0\ns_cbranch_scc0 L_d1B')
            for k in range(s.NB1 if s.defer & 1 else 0):
                t, p = s.ldA(k, SR); a(t); a(p)
            a('s_branch L_d1D\nL_d1B:\ns_cmp_eq_u32 s66, 1\ns_cbranch_scc0 L_d1D')
            for k in range(s.NB1 if s.defer & 2 else 0):
                t, p = s.ldB(k, SR); a(t); a(p)
            a('L_d1D:')
        a(f"""s_mul_i32 s7, s12, {32*2560}
        s_lshl_b32 s8, s67, 8
        s_add_u32 s7, s7, s8
        v_lshrrev_b32 v8, 4, v1
        v_mul_u32_u24 v8, 2560, v8
        v_and_b32 v9, 15, v1
        v_lshl_add_u32 v8, v9, 4, v8
        v_add_u32 v48, s7, v8""")
        for i in range(1, 8): a(f'v_add_u32 v{48+i}, 10240, v{47+i}')
        a(f"""v_add_u32 v44, {WS_H}, v44
        s_barrier
        s_cmp_lt_u32 s66, 2
        s_cbranch_scc1 L_s_ffn
        s_cmp_eq_u32 s66, 3
        s_cbranch_scc1 L_end
        s_cmp_lg_u32 s3, 0
        s_cbranch_scc1 L_end""")
        s.stamp(8)
        s.poll([f'global_load_dwordx4 v[{160+4*i}:{163+4*i}], v{48+i}, s[38:39] sc1' for i in range(8)], list(range(160, 192)), 32)
        s.stamp(9)
        for step in (16, 8, 4):
            for r in range(step): a(f'v_add_f32 v{160+r}, v{160+r}, v{160+step+r}')
        for sw in ('v_permlane16_swap_b32', 'v_permlane32_swap_b32'):
            for r in range(4): a(f'v_mov_b32 v{164+r}, v{160+r}')
            for r in range(4): a(f'{sw} v{160+r}, v{164+r}')
            for r in range(4): a(f'v_add_f32 v{160+r}, v{160+r}, v{164+r}')
        a("""v_cvt_pk_bf16_f32 v24, v160, v161
        v_cvt_pk_bf16_f32 v26, v162, v163
        v_lshlrev_b32 v28, 16, v24
        v_and_b32 v29, 0xffff0000, v24
        v_lshlrev_b32 v30, 16, v26
        v_and_b32 v31, 0xffff0000, v26
        v_lshlrev_b32 v24, 16, v42
        v_and_b32 v25, 0xffff0000, v42
        v_lshlrev_b32 v26, 16, v43
        v_and_b32 v27, 0xffff0000, v43
        v_add_f32 v24, v24, v28
        v_add_f32 v25, v25, v29
        v_add_f32 v26, v26, v30
        v_add_f32 v27, v27, v31
        v_cvt_pk_bf16_f32 v24, v24, v25
        v_cvt_pk_bf16_f32 v25, v26, v27
        v_min_u32 v24, -2, v24
        v_min_u32 v25, -2, v25
        s_nop 0
        v_mov_b32_dpp v26, v24 quad_perm:[1,1,3,3] row_mask:0xf bank_mask:0xf
        v_mov_b32_dpp v27, v25 quad_perm:[1,1,3,3] row_mask:0xf bank_mask:0xf
        s_mov_b64 exec, 0x5555
        global_store_dwordx4 v44, v[24:27], s[38:39] sc1""")
        s.stamp(5)
        a('s_endpgm')
        a('L_s_ffn:')
        if s.defer: a('s_barrier')
        if s.defer and not s.noffn:
            a('s_cmp_eq_u32 s66, 0\ns_cbranch_scc0 L_d2B')
            if s.defer & 1:
                if s.DS: a(f's_sleep {s.DS}')
                for k in range(s.NB1, 10):
                    t, p = s.ldA(k, SR); a(t); a(p)
                for kb in range(5):
                    a(f's_waitcnt vmcnt({8-2*kb})'); s.wrA(kb, SR)
            a('s_branch L_d2D\nL_d2B:')
            if s.defer & 2:
                if s.DS: a(f's_sleep {s.DS}')
                for k in range(s.NB1, 14):
                    t, p = s.ldB(k, SR); a(t); a(p)
                for k in range(14):
                    a(f's_waitcnt vmcnt({13-k})'); s.wrB(k, SR)
            a('L_d2D:\ns_waitcnt lgkmcnt(0)')
            s.stamp(13)
        a('s_barrier')
        s.ffn_wregs(streamer=True)
        a('s_branch L_tail')

    def helper(s):
        a = s.a; W0 = 96; s.sv = 92
        wreg = lambda i: f'v[{W0+4*i}:{W0+4*i+3}]'
        a('L_helper:')
        if s.exp & 1: a('s_endpgm')
        s.stamp_reg(84)
        a(f"""s_sub_u32 s9, s3, 4
        v_lshrrev_b32 v2, 4, v1
        v_mul_u32_u24 v2, 40, v2
        s_mul_i32 s7, s9, 160
        v_add_u32 v3, s7, v2
        v_lshlrev_b32 v2, 13, v3
        v_and_b32 v8, 15, v1
        v_lshl_add_u32 v2, v8, 4, v2
        v_lshlrev_b32 v3, 3, v3
        s_mul_i32 s49, s4, 5
        s_lshr_b32 s49, s49, 2
        s_lshl_b32 s49, s49, 4
        v_add_u32 v3, s49, v3
        v_lshlrev_b32 v26, 4, v1
        v_lshlrev_b32 v27, 2, v1
        s_mul_i32 s7, s4, 1280
        s_lshl_b32 s8, s5, 8
        s_mov_b32 s47, 0x20000
        s_sub_u32 s46, 5242880, s8
        s_lshl_b32 s48, s49, 11
        s_waitcnt lgkmcnt(0)
        s_add_u32 s10, s16, s7
        s_addc_u32 s11, s17, 0
        s_add_u32 s44, s22, s8
        s_addc_u32 s45, s23, 0""")
        def clears():
            a(f"""v_mov_b32 v20, -1
            v_mov_b32 v21, -1
            v_mov_b32 v22, -1
            v_mov_b32 v23, -1
            s_mul_i32 s7, s2, 2560
            v_add_u32 v24, s7, v26
            s_lshl_b32 s8, s9, 10
            v_add_u32 v45, s8, v24
            s_mul_i32 s7, s12, 1280
            s_lshl_b32 s8, s67, 7
            s_add_u32 s7, s7, s8
            s_add_u32 s7, s7, {WS_H}
            s_lshl_b32 s8, s67, 8
            s_add_u32 s8, s8, {WS_ACT}
            s_cmp_eq_u32 s66, 0
            s_cselect_b32 s7, s8, s7
            v_add_u32 v25, s7, v27
            s_cmp_lg_u32 s9, {9 if s.exp & 8 else 3}
            s_cbranch_scc1 L_clrd
            {'s_branch L_nopc' if s.nopc else ''}
            global_store_dwordx4 v24, v[20:23], s[38:39] {s.cpol}
            global_store_dwordx4 v24, v[20:23], s[38:39] offset:1024 {s.cpol}
            global_store_dwordx4 v24, v[20:23], s[38:39] offset:1536 {s.cpol}
            L_nopc:
            s_bitcmp1_b32 s66, 0
            s_cbranch_scc1 L_clrd
            s_cmp_eq_u32 s66, 0
            s_cselect_b32 exec_hi, -1, 0
            global_store_dword v25, v20, s[38:39] sc1
            s_mov_b64 exec, -1
            L_clrd:""")
        s.roles()
        if s.early: clears()
        a("""global_load_dwordx4 v[12:15], v26, s[10:11]
        global_load_dword v16, v27, s[10:11] offset:1024""")
        def wq_issue(i):
            if s.nowq: return
            a(f'buffer_load_dwordx4 {wreg(i)}, v2, s[44:47], s48 offen {s.wpol}')
            if i < 39:
                a('s_add_u32 s48, s48, 8192')
                if (i & 3) == 3: a(f's_cmp_eq_u32 s48, {40*8192}\ns_cselect_b32 s48, 0, s48')
        N0 = s.N0
        for i in range(N0): wq_issue(i)
        s.masks()
        a(f"""v_mul_u32_u24 v8, 52429, v1
        v_lshrrev_b32 v8, 18, v8
        v_mul_u32_u24 v8, 160, v8
        v_lshl_add_u32 v8, v1, 5, v8
        v_add_u32 v9, 256, v1
        v_mul_u32_u24 v10, 52429, v9
        v_lshrrev_b32 v10, 20, v10
        v_mul_u32_u24 v10, 160, v10
        v_lshl_add_u32 v9, v9, 3, v10
        s_waitcnt vmcnt({0 if s.nowq else N0})""")
        s.stamp_reg(86)
        s.layernorm(12, 28, 40, True, 20, False)
        a(f"""ds_write_b128 v8, v[28:31] offset:{XD}
        ds_write_b128 v8, v[32:35] offset:{XD+16}
        ds_write_b64 v9, v[36:37] offset:{XD}
        ds_write_b128 v8, v[28:31] offset:{XD+160}
        ds_write_b128 v8, v[32:35] offset:{XD+176}
        ds_write_b64 v9, v[36:37] offset:{XD+160}
        s_waitcnt lgkmcnt(0)""")
        for i in range(10): a(f'ds_read_b128 v[{48+4*i}:{51+4*i}], v3 offset:{XD+16*i}')
        nis = N0
        for i in range(40):
            for _ in range(s.WB + (i == 0)):
                if nis < 40: wq_issue(nis); nis += 1
            if i == 0: a('s_waitcnt lgkmcnt(0)')
            ar = 28 + 4*(i & 1)
            for m in range(4): a(f'v_and_b32 v{ar+m}, v{48+i}, v{4+m}')
            a(f's_waitcnt vmcnt({nis-1-i})')
            if i == 20: s.stamp_reg(88)
            a('s_nop 0')
            a(f'v_mfma_f32_16x16x32_bf16 v[20:23], v[{ar}:{ar+3}], {wreg(i)}, ' + ('0' if i == 0 else 'v[20:23]'))
        a(f"""v_and_b32 v8, 15, v1
        v_lshlrev_b32 v8, 5, v8
        v_lshrrev_b32 v9, 4, v1
        v_lshl_add_u32 v17, v9, 4, v8
        s_lshl_b32 s7, s9, 9
        v_add_u32 v8, s7, v17
        s_nop 3
        s_mov_b32 exec_hi, 0
        ds_write_b128 v8, v[20:23] offset:{QP}
        s_mov_b64 exec, -1
        s_waitcnt lgkmcnt(0)""")
        s.stamp(1)
        for i, r in ((0, 84), (13, 86), (11, 88)): s.stamp(i, r)
        a('s_barrier')
        if s.tlb:
            a("""s_lshl_b32 s6, s2, 20
            s_add_u32 s10, s20, s6
            s_addc_u32 s11, s21, 0
            s_lshl_b32 s7, s9, 18
            v_mov_b32 v8, s7
            s_mov_b64 exec, 1
            global_load_dword v9, v8, s[10:11] nt
            s_mov_b64 exec, -1""")
        if not s.early: clears()
        def count():
            a(f"""s_cmp_lg_u32 s9, {9 if s.exp & 72 else 3}
            s_cbranch_scc1 L_cnta
            s_waitcnt vmcnt(0)""")
            if s.cstag:
                a(f"""s_lshr_b32 s7, s2, 2
                L_cst:
                s_sleep {s.cstag}
                s_sub_u32 s7, s7, 1
                s_cbranch_scc0 L_cst""")
            a("""s_mov_b64 exec, 1
            s_and_b32 s7, s2, 3
            s_lshl_b32 s7, s7, 6
            v_mov_b32 v10, s7
            v_mov_b32 v11, 1
            global_atomic_add v10, v11, s[36:37] sc1
            s_mov_b64 exec, -1
            L_cnta:""")
        if not s.latecnt: count()
        a("""s_lshl_b32 s7, s9, 6
        v_add_u32 v18, s7, v1""")
        def stagger(expr, unit):
            if not unit: return
            l = s.lab('sg'); e = s.lab('sge')
            a(expr)
            a(f'{l}:\ns_sub_u32 s7, s7, 1\ns_cbranch_scc1 {e}\ns_sleep {unit}\ns_branch {l}\n{e}:')
        def do_ffn():
            stagger('s_and_b32 s7, s67, 3', s.SG1)
            if s.defer != 3 and not s.noffn:
                def split_load(txt, lanes):
                    for q in range(64 // lanes):
                        m = ((1 << lanes) - 1) << (q * lanes)
                        if lanes < 64: a(f's_mov_b32 exec_lo, {m & 0xffffffff:#x}\ns_mov_b32 exec_hi, {m >> 32:#x}')
                        a(txt)
                        a('s_waitcnt vmcnt(0)')
                    a('s_mov_b64 exec, -1')
                a('s_cmp_ge_u32 s66, 2\ns_cbranch_scc1 L_stD')
                s.stage_setup(18)
                a('s_cmp_eq_u32 s66, 0\ns_cbranch_scc0 L_stB')
                for kb in range(0 if s.defer & 1 else 5):
                    for mt in range(2):
                        t, p = s.ldA(mt, 48); split_load(t, min(64, 2*s.FQ)); a(p)
                    s.wrA(0 if kb < 4 else 0, 48)
                    a('s_waitcnt lgkmcnt(0)')
                a('s_branch L_stD\nL_stB:')
                for k in range(0 if s.defer & 2 else 14):
                    t, p = s.ldB(0, 48); split_load(t, min(64, 2*s.FQ)); a(p)
                    a(f'ds_write_b128 v11, v[48:51] offset:{k*4096}\ns_waitcnt lgkmcnt(0)')
                a('L_stD:')
        def do_wo():
            stagger('s_mov_b32 s7, s4', s.SG2)
            a(f"""v_lshrrev_b32 v8, 4, v1
            v_lshlrev_b32 v8, 3, v8
            s_lshl_b32 s7, s9, 5
            v_add_u32 v19, s7, v8
            v_mul_u32_u24 v8, 1280, v19
            v_and_b32 v9, 15, v1
            v_lshl_add_u32 v8, v9, 4, v8
            s_mul_i32 s8, s5, {128*1280}
            s_add_u32 s44, s24, s8
            s_addc_u32 s45, s25, 0
            s_mov_b32 s46, {128*1280}
            s_mov_b32 s48, 3840
            s_mov_b32 s49, 7680""")
            for i in range(8):
                for n in range(5):
                    so = ('0', 's48', 's49')[i // 3]; off = (i % 3)*1280 + n*256
                    if s.nowo: continue
                    a(f's_waitcnt vmcnt({s.HP-1})')
                    a(f'buffer_load_dwordx4 {wreg(i*5+n)}, v8, s[44:47], {so} offen offset:{off} {s.wpol}')
        if s.wofirst: do_wo(); do_ffn()
        else: do_ffn(); do_wo()
        s.stamp(2)
        if s.latecnt: count()
        a(f"""v_lshlrev_b32 v44, 4, v18
        v_lshlrev_b32 v19, 2, v19
        s_mul_i32 s7, s9, 2560
        v_add_u32 v17, s7, v17
        v_mov_b32 v16, 0
        s_waitcnt vmcnt(0)
        s_cmp_lg_u32 s9, {9 if s.exp & 40 else 3}
        s_cbranch_scc1 L_cntd
        s_cmp_eq_u32 s66, 3
        s_cbranch_scc1 L_cntd
        s_mov_b32 s64, {s.spin}
        L_flg:
        s_sleep 32
        ds_read_b32 v8, v16 offset:{FLG}
        s_waitcnt lgkmcnt(0)
        v_readfirstlane_b32 s7, v8
        s_cmp_lg_u32 s7, 0
        s_cbranch_scc1 L_flgd
        s_sub_u32 s64, s64, 1
        s_cbranch_scc0 L_flg
        L_flgd:
        s_mov_b32 s64, {s.spin}
        v_and_b32 v9, 3, v1
        v_lshlrev_b32 v9, 6, v9
        L_cnt:
        global_load_dword v8, v9, s[36:37] sc1
        s_waitcnt vmcnt(0)
        v_cmp_gt_u32 vcc, 64, v8
        s_cbranch_vccz L_cntd
        s_sleep 127
        s_sub_u32 s64, s64, 1
        s_cbranch_scc0 L_cnt
        L_cntd:
        s_waitcnt lgkmcnt(0)
        s_barrier""")
        if s.exp & 16: a('s_endpgm')
        s.stamp(3)
        for half in range(2):
            for w in range(4):
                a(f'ds_read_b128 v[{48+8*w+4*half}:{51+8*w+4*half}], v19 offset:{OP+w*512+16*half}')
        for half in range(2):
            a(f's_waitcnt lgkmcnt({4-4*half})')
            for e in range(4*half, 4*half+4):
                a(f'v_add_f32 v{48+e}, v{48+e}, v{56+e}\nv_add_f32 v{64+e}, v{64+e}, v{72+e}')
            for e in range(4*half, 4*half+4): a(f'v_add_f32 v{48+e}, v{48+e}, v{64+e}')
            for e in range(4*half, 4*half+4): a(f'v_cvt_pk_bf16_f32 v{48+e}, v{48+e}, v{48+e}')
            for i in range(4*half, 4*half+4):
                ar = 28 + 4*(i & 1)
                for m in range(4): a(f'v_and_b32 v{ar+m}, v{48+i}, v{4+m}')
                a('s_nop 1')
                for n in range(5):
                    acc = (8, 12, 20, 36, 40)[n]
                    a(f'v_mfma_f32_16x16x32_bf16 v[{acc}:{acc+3}], v[{ar}:{ar+3}], {wreg(i*5+n)}, ' + ('0' if i == 0 else f'v[{acc}:{acc+3}]'))
        a('s_mov_b32 exec_hi, 0\ns_nop 3')
        for n in range(5):
            acc = (8, 12, 20, 36, 40)[n]
            a(f'ds_write_b128 v17, v[{acc}:{acc+3}] offset:{WOP+n*512}')
        a("""s_mov_b64 exec, -1
        s_waitcnt lgkmcnt(0)
        s_barrier
        s_cmp_eq_u32 s9, 3
        s_cbranch_scc1 L_pubd""")
        for w in range(4): a(f'ds_read_b128 v[{48+4*w}:{51+4*w}], v44 offset:{WOP+w*2560}')
        a('s_cmp_eq_u32 s9, 2\ns_cselect_b32 exec_hi, 0, -1')
        a('s_waitcnt lgkmcnt(0)')
        for e in range(4): a(f'v_add_f32 v{48+e}, v{48+e}, v{52+e}\nv_add_f32 v{56+e}, v{56+e}, v{60+e}')
        for e in range(4): a(f'v_add_f32 v{48+e}, v{48+e}, v{56+e}')
        for e in range(4): a(f'v_min_u32 v{48+e}, -2, v{48+e}')
        a("""global_store_dwordx4 v45, v[48:51], s[38:39] sc1
        s_mov_b64 exec, -1""")
        s.stamp(4)
        a("""L_pubd:
        s_cmp_ge_u32 s66, 2
        s_cbranch_scc1 L_end""")
        if s.defer: a('s_barrier')
        a('s_barrier')
        s.ffn_wregs(streamer=False)

    def tail(s):
        a = s.a; s.sv = 62
        a(f"""L_tail:
        s_cmp_eq_u32 s66, 0
        s_cbranch_scc0 L_tailB
        s_mul_i32 s7, s3, 1280
        s_add_u32 s7, s7, {WS_H}
        v_lshl_add_u32 v8, v1, 4, s7
        v_lshl_add_u32 v9, v1, 2, s7
        s_mul_i32 s7, s3, {XN2S}
        v_lshl_add_u32 v48, v1, 4, s7
        v_lshl_add_u32 v49, v1, 2, s7
        v_and_b32 v10, 7, v1
        v_mul_u32_u24 v11, {XN2S}, v10
        v_lshrrev_b32 v17, 4, v1
        v_lshl_add_u32 v11, v17, 4, v11
        v_lshlrev_b32 v10, 4, v10
        v_lshl_add_u32 v10, v17, 2, v10
        s_lshl_b32 s7, s67, 1
        s_add_u32 s7, s7, s3
        s_lshl_b32 s7, s7, 7
        s_add_u32 s7, s7, {WS_ACT - 256}
        v_add_u32 v10, s7, v10
        s_mov_b32 s55, {f2u(-L2E):#x}""")
        s.poll(['global_load_dwordx4 v[12:15], v8, s[38:39] sc1', 'global_load_dword v16, v9, s[38:39] offset:1024 sc1'],
               [12, 13, 14, 15, 16], 18)
        s.stamp(6)
        s.layernorm(12, 28, 40, False, 20, True)
        s.stamp(10)
        a(f"""ds_write_b128 v48, v[20:23] offset:{XN2}
        ds_write_b32 v49, v24 offset:{XN2+1024}
        s_waitcnt lgkmcnt(0)
        s_barrier
        s_and_b32 s7, s3, 6
        s_cmp_lg_u32 s7, 2
        s_cbranch_scc1 L_end""")
        for m in range(20): a(f'ds_read_b128 v[{144+4*m}:{147+4*m}], v11 offset:{XN2+m*64}')
        for m in range(20):
            a(f's_waitcnt lgkmcnt({min(15, 19-m)})')
            a(f'v_mfma_f32_16x16x32_bf16 v[20:23], v[{64+4*m}:{67+4*m}], v[{144+4*m}:{147+4*m}], ' + ('0' if m == 0 else 'v[20:23]'))
        a("""s_nop 7
        v_cvt_pk_bf16_f32 v20, v20, v21
        v_cvt_pk_bf16_f32 v22, v22, v23
        v_lshlrev_b32 v24, 16, v20
        v_and_b32 v25, 0xffff0000, v20
        v_mul_f32 v26, s55, v24
        v_mul_f32 v27, s55, v25
        v_exp_f32 v26, v26
        v_exp_f32 v27, v27
        v_lshlrev_b32 v28, 16, v22
        v_add_f32 v26, 1.0, v26
        v_add_f32 v27, 1.0, v27
        v_rcp_f32 v26, v26
        v_rcp_f32 v27, v27
        v_and_b32 v29, 0xffff0000, v22
        v_mul_f32 v24, v24, v26
        v_mul_f32 v25, v25, v27
        v_cvt_pk_bf16_f32 v24, v24, v25
        v_lshlrev_b32 v26, 16, v24
        v_and_b32 v27, 0xffff0000, v24
        v_mul_f32 v26, v26, v28
        v_mul_f32 v27, v27, v29
        v_cvt_pk_bf16_f32 v26, v26, v27
        v_min_u32 v24, -2, v26
        v_min_u32 v25, -2, v26
        s_nop 1
        v_permlane16_swap_b32 v24, v25
        v_mov_b32 v26, v24
        v_mov_b32 v27, v25
        s_nop 0
        v_permlane32_swap_b32 v24, v26
        v_permlane32_swap_b32 v25, v27
        s_mov_b64 exec, 0xff
        global_store_dwordx4 v10, v[24:27], s[38:39] sc1""")
        s.stamp(7)
        a('s_endpgm')
        a(f"""L_tailB:
        v_and_b32 v10, 7, v1
        v_lshrrev_b32 v17, 4, v1
        v_lshlrev_b32 v8, 4, v10
        v_lshl_add_u32 v8, v17, 7, v8
        s_lshl_b32 s7, s3, 9
        s_add_u32 s7, s7, {WS_ACT}
        v_add_u32 v8, s7, v8
        v_add_u32 v9, 0x2000, v8
        v_add_u32 v11, 0x4000, v8
        s_movk_i32 s8, 0x5000
        s_cmp_lt_u32 s3, 6
        s_cselect_b32 s8, 0x6000, s8
        v_add_u32 v12, s8, v8
        v_mul_u32_u24 v13, 1280, v10
        v_lshl_add_u32 v13, v17, 3, v13
        s_lshl_b32 s7, s67, 5
        v_add_u32 v13, s7, v13
        v_add_u32 v14, {WS_H}, v13
        v_lshlrev_b32 v60, 6, v10
        v_lshl_add_u32 v60, v17, 4, v60
        s_lshl_b32 s7, s3, 9
        v_add_u32 v61, s7, v60
        s_add_u32 s68, s38, 4096
        s_addc_u32 s69, s39, 0
        s_cmp_lg_u32 s3, 3
        s_cbranch_scc1 L_noh""")
        s.poll(['global_load_dwordx2 v[18:19], v14, s[38:39] sc1'], [18, 19], 15)
        a('L_noh:')
        if s.gate: a(f's_barrier\ns_sleep {s.gate}')
        loads = []
        for i in range(7):
            base = (8, 8, 9, 9, 11, 11, 12)[i]
            sb = 's[68:69]' if (i < 6 and (i & 1)) else 's[38:39]'
            loads.append(f'global_load_dwordx4 v[{96+4*i}:{99+4*i}], v{base}, {sb} sc1')
        s.poll(loads, list(range(96, 124)), 15)
        s.stamp(6)
        a('s_waitcnt lgkmcnt(0)')
        for i in range(7):
            a(f'v_mfma_f32_16x16x32_bf16 v[20:23], v[{64+4*i}:{67+4*i}], v[{96+4*i}:{99+4*i}], ' + ('0' if i == 0 else 'v[20:23]'))
        a(f"""s_mov_b32 exec_lo, 0x00ff00ff
        s_mov_b32 exec_hi, 0x00ff00ff
        v_lshlrev_b32 v56, 16, v18
        v_and_b32 v57, 0xffff0000, v18
        v_lshlrev_b32 v58, 16, v19
        v_and_b32 v59, 0xffff0000, v19
        s_nop 1
        ds_write_b128 v61, v[20:23] offset:{BP}
        s_waitcnt lgkmcnt(0)
        s_barrier
        s_cmp_lg_u32 s3, 3
        s_cbranch_scc1 L_end""")
        for w in range(8): a(f'ds_read_b128 v[{24+4*w}:{27+4*w}], v60 offset:{BP+w*512}')
        a('s_waitcnt lgkmcnt(0)')
        for step in (16, 8, 4):
            for r in range(step): a(f'v_add_f32 v{24+r}, v{24+r}, v{24+step+r}')
        a("""v_cvt_pk_bf16_f32 v24, v24, v25
        v_cvt_pk_bf16_f32 v26, v26, v27
        v_lshlrev_b32 v28, 16, v24
        v_and_b32 v29, 0xffff0000, v24
        v_lshlrev_b32 v30, 16, v26
        v_and_b32 v31, 0xffff0000, v26
        v_add_f32 v24, v56, v28
        v_add_f32 v25, v57, v29
        v_add_f32 v26, v58, v30
        v_add_f32 v27, v59, v31
        v_cvt_pk_bf16_f32 v24, v24, v25
        v_cvt_pk_bf16_f32 v25, v26, v27
        global_store_dwordx2 v13, v[24:25], s[34:35] """ + s.opol)
        s.stamp(7)
        s.mstamp(7)

    def text(s):
        s.gen()
        body = '\n'.join(s.L)
        k = NAME + '_kernel'
        return f"""{HEADER}; @launch grid=(256,1,1) block=(512,1,1) lds={LDS_BYTES}
.amdgcn_target "amdgcn-amd-amdhsa--gfx950"
.text
.globl {k}
.p2align 8
.type {k},@function
{k}:
{body}
.section .rodata,"a"
.p2align 6
.amdhsa_kernel {k}
  .amdhsa_next_free_vgpr 256
  .amdhsa_next_free_sgpr 102
  .amdhsa_accum_offset 256
  .amdhsa_group_segment_fixed_size 0
  .amdhsa_kernarg_size 96
  .amdhsa_user_sgpr_count 2
  .amdhsa_user_sgpr_kernarg_segment_ptr 1
  .amdhsa_system_sgpr_workgroup_id_x 1
  .amdhsa_float_denorm_mode_32 3
.end_amdhsa_kernel
"""

def parse_kw(args):
    kw = {}
    for x in args:
        k, v = x.split('=')
        try: v = int(v)
        except ValueError: v = v.replace('+', ' ').replace('-', '')
        kw[k] = v
    return kw

if __name__ == '__main__':
    open(sys.argv[1], 'w').write(G(**parse_kw(sys.argv[2:])).text())
```

```python
import sys, struct

NAME = 'sequential_preLN__mha_block_cached__swiglu_ffn__decode'
def f2u(x): return struct.unpack('<I', struct.pack('<f', x))[0]

HEADER = """; Kernarg layout for this problem (96 bytes, ptrs only, base s[0:1]):
;
"""

WS_P   = 0
WS_H   = 256*2560
WS_ACT = WS_H + 10240
WS_FL  = WS_ACT + 27648
WS_EP  = WS_FL + 32768
TAGC = 0x9e3779b9
WS_STAMP = 1 << 20

XD  = 0
QP  = 5120
OP  = 7168
ST  = 9216
FLG = ST + 64
SC0 = 9344
SCW = 64*64
WOP = SC0 + 4*SCW
XN2 = WOP + 10240
XN2S = 1296
BP  = XN2
IMG = XN2 + 8*XN2S
LDS_BYTES = IMG + 57344
L2E = 1.4426950408889634

DEF = dict(D=5, D0=4, DP=6, DE=8, NE=6, NP=48, N0=8, WB=40, HP=1, FQ=16, kvpol='nt', wpol='', fpol='', opol='',
           stamps=0, spin=1 << 19, psleep=0, defer=3, gate=0, NB1=1, DS=0, flat=1, XE=4, mst=0, exp=0, early=1, bflag=2, tlb=0, RD=0, KP='', VP='', SG1=0, SG2=0, wofirst=0, latecnt=1, cstag=0, cpol='sc1', nopc=0, nowo=0, nowq=0, noffn=0)

class G:
    def __init__(s, **kw):
        for k, v in DEF.items(): setattr(s, k, v)
        for k, v in kw.items():
            assert k in DEF, k
            setattr(s, k, v)
        s.L = []; s.nl = 0; s.sv = 62
    def a(s, t):
        for line in t.strip('\n').split('\n'):
            line = line.strip()
            if line: s.L.append(line if line.endswith(':') else '    ' + line)
    def lab(s, p):
        s.nl += 1; return f'L_{p}_{s.nl}'
    def stamp_reg(s, r):
        if s.stamps: s.a(f's_memrealtime s[{r}:{r+1}]')
    def stamp(s, idx, r=None):
        if not s.stamps: return
        s.a('s_memrealtime s[92:93]' if r is None else 's_nop 0')
        s.a('s_waitcnt lgkmcnt(0)')
        if r is not None: s.a(f's_mov_b32 s92, s{r}')
        s.a(f"""s_mov_b64 s[94:95], exec
        s_mov_b64 exec, 1
        s_lshl_b32 s93, s2, 3
        s_add_u32 s93, s93, s3
        s_lshl_b32 s93, s93, 6
        s_add_u32 s93, s93, {WS_STAMP + idx*4}
        v_mov_b32 v{s.sv}, s93
        v_mov_b32 v{s.sv+1}, s92
        global_store_dword v{s.sv}, v{s.sv+1}, s[38:39]
        s_mov_b64 exec, s[94:95]""")

    def mstamp(s, idx, r=None):
        if not s.mst: return
        keep = s.stamps; s.stamps = 1
        n0 = len(s.L)
        s.stamp(idx, r)
        s.L[n0:] = [l + ' sc1' if 'global_store' in l else l for l in s.L[n0:]]
        s.stamps = keep
    def wave_sum(s, v, sd):
        for c in ('row_ror:8', 'row_ror:4', 'row_ror:2', 'row_ror:1'):
            s.a(f's_nop 1\nv_add_f32_dpp v{v}, v{v}, v{v} {c} row_mask:0xf bank_mask:0xf')
        s.a(f's_nop 1\nv_add_f32_dpp v{v}, v{v}, v{v} row_bcast:15 row_mask:0xa bank_mask:0xf')
        s.a(f's_nop 1\nv_add_f32_dpp v{v}, v{v}, v{v} row_bcast:31 row_mask:0xc bank_mask:0xf')
        s.a(f's_nop 1\nv_readlane_b32 s{sd}, v{v}, 63')

    def layernorm(s, src, f, t, dup, o, fast):
        a = s.a
        for i in range(5):
            a(f'v_lshlrev_b32 v{f+2*i}, 16, v{src+i}\nv_and_b32 v{f+2*i+1}, 0xffff0000, v{src+i}')
        a(f's_mov_b32 s61, {f2u(1.0/640):#x}')
        if fast:
            a(f'v_readfirstlane_b32 s58, v{f}\nv_readfirstlane_b32 s59, v{f}\ns_nop 1')
            d = o
            a(f'v_pk_add_f32 v[{t}:{t+1}], v[{f}:{f+1}], s[58:59] neg_lo:[0,1] neg_hi:[0,1]')
            a(f'v_pk_mul_f32 v[{t+2}:{t+3}], v[{t}:{t+1}], v[{t}:{t+1}]')
            for i in range(1, 5):
                a(f'v_pk_add_f32 v[{d}:{d+1}], v[{f+2*i}:{f+2*i+1}], s[58:59] neg_lo:[0,1] neg_hi:[0,1]')
                a(f'v_pk_add_f32 v[{t}:{t+1}], v[{t}:{t+1}], v[{d}:{d+1}]')
                a(f'v_pk_fma_f32 v[{t+2}:{t+3}], v[{d}:{d+1}], v[{d}:{d+1}], v[{t+2}:{t+3}]')
            a(f'v_add_f32 v{t}, v{t}, v{t+1}\nv_add_f32 v{t+2}, v{t+2}, v{t+3}')
            for c in ('row_ror:8 row_mask:0xf', 'row_ror:4 row_mask:0xf', 'row_ror:2 row_mask:0xf', 'row_ror:1 row_mask:0xf',
                      'row_bcast:15 row_mask:0xa', 'row_bcast:31 row_mask:0xc'):
                a(f's_nop 0\nv_add_f32_dpp v{t}, v{t}, v{t} {c} bank_mask:0xf\nv_add_f32_dpp v{t+2}, v{t+2}, v{t+2} {c} bank_mask:0xf')
            a(f'v_readlane_b32 s60, v{t}, 63\nv_readlane_b32 s58, v{t+2}, 63\ns_nop 0')
            a(f'v_mov_b32 v{t}, s60\nv_mov_b32 v{t+2}, s58\nv_mul_f32 v{t}, s61, v{t}\nv_mul_f32 v{t+2}, s61, v{t+2}')
            a(f'v_fma_f32 v{t+2}, -v{t}, v{t}, v{t+2}\nv_add_f32 v{t}, s59, v{t}\nv_max_f32 v{t+2}, 0, v{t+2}')
            a(f'v_cvt_pk_bf16_f32 v{t}, v{t}, v{t+2}\nv_and_b32 v{t+2}, 0xffff0000, v{t}\nv_lshlrev_b32 v{t}, 16, v{t}')
        else:
            a(f'v_add_f32 v{t}, v{f}, v{f+1}')
            for i in range(2, 10): a(f'v_add_f32 v{t}, v{t}, v{f+i}')
            s.wave_sum(t, 60)
            a(f's_nop 1\nv_mov_b32 v{t}, s60\nv_mul_f32 v{t}, s61, v{t}')
            a(f'v_sub_f32 v{t+1}, v{f}, v{t}\nv_mul_f32 v{t+2}, v{t+1}, v{t+1}')
            for i in range(1, 10):
                a(f'v_sub_f32 v{t+1}, v{f+i}, v{t}\nv_fmac_f32 v{t+2}, v{t+1}, v{t+1}')
            s.wave_sum(t+2, 60)
            a(f'v_cvt_pk_bf16_f32 v{t}, v{t}, v{t}\nv_lshlrev_b32 v{t}, 16, v{t}')
            a(f'v_mov_b32 v{t+2}, s60\nv_mul_f32 v{t+2}, s61, v{t+2}')
            a(f'v_cvt_pk_bf16_f32 v{t+2}, v{t+2}, v{t+2}\nv_lshlrev_b32 v{t+2}, 16, v{t+2}')
        a(f'v_add_f32 v{t+2}, {f2u(1e-5):#x}, v{t+2}')
        a(f'v_cvt_pk_bf16_f32 v{t+2}, v{t+2}, v{t+2}\nv_lshlrev_b32 v{t+2}, 16, v{t+2}')
        a(f'v_sqrt_f32 v{t+2}, v{t+2}')
        if fast:
            for i in range(5): a(f'v_pk_add_f32 v[{f+2*i}:{f+2*i+1}], v[{f+2*i}:{f+2*i+1}], v[{t}:{t+1}] op_sel_hi:[1,0] neg_lo:[0,1] neg_hi:[0,1]')
        else:
            for i in range(10): a(f'v_sub_f32 v{f+i}, v{f+i}, v{t}')
        a(f'v_cvt_pk_bf16_f32 v{t+2}, v{t+2}, v{t+2}\nv_lshlrev_b32 v{t+2}, 16, v{t+2}')
        a(f'v_rcp_f32 v{t+3}, v{t+2}')
        for i in range(5): a(f'v_cvt_pk_bf16_f32 v{o+i}, v{f+2*i}, v{f+2*i+1}')
        for i in range(5):
            a(f'v_lshlrev_b32 v{f+2*i}, 16, v{o+i}\nv_and_b32 v{f+2*i+1}, 0xffff0000, v{o+i}')
        for i in range(10):
            if fast:
                if i & 1: a(f'v_pk_mul_f32 v[{f+i-1}:{f+i}], v[{f+i-1}:{f+i}], v[{t+2}:{t+3}] op_sel:[0,1] op_sel_hi:[1,1]')
            else: a(f'v_mul_f32 v{t}, v{f+i}, v{t+3}\nv_fma_f32 v{t+1}, -v{t}, v{t+2}, v{f+i}\nv_fma_f32 v{f+i}, v{t+1}, v{t+3}, v{t}')
        if dup:
            for i in range(10): a(f'v_cvt_pk_bf16_f32 v{f+i}, v{f+i}, v{f+i}')
        else:
            for i in range(5): a(f'v_cvt_pk_bf16_f32 v{o+i}, v{f+2*i}, v{f+2*i+1}')

    def poll(s, loads, regs, t):
        a = s.a
        lp = s.lab('poll'); ld = s.lab('polld')
        a(f's_mov_b64 s[62:63], exec\ns_mov_b32 s64, {s.spin}')
        a(f'{lp}:')
        for l in loads: a(l)
        a('s_waitcnt vmcnt(0)')
        r = list(regs)
        if len(r) == 2: a(f'v_max_u32 v{t}, v{r[0]}, v{r[1]}'); r = []
        else:
            a(f'v_max3_u32 v{t}, v{r[0]}, v{r[1]}, v{r[2]}'); r = r[3:]
        while len(r) >= 2:
            a(f'v_max3_u32 v{t}, v{t}, v{r[0]}, v{r[1]}'); r = r[2:]
        if r: a(f'v_max_u32 v{t}, v{t}, v{r[0]}')
        a(f'v_cmpx_eq_u32 vcc, -1, v{t}')
        a(f's_cbranch_execz {ld}')
        if s.psleep: a(f's_sleep {s.psleep}')
        a(f's_sub_u32 s64, s64, 1\ns_cbranch_scc0 {lp}')
        a(f'{ld}:')
        a('s_mov_b64 exec, s[62:63]\ns_nop 2')

    def roles(s):
        s.a("""s_and_b32 s12, s2, 7
        s_lshr_b32 s13, s2, 3
        s_min_u32 s14, s12, 3
        s_lshl_b32 s14, s14, 2
        s_mul_i32 s67, s12, 12
        s_add_u32 s67, s67, s14
        s_add_u32 s67, s67, s13
        s_cmp_lt_u32 s12, 3
        s_cselect_b32 s14, 16, 12
        s_mov_b32 s66, 0
        s_sub_u32 s13, s13, s14
        s_cbranch_scc1 L_role%d
        s_sub_u32 s14, s12, 3
        s_max_i32 s14, s14, 0
        s_min_i32 s14, s14, 2
        s_add_u32 s14, s14, s12
        s_lshl_b32 s14, s14, 2
        s_add_u32 s67, s14, s13
        s_sub_u32 s14, s12, 3
        s_cmp_lt_u32 s14, 2
        s_cselect_b32 s14, 8, 4
        s_mov_b32 s66, 1
        s_sub_u32 s13, s13, s14
        s_cbranch_scc1 L_role%d
        s_mov_b32 s67, s13
        s_mov_b32 s66, 2
        s_cmp_lt_u32 s13, 10
        s_cbranch_scc1 L_role%d
        s_mov_b32 s66, 3
        s_mov_b32 s67, 0
        L_role%d:""" % ((s.nl,)*4))
        s.nl += 1

    def masks(s):
        s.a("""v_and_b32 v8, 15, v1
        v_and_b32 v9, 1, v1
        v_lshlrev_b32 v9, 4, v9
        v_mov_b32 v10, 0xffff
        v_lshlrev_b32 v10, v9, v10
        v_lshrrev_b32 v11, 1, v8""")
        for m in range(4):
            s.a(f'v_cmp_eq_u32 vcc, {m}, v11\ns_nop 1\nv_cndmask_b32 v{4+m}, 0, v10, vcc')

    def gen(s):
        a = s.a
        s.stamp_reg(80)
        if s.mst: a('s_memrealtime s[80:81]')
        a("""s_cmp_ge_u32 s2, 256
        s_cbranch_scc1 L_end
        s_load_dwordx16 s[16:31], s[0:1], 0
        s_load_dwordx8 s[32:39], s[0:1], 64
        v_lshrrev_b32 v2, 6, v0
        v_and_b32 v1, 63, v0
        v_readfirstlane_b32 s3, v2
        s_lshr_b32 s4, s2, 5
        s_and_b32 s5, s2, 31
        s_cmp_ge_u32 s3, 4
        s_cbranch_scc1 L_helper""")
        s.streamer()
        s.helper()
        s.tail()
        a('L_end:\ns_endpgm')

    def stage_setup(s, T):
        a = s.a
        lb = s.lab('sgB'); ld = s.lab('sgD')
        a(f"""v_lshrrev_b32 v8, 1, v{T}
        v_and_b32 v9, 1, v{T}
        s_lshl_b32 s8, s67, 5
        s_mov_b32 s71, 0x20000
        s_mov_b32 s75, 0x20000
        s_sub_u32 s70, 2211840, s8
        s_mov_b32 s74, s70
        s_mov_b32 s76, 0
        s_cmp_eq_u32 s66, 0
        s_cbranch_scc0 {lb}
        s_add_u32 s68, s28, s8
        s_addc_u32 s69, s29, 0
        s_add_u32 s72, s30, s8
        s_addc_u32 s73, s31, 0
        s_mov_b32 s7, 3456
        v_mul_lo_u32 v10, v8, s7
        v_lshl_add_u32 v10, v9, 4, v10
        v_lshlrev_b32 v11, 5, v{T}
        s_branch {ld}
        {lb}:
        s_add_u32 s68, s32, s8
        s_addc_u32 s69, s33, 0
        s_mov_b32 s72, s68
        s_mov_b32 s73, s69
        v_mul_u32_u24 v10, 1280, v8
        v_lshl_add_u32 v10, v9, 4, v10
        v_lshlrev_b32 v11, 4, v{T}
        {ld}:
        v_add_u32 v11, {IMG}, v11""")
    def ldA(s, k, R):
        srd = 's[68:71]' if (k & 1) == 0 else 's[72:75]'
        t = f'buffer_load_dwordx4 v[{R+4*k}:{R+4*k+3}], v10, {srd}, s76 offen {s.fpol}'
        post = f's_add_u32 s76, s76, {128*3456}' if k & 1 else ''
        return t, post
    def ldB(s, k, R):
        return f'buffer_load_dwordx4 v[{R+4*k}:{R+4*k+3}], v10, s[68:71], s76 offen {s.fpol}', f's_add_u32 s76, s76, {128*1280}'
    def wrA(s, kb, R):
        for q in range(4):
            s.a(f'ds_write2_b32 v11, v{R+8*kb+q}, v{R+8*kb+4+q} offset0:{2*q} offset1:{2*q+1}')
        if kb < 4: s.a('v_add_u32 v11, 8192, v11')
    def wrB(s, k, R):
        s.a(f'ds_write_b128 v11, v[{R+4*k}:{R+4*k+3}] offset:{k*4096}')

    def ffn_wregs(s, streamer):
        a = s.a
        la = s.lab('wa'); ld = s.lab('wd')
        a(f"""v_lshrrev_b32 v46, 4, v1
        v_lshlrev_b32 v46, 3, v46
        v_bfe_u32 v47, v1, 2, 2
        v_add_u32 v46, v46, v47
        v_and_b32 v47, 3, v1
        v_lshlrev_b32 v47, 3, v47
        v_add_u32 v47, {IMG}, v47
        s_cmp_eq_u32 s66, 0
        s_cbranch_scc1 {la}
        v_lshl_add_u32 v46, v46, 5, v47
        s_lshl_b32 s7, s3, 10
        v_add_u32 v46, s7, v46""")
        for i in range(7):
            a(f'ds_read_b64_tr_b16 v[{64+4*i}:{65+4*i}], v46 offset:{i*8192}')
            a(f'ds_read_b64_tr_b16 v[{66+4*i}:{67+4*i}], v46 offset:{i*8192+128}')
        a(f's_branch {ld}\n{la}:')
        if streamer:
            a(f"""s_cmp_lt_u32 s3, 2
            s_cbranch_scc1 {ld}
            v_lshl_add_u32 v46, v46, 6, v47
            s_sub_u32 s7, s3, 2
            s_lshl_b32 s7, s7, 5
            v_add_u32 v46, s7, v46""")
            for m in range(20):
                a(f'ds_read_b64_tr_b16 v[{64+4*m}:{65+4*m}], v46 offset:{m*2048}')
                a(f'ds_read_b64_tr_b16 v[{66+4*m}:{67+4*m}], v46 offset:{m*2048+256}')
        a(f'{ld}:')

    def streamer(s):
        a = s.a; D = s.D; R0 = 64; NP = s.NP; R = 16; s.sv = 62
        assert NP % 16 == 0
        slot = lambda p: f'v[{R0+4*p}:{R0+4*p+3}]'
        def issue(p, t):
            a(f'buffer_load_dwordx4 {slot(p)}, v2, s[40:43], s44 offen offset:{t*1024} {s.kvpol}')
            if t == 3: a('s_add_u32 s44, s44, 16384')
        a("""v_bfe_u32 v2, v1, 2, 2
        v_lshlrev_b32 v2, 8, v2
        v_lshrrev_b32 v3, 4, v1
        v_lshl_add_u32 v2, v3, 6, v2
        v_and_b32 v3, 3, v1
        v_lshl_add_u32 v2, v3, 4, v2
        s_lshl_b32 s6, s2, 20
        s_lshl_b32 s44, s3, 12
        s_mov_b32 s42, 0x100000
        s_mov_b32 s43, 0x20000
        s_waitcnt lgkmcnt(0)
        s_add_u32 s40, s18, s6
        s_addc_u32 s41, s19, 0""")
        s.stamp_reg(82)
        for i in range(s.D0): issue(i, i & 3)
        s.stamp(0); s.stamp(11, 80); s.stamp(12, 82)
        a("""s_add_u32 s48, s20, s6
        s_addc_u32 s49, s21, 0
        v_lshlrev_b32 v3, 4, v1""")
        s.roles()
        a("""v_and_b32 v8, 15, v1
        v_lshlrev_b32 v8, 3, v8
        s_min_u32 s8, s67, 9
        s_lshl_b32 s8, s8, 7
        s_mul_i32 s7, s12, 1280
        s_add_u32 s7, s7, s8
        v_add_u32 v44, s7, v8
        global_load_dwordx2 v[42:43], v44, s[16:17]""")
        s.masks()
        a(f"""s_mov_b32 s50, 0xaaaaaaaa
        s_mov_b32 s51, 0xaaaaaaaa
        s_mov_b32 s52, 0xcccccccc
        s_mov_b32 s53, 0xcccccccc
        s_mov_b32 s54, {f2u(128**-0.5):#x}
        s_mov_b32 s55, {f2u(L2E):#x}
        v_mov_b32 v34, 0xff7fffff
        v_mov_b32 v36, 0
        s_mul_i32 s7, s3, {SCW}
        s_add_u32 s7, s7, {SC0}
        v_and_b32 v35, 60, v1
        v_add_u32 v35, s7, v35
        v_lshrrev_b32 v8, 4, v1
        v_lshlrev_b32 v8, 2, v8
        v_and_b32 v9, 3, v1
        v_add_u32 v8, v8, v9
        v_lshlrev_b32 v45, 5, v8
        s_lshl_b32 s7, s3, 4
        v_mov_b32 v61, s7
        ds_write_b32 v61, v36 offset:{ST+8}
        ds_write_b32 v36, v36 offset:{FLG}
        v_and_b32 v8, 15, v1
        v_lshlrev_b32 v8, 5, v8
        v_lshrrev_b32 v9, 4, v1
        v_lshl_add_u32 v8, v9, 4, v8
        s_lshl_b32 s7, s3, 9
        v_add_u32 v60, s7, v8
        s_waitcnt lgkmcnt(0)""")
        for i in range(s.D0, NP):
            a(f's_waitcnt vmcnt({s.DP-1})')
            issue(i, i & 3)
        s.stamp(4)
        a('s_barrier')
        s.stamp(1)
        a(f"""ds_read_b128 v[46:49], v45 offset:{QP}
        ds_read_b128 v[50:53], v45 offset:{QP+16}
        ds_read_b128 v[54:57], v45 offset:{QP+512}
        ds_read_b128 v[16:19], v45 offset:{QP+512+16}
        ds_read_b128 v[24:27], v45 offset:{QP+1024}
        ds_read_b128 v[28:31], v45 offset:{QP+1024+16}
        ds_read_b128 v[8:11], v45 offset:{QP+1536}
        ds_read_b128 v[12:15], v45 offset:{QP+1536+16}
        s_waitcnt lgkmcnt(0)""")
        for e in range(8):
            b1 = 54+e if e < 4 else 12+e
            a(f'v_add_f32 v{46+e}, v{46+e}, v{b1}\nv_add_f32 v{24+e}, v{24+e}, v{8+e}')
        for e in range(8): a(f'v_add_f32 v{46+e}, v{46+e}, v{24+e}')
        for m in range(4): a(f'v_cvt_pk_bf16_f32 v{54+m}, v{46+2*m}, v{47+2*m}')
        for t in range(4):
            mk = 0x000f000f << (4*t)
            a(f's_mov_b32 s56, {mk:#x}\ns_mov_b32 s57, {mk:#x}')
            for m in range(4): a(f'v_cndmask_b32 v{8+4*t+m}, 0, v{54+m}, s[56:57]')
        a('s_nop 1')
        Dreg = lambda g: 24 + 4*(g & 1)
        def post1(g):
            if s.exp & 2: return
            d = Dreg(g)
            a(f"""s_nop 1
            v_cndmask_b32 v32, v{d}, v{d+1}, s[50:51]
            v_cndmask_b32 v33, v{d+2}, v{d+3}, s[50:51]
            v_cndmask_b32 v32, v32, v33, s[52:53]
            s_nop 1
            v_add_f32_dpp v32, v32, v32 quad_perm:[1,0,3,2] row_mask:0xf bank_mask:0xf
            s_nop 1
            v_add_f32_dpp v32, v32, v32 quad_perm:[2,3,0,1] row_mask:0xf bank_mask:0xf""")
        def post2a(off):
            if s.exp & 2: return
            a(f"""v_cvt_pk_bf16_f32 v32, v32, v32
            v_lshlrev_b32 v32, 16, v32
            v_mul_f32 v32, s54, v32
            v_cvt_pk_bf16_f32 v32, v32, v32
            v_lshlrev_b32 v32, 16, v32
            v_max_f32 v33, v34, v32
            ds_write_b32 v35, v32 offset:{off}""")
        def post2b():
            if s.exp & 2: return
            a("""v_sub_f32 v40, v34, v33
            v_sub_f32 v46, v32, v33
            v_mul_f32 v40, s55, v40
            v_mul_f32 v46, s55, v46
            v_exp_f32 v40, v40
            v_exp_f32 v46, v46
            v_mov_b32 v34, v33
            v_fma_f32 v36, v36, v40, v46""")
        def post2(off):
            post2a(off); post2b()
        def kcons(p, gi, t):
            d = Dreg(gi)
            c = '0' if t == 0 else f'v[{d}:{d+3}]'
            if not s.exp & 4: a(f'v_mfma_f32_16x16x32_bf16 v[{d}:{d+3}], {slot(p)}, v[{8+4*t}:{11+4*t}], {c}')
        nis = 0
        per = max(1, (NP - 1) // 15)
        for i in range(NP):
            gi, t = i >> 2, i & 3
            need = (NP + nis - 1) - i
            if i >= NP - s.DP: a(f's_waitcnt vmcnt({min(need, 63)})')
            kcons(i, gi, t)
            if gi > 0 and t == 2: a('s_nop 3'); post1(gi - 1)
            if gi > 0 and t == 3: post2((gi - 1) * 64)
            if nis < 15 and i >= nis and (i + 1) % per == 0:
                a(f's_waitcnt vmcnt({D-1})')
                issue(nis, nis & 3); nis += 1
        assert nis == 15, nis
        a(f'v_add_u32 v35, {(NP//4-1)*64}, v35')
        nk = (256 - NP) // R
        a('s_mov_b32 s45, 0')
        if s.RD: a('s_cmp_lt_u32 s66, 2\ns_cselect_b64 vcc, -1, 0')
        a('L_kloop:')
        KP = [int(c) for c in str(s.KP)] or [D]
        VP = [int(c) for c in str(s.VP)] or [D]
        for st in range(R):
            gi, t = st >> 2, st & 3
            if s.RD and st % s.RD == 0:
                l = s.lab('rd'); a(f's_cbranch_vccnz {l}\ns_waitcnt vmcnt({D-1})\n{l}:\ns_waitcnt vmcnt({D})')
            else: a(f's_waitcnt vmcnt({KP[st % len(KP)]-1})')
            issue((st - 1) % R, (st - 1) & 3)
            if st == 0:
                a(f"""s_cmp_lg_u32 s45, {nk-1}
                s_cbranch_scc1 L_nosw
                s_mov_b32 s40, s48
                s_mov_b32 s41, s49
                s_lshl_b32 s44, s3, 12
                v_mov_b32 v2, v3
                L_nosw:""")
            kcons(st, gi, t)
            if s.flat:
                if t == 1: post1(gi - 1)
                if t == 2: post2a(gi * 64)
                if t == 3: post2b()
            else:
                if t == 2: post1(gi - 1)
                if t == 3: post2(gi * 64)
        a(f"""v_add_u32 v35, {R*16}, v35
        s_add_u32 s45, s45, 1
        s_cmp_lt_u32 s45, {nk}
        s_cbranch_scc1 L_kloop""")
        XE = s.XE; RV = 32 if XE else 16; LAG = 15 + XE
        xi = [0]
        def xissue():
            if xi[0] < XE:
                j = 15 + xi[0]; xi[0] += 1
                a(f's_waitcnt vmcnt({D-1})'); issue(j, j & 3)
        xissue()
        post1(1); post2(0)
        xissue()
        a(f"""s_nop 0
        v_max_f32_dpp v33, v34, v34 row_ror:4 row_mask:0xf bank_mask:0xf
        v_subrev_u32 v35, {63*64}, v35
        v_mov_b32 v28, 0
        v_max_f32_dpp v33, v33, v33 row_ror:8 row_mask:0xf bank_mask:0xf
        v_mov_b32 v29, 0
        v_readlane_b32 s56, v33, 0
        v_readlane_b32 s57, v33, 16
        v_readlane_b32 s58, v33, 32
        v_readlane_b32 s59, v33, 48
        v_mov_b32 v30, 0
        v_mov_b32 v48, s56
        v_max_f32 v48, s57, v48
        v_max_f32 v48, s58, v48
        v_max_f32 v48, s59, v48
        v_sub_f32 v40, v34, v48
        v_mul_f32 v40, s55, v40
        v_exp_f32 v40, v40
        v_mov_b32 v31, 0
        v_mul_f32 v36, v36, v40
        v_mov_b32 v50, 1
        v_mov_b32 v51, 1
        v_add_f32_dpp v36, v36, v36 row_ror:4 row_mask:0xf bank_mask:0xf
        s_nop 1
        v_add_f32_dpp v36, v36, v36 row_ror:8 row_mask:0xf bank_mask:0xf
        s_nop 0
        v_readlane_b32 s56, v36, 0
        v_readlane_b32 s57, v36, 16
        v_readlane_b32 s58, v36, 32
        v_readlane_b32 s59, v36, 48
        v_mov_b32 v33, 0
        v_mov_b32 v49, s56
        v_add_f32 v49, s57, v49
        v_add_f32 v49, s58, v49
        v_add_f32 v49, s59, v49
        ds_write_b128 v61, v[48:51] offset:{ST}""")
        xissue()
        a(f"""s_mov_b32 s64, {s.spin}
        L_stw:
        ds_read_b128 v[8:11], v33 offset:{ST}
        ds_read_b128 v[12:15], v33 offset:{ST+16}
        ds_read_b128 v[16:19], v33 offset:{ST+32}
        ds_read_b128 v[20:23], v33 offset:{ST+48}
        ds_read_b32 v39, v35
        s_waitcnt lgkmcnt(0)
        v_and_b32 v40, v10, v14
        v_and_b32 v46, v18, v22
        v_and_b32 v40, v40, v46
        s_nop 0
        v_readfirstlane_b32 s7, v40
        s_cmp_lg_u32 s7, 0
        s_cbranch_scc1 L_stwd
        s_sub_u32 s64, s64, 1
        s_cbranch_scc0 L_stw
        L_stwd:""")
        while xi[0] < XE: xissue()
        a(f"""v_max_f32 v41, v8, v12
        v_max3_f32 v41, v41, v16, v20
        v_sub_f32 v8, v8, v41
        v_sub_f32 v12, v12, v41
        v_sub_f32 v16, v16, v41
        v_sub_f32 v20, v20, v41
        v_mul_f32 v8, s55, v8
        v_mul_f32 v12, s55, v12
        v_mul_f32 v16, s55, v16
        v_mul_f32 v20, s55, v20
        v_exp_f32 v8, v8
        v_exp_f32 v12, v12
        v_exp_f32 v16, v16
        v_exp_f32 v20, v20
        v_mul_f32 v40, v8, v9
        v_fmac_f32 v40, v12, v13
        v_fmac_f32 v40, v16, v17
        v_fmac_f32 v40, v20, v21
        v_rcp_f32 v47, v40
        s_nop 0
        v_fma_f32 v46, -v40, v47, 1.0
        v_fmac_f32 v47, v46, v47""")
        s.stamp(2)
        def prep(g):
            if s.exp & 2: return
            a(f"""s_waitcnt lgkmcnt(0)
            v_sub_f32 v39, v39, v41
            v_mul_f32 v39, s55, v39
            v_exp_f32 v39, v39
            s_nop 0
            v_mul_f32 v39, v39, v47
            v_cvt_pk_bf16_f32 v{37+(g&1)}, v39, v39""")
        prep(0)
        a('s_nop 0')
        def vstep(st, Dv, left=None):
            gi, t = st >> 2, st & 3
            late = left is not None and left <= LAG and left - 1 < Dv
            if left is None or left > LAG:
                a(f's_waitcnt vmcnt({Dv-1})')
                issue((st + LAG) % RV, (st + LAG) & 3)
            fin = left is not None and left <= 4
            if t == 0 and not fin: a(f'ds_read_b32 v39, v35 offset:{(gi+1)*64}')
            for m in range(4):
                a(f'v_and_b32_dpp v{24+m}, v{37+(gi&1)}, v{4+m} row_newbcast:{4*t} row_mask:0xf bank_mask:0xf')
            a(f's_nop 0\ns_waitcnt vmcnt({left-1})' if late else 's_nop 1')
            if not s.exp & 4: a(f'v_mfma_f32_16x16x32_bf16 v[28:31], v[24:27], {slot(st)}, v[28:31]')
            if t == 2 and not fin: prep(gi + 1)
        def vloop(name, n, Dv):
            if n == 0: return
            a(f's_mov_b32 s45, 0\n{name}:')
            for st in range(RV): vstep(st, Dv[st % len(Dv)])
            a(f"""v_add_u32 v35, {RV*16}, v35
            s_add_u32 s45, s45, 1
            s_cmp_lt_u32 s45, {n}
            s_cbranch_scc1 {name}""")
        ne = s.NE * 16 // RV
        vloop('L_vloop', 256//RV - 1 - ne, VP)
        a(f'v_mov_b32 v33, 0\nds_write_b32 v33, v50 offset:{FLG}')
        vloop('L_vloop2', ne, [s.DE])
        if s.defer:
            a('s_lshl_b32 s7, s3, 6\nv_add_u32 v18, s7, v1')
            s.stage_setup(18)
        for st in range(RV): vstep(st, s.DE, RV - st)
        a(f"""s_mov_b32 exec_hi, 0
        s_nop 6
        ds_write_b128 v60, v[28:31] offset:{OP}
        s_mov_b64 exec, -1
        s_waitcnt lgkmcnt(0)""")
        s.stamp(3)
        if s.mst: a('s_memrealtime s[82:83]')
        a('s_barrier')
        s.mstamp(11, 80); s.mstamp(3, 82)
        if s.exp & 17: s.mstamp(7); a('s_endpgm')
        SR = 192
        if s.defer and not s.noffn:
            a('s_cmp_eq_u32 s66, 0\ns_cbranch_scc0 L_d1B')
            for k in range(s.NB1 if s.defer & 1 else 0):
                t, p = s.ldA(k, SR); a(t); a(p)
            a('s_branch L_d1D\nL_d1B:\ns_cmp_eq_u32 s66, 1\ns_cbranch_scc0 L_d1D')
            for k in range(s.NB1 if s.defer & 2 else 0):
                t, p = s.ldB(k, SR); a(t); a(p)
            a('L_d1D:')
        a(f"""s_mul_i32 s7, s12, {32*2560}
        s_lshl_b32 s8, s67, 8
        s_add_u32 s7, s7, s8
        v_lshrrev_b32 v8, 4, v1
        v_mul_u32_u24 v8, 2560, v8
        v_and_b32 v9, 15, v1
        v_lshl_add_u32 v8, v9, 4, v8
        v_add_u32 v48, s7, v8""")
        for i in range(1, 8): a(f'v_add_u32 v{48+i}, 10240, v{47+i}')
        a(f"""v_add_u32 v44, {WS_H}, v44
        s_barrier
        s_cmp_lt_u32 s66, 2
        s_cbranch_scc1 L_s_ffn
        s_cmp_eq_u32 s66, 3
        s_cbranch_scc1 L_end
        s_cmp_lg_u32 s3, 0
        s_cbranch_scc1 L_end""")
        s.stamp(8)
        s.poll([f'global_load_dwordx4 v[{160+4*i}:{163+4*i}], v{48+i}, s[38:39] sc1' for i in range(8)], list(range(160, 192)), 32)
        s.stamp(9)
        for step in (16, 8, 4):
            for r in range(0, step, 2): a(f'v_pk_add_f32 v[{160+r}:{160+r+1}], v[{160+r}:{160+r+1}], v[{160+step+r}:{160+step+r+1}]')
        for sw in ('v_permlane16_swap_b32', 'v_permlane32_swap_b32'):
            for r in range(4): a(f'v_mov_b32 v{164+r}, v{160+r}')
            for r in range(4): a(f'{sw} v{160+r}, v{164+r}')
            for r in (0, 2): a(f'v_pk_add_f32 v[{160+r}:{160+r+1}], v[{160+r}:{160+r+1}], v[{164+r}:{164+r+1}]')
            a('s_nop 0')
        a("""v_cvt_pk_bf16_f32 v24, v160, v161
        v_cvt_pk_bf16_f32 v26, v162, v163
        v_lshlrev_b32 v28, 16, v24
        v_and_b32 v29, 0xffff0000, v24
        v_lshlrev_b32 v30, 16, v26
        v_and_b32 v31, 0xffff0000, v26
        v_lshlrev_b32 v24, 16, v42
        v_and_b32 v25, 0xffff0000, v42
        v_lshlrev_b32 v26, 16, v43
        v_and_b32 v27, 0xffff0000, v43
        v_add_f32 v24, v24, v28
        v_add_f32 v25, v25, v29
        v_add_f32 v26, v26, v30
        v_add_f32 v27, v27, v31
        v_cvt_pk_bf16_f32 v24, v24, v25
        v_cvt_pk_bf16_f32 v25, v26, v27
        v_min_u32 v24, -2, v24
        v_min_u32 v25, -2, v25
        s_nop 0
        v_mov_b32_dpp v26, v24 quad_perm:[1,1,3,3] row_mask:0xf bank_mask:0xf
        v_mov_b32_dpp v27, v25 quad_perm:[1,1,3,3] row_mask:0xf bank_mask:0xf
        s_mov_b64 exec, 0x5555
        global_store_dwordx4 v44, v[24:27], s[38:39] sc1""")
        s.stamp(5)
        a('s_endpgm')
        a('L_s_ffn:')
        if s.defer: a('s_barrier')
        if s.defer and not s.noffn:
            a('s_cmp_eq_u32 s66, 0\ns_cbranch_scc0 L_d2B')
            if s.defer & 1:
                if s.DS: a(f's_sleep {s.DS}')
                for k in range(s.NB1, 10):
                    t, p = s.ldA(k, SR); a(t); a(p)
                for kb in range(5):
                    a(f's_waitcnt vmcnt({8-2*kb})'); s.wrA(kb, SR)
            a('s_branch L_d2D\nL_d2B:')
            if s.defer & 2:
                if s.DS: a(f's_sleep {s.DS}')
                for k in range(s.NB1, 14):
                    t, p = s.ldB(k, SR); a(t); a(p)
                for k in range(14):
                    a(f's_waitcnt vmcnt({13-k})'); s.wrB(k, SR)
            a('L_d2D:\ns_waitcnt lgkmcnt(0)')
            s.stamp(13)
        a('s_barrier')
        s.ffn_wregs(streamer=True)
        a('s_branch L_tail')

    def helper(s):
        a = s.a; W0 = 96; s.sv = 92
        wreg = lambda i: f'v[{W0+4*i}:{W0+4*i+3}]'
        a('L_helper:')
        if s.exp & 1: a('s_endpgm')
        s.stamp_reg(84)
        a(f"""s_sub_u32 s9, s3, 4
        v_lshrrev_b32 v2, 4, v1
        v_mul_u32_u24 v2, 40, v2
        s_mul_i32 s7, s9, 160
        v_add_u32 v3, s7, v2
        v_lshlrev_b32 v2, 13, v3
        v_and_b32 v8, 15, v1
        v_lshl_add_u32 v2, v8, 4, v2
        v_lshlrev_b32 v3, 3, v3
        s_mul_i32 s49, s4, 5
        s_lshr_b32 s49, s49, 2
        s_lshl_b32 s49, s49, 4
        v_add_u32 v3, s49, v3
        v_lshlrev_b32 v26, 4, v1
        v_lshlrev_b32 v27, 2, v1
        s_mul_i32 s7, s4, 1280
        s_lshl_b32 s8, s5, 8
        s_mov_b32 s47, 0x20000
        s_sub_u32 s46, 5242880, s8
        s_lshl_b32 s48, s49, 11
        s_waitcnt lgkmcnt(0)
        s_add_u32 s10, s16, s7
        s_addc_u32 s11, s17, 0
        s_add_u32 s44, s22, s8
        s_addc_u32 s45, s23, 0""")
        def clears():
            a(f"""v_mov_b32 v20, -1
            v_mov_b32 v21, -1
            v_mov_b32 v22, -1
            v_mov_b32 v23, -1
            s_mul_i32 s7, s2, 2560
            v_add_u32 v24, s7, v26
            s_lshl_b32 s8, s9, 10
            v_add_u32 v45, s8, v24
            s_mul_i32 s7, s12, 1280
            s_lshl_b32 s8, s67, 7
            s_add_u32 s7, s7, s8
            s_add_u32 s7, s7, {WS_H}
            s_lshl_b32 s8, s67, 8
            s_add_u32 s8, s8, {WS_ACT}
            s_cmp_eq_u32 s66, 0
            s_cselect_b32 s7, s8, s7
            v_add_u32 v25, s7, v27
            s_cmp_lg_u32 s9, {9 if s.exp & 8 else 3}
            s_cbranch_scc1 L_clrd
            {'s_branch L_nopc' if s.nopc else ''}
            global_store_dwordx4 v24, v[20:23], s[38:39] {s.cpol}
            global_store_dwordx4 v24, v[20:23], s[38:39] offset:1024 {s.cpol}
            global_store_dwordx4 v24, v[20:23], s[38:39] offset:1536 {s.cpol}
            L_nopc:
            s_bitcmp1_b32 s66, 0
            s_cbranch_scc1 L_clrd
            s_cmp_eq_u32 s66, 0
            s_cselect_b32 exec_hi, -1, 0
            global_store_dword v25, v20, s[38:39] sc1
            s_mov_b64 exec, -1
            L_clrd:""")
        if s.bflag == 2: a(f's_load_dword s77, s[38:39], {WS_EP}')
        s.roles()
        if s.early: clears()
        a("""global_load_dwordx4 v[12:15], v26, s[10:11]
        global_load_dword v16, v27, s[10:11] offset:1024""")
        def wq_issue(i):
            if s.nowq == 1 or (s.nowq == 2 and i >= 5): return
            a(f'buffer_load_dwordx4 {wreg(i)}, v2, s[44:47], s48 offen {s.wpol}')
            if i < 39:
                a('s_add_u32 s48, s48, 8192')
                if (i & 3) == 3: a(f's_cmp_eq_u32 s48, {40*8192}\ns_cselect_b32 s48, 0, s48')
        N0 = s.N0
        for i in range(N0): wq_issue(i)
        s.masks()
        a(f"""v_mul_u32_u24 v8, 52429, v1
        v_lshrrev_b32 v8, 18, v8
        v_mul_u32_u24 v8, 160, v8
        v_lshl_add_u32 v8, v1, 5, v8
        v_add_u32 v9, 256, v1
        v_mul_u32_u24 v10, 52429, v9
        v_lshrrev_b32 v10, 20, v10
        v_mul_u32_u24 v10, 160, v10
        v_lshl_add_u32 v9, v9, 3, v10
        s_waitcnt vmcnt({(0, 0, 5)[s.nowq] if s.nowq else N0})""")
        s.stamp_reg(86)
        s.layernorm(12, 28, 40, True, 20, False)
        a(f"""ds_write_b128 v8, v[28:31] offset:{XD}
        ds_write_b128 v8, v[32:35] offset:{XD+16}
        ds_write_b64 v9, v[36:37] offset:{XD}
        ds_write_b128 v8, v[28:31] offset:{XD+160}
        ds_write_b128 v8, v[32:35] offset:{XD+176}
        ds_write_b64 v9, v[36:37] offset:{XD+160}
        s_waitcnt lgkmcnt(0)""")
        for i in range(10): a(f'ds_read_b128 v[{48+4*i}:{51+4*i}], v3 offset:{XD+16*i}')
        nis = N0
        for i in range(40):
            for _ in range(s.WB + (i == 0)):
                if nis < 40: wq_issue(nis); nis += 1
            if i == 0: a('s_waitcnt lgkmcnt(0)')
            ar = 28 + 4*(i & 1)
            for m in range(4): a(f'v_and_b32 v{ar+m}, v{48+i}, v{4+m}')
            a(f's_waitcnt vmcnt({nis-1-i})')
            if i == 20: s.stamp_reg(88)
            a('s_nop 0')
            a(f'v_mfma_f32_16x16x32_bf16 v[20:23], v[{ar}:{ar+3}], {wreg(i)}, ' + ('0' if i == 0 else 'v[20:23]'))
        a(f"""v_and_b32 v8, 15, v1
        v_lshlrev_b32 v8, 5, v8
        v_lshrrev_b32 v9, 4, v1
        v_lshl_add_u32 v17, v9, 4, v8
        s_lshl_b32 s7, s9, 9
        v_add_u32 v8, s7, v17
        s_nop 3
        s_mov_b32 exec_hi, 0
        ds_write_b128 v8, v[20:23] offset:{QP}
        s_mov_b64 exec, -1
        s_waitcnt lgkmcnt(0)""")
        if s.bflag == 2: a(f's_add_u32 s77, s77, {TAGC:#x}')
        s.stamp(1)
        for i, r in ((0, 84), (13, 86), (11, 88)): s.stamp(i, r)
        a('s_barrier')
        if s.tlb:
            a("""s_lshl_b32 s6, s2, 20
            s_add_u32 s10, s20, s6
            s_addc_u32 s11, s21, 0
            s_lshl_b32 s7, s9, 18
            v_mov_b32 v8, s7
            s_mov_b64 exec, 1
            global_load_dword v9, v8, s[10:11] nt
            s_mov_b64 exec, -1""")
        if not s.early: clears()
        def count():
            a(f"""s_cmp_lg_u32 s9, {9 if s.exp & 72 else 3}
            s_cbranch_scc1 L_cnta
            s_waitcnt vmcnt(0)""")
            if s.cstag:
                a(f"""s_lshr_b32 s7, s2, 2
                L_cst:
                s_sleep {s.cstag}
                s_sub_u32 s7, s7, 1
                s_cbranch_scc0 L_cst""")
            if s.bflag == 2:
                a(f"""s_lshl_b32 s7, s2, 7
                s_add_u32 s7, s7, {WS_FL}
                v_add_u32 v10, s7, v26
                v_mov_b32 v12, s77
                v_mov_b32 v13, s77
                v_mov_b32 v14, s77
                v_mov_b32 v15, s77
                s_mov_b64 exec, 0xff
                global_store_dwordx4 v10, v[12:15], s[38:39] sc1
                s_mov_b64 exec, -1
                L_cnta:""")
            elif s.bflag:
                a("""s_mov_b64 exec, 1
                v_mov_b32 v10, s2
                v_mov_b32 v11, 1
                global_store_byte v10, v11, s[36:37] sc1
                s_mov_b64 exec, -1
                L_cnta:""")
            else:
                a("""s_mov_b64 exec, 1
                s_and_b32 s7, s2, 3
                s_lshl_b32 s7, s7, 6
                v_mov_b32 v10, s7
                v_mov_b32 v11, 1
                global_atomic_add v10, v11, s[36:37] sc1
                s_mov_b64 exec, -1
                L_cnta:""")
        if not s.latecnt: count()
        a("""s_lshl_b32 s7, s9, 6
        v_add_u32 v18, s7, v1""")
        def stagger(expr, unit):
            if not unit: return
            l = s.lab('sg'); e = s.lab('sge')
            a(expr)
            a(f'{l}:\ns_sub_u32 s7, s7, 1\ns_cbranch_scc1 {e}\ns_sleep {unit}\ns_branch {l}\n{e}:')
        def do_ffn():
            stagger('s_and_b32 s7, s67, 3', s.SG1)
            if s.defer != 3 and not s.noffn:
                def split_load(txt, lanes):
                    for q in range(64 // lanes):
                        m = ((1 << lanes) - 1) << (q * lanes)
                        if lanes < 64: a(f's_mov_b32 exec_lo, {m & 0xffffffff:#x}\ns_mov_b32 exec_hi, {m >> 32:#x}')
                        a(txt)
                        a('s_waitcnt vmcnt(0)')
                    a('s_mov_b64 exec, -1')
                a('s_cmp_ge_u32 s66, 2\ns_cbranch_scc1 L_stD')
                s.stage_setup(18)
                a('s_cmp_eq_u32 s66, 0\ns_cbranch_scc0 L_stB')
                for kb in range(0 if s.defer & 1 else 5):
                    for mt in range(2):
                        t, p = s.ldA(mt, 48); split_load(t, min(64, 2*s.FQ)); a(p)
                    s.wrA(0 if kb < 4 else 0, 48)
                    a('s_waitcnt lgkmcnt(0)')
                a('s_branch L_stD\nL_stB:')
                for k in range(0 if s.defer & 2 else 14):
                    t, p = s.ldB(0, 48); split_load(t, min(64, 2*s.FQ)); a(p)
                    a(f'ds_write_b128 v11, v[48:51] offset:{k*4096}\ns_waitcnt lgkmcnt(0)')
                a('L_stD:')
        def do_wo():
            stagger('s_mov_b32 s7, s4', s.SG2)
            a(f"""v_lshrrev_b32 v8, 4, v1
            v_lshlrev_b32 v8, 3, v8
            s_lshl_b32 s7, s9, 5
            v_add_u32 v19, s7, v8
            v_mul_u32_u24 v8, 1280, v19
            v_and_b32 v9, 15, v1
            v_lshl_add_u32 v8, v9, 4, v8
            s_mul_i32 s8, s5, {128*1280}
            s_add_u32 s44, s24, s8
            s_addc_u32 s45, s25, 0
            s_mov_b32 s46, {128*1280}
            s_mov_b32 s48, 3840
            s_mov_b32 s49, 7680""")
            for i in range(8):
                for n in range(5):
                    so = ('0', 's48', 's49')[i // 3]; off = (i % 3)*1280 + n*256
                    if s.nowo: continue
                    a(f's_waitcnt vmcnt({s.HP-1})')
                    a(f'buffer_load_dwordx4 {wreg(i*5+n)}, v8, s[44:47], {so} offen offset:{off} {s.wpol}')
        if s.wofirst: do_wo(); do_ffn()
        else: do_ffn(); do_wo()
        s.stamp(2)
        if s.latecnt: count()
        a(f"""v_lshlrev_b32 v44, 4, v18
        v_lshlrev_b32 v19, 2, v19
        s_mul_i32 s7, s9, 2560
        v_add_u32 v17, s7, v17
        v_mov_b32 v16, 0
        s_waitcnt vmcnt(0)
        s_cmp_lg_u32 s9, {9 if s.exp & 40 else 3}
        s_cbranch_scc1 L_cntd
        s_cmp_eq_u32 s66, 3
        s_cbranch_scc1 L_cntd
        s_mov_b32 s64, {s.spin}
        L_flg:
        s_sleep 32
        ds_read_b32 v8, v16 offset:{FLG}
        s_waitcnt lgkmcnt(0)
        v_readfirstlane_b32 s7, v8
        s_cmp_lg_u32 s7, 0
        s_cbranch_scc1 L_flgd
        s_sub_u32 s64, s64, 1
        s_cbranch_scc0 L_flg
        L_flgd:
        s_mov_b32 s64, {s.spin}
""")
        if s.bflag == 2:
            a(f"""v_lshlrev_b32 v9, 7, v1
            v_add_u32 v9, {WS_FL}, v9
            v_add_u32 v10, 8192, v9
            v_add_u32 v14, 8192, v10
            v_add_u32 v15, 8192, v14
            L_cnt:
            global_load_dword v8, v9, s[38:39] sc1
            global_load_dword v11, v10, s[38:39] sc1
            global_load_dword v12, v14, s[38:39] sc1
            global_load_dword v13, v15, s[38:39] sc1
            s_waitcnt vmcnt(0)
            v_xor_b32 v8, s77, v8
            v_xor_b32 v11, s77, v11
            v_xor_b32 v12, s77, v12
            v_xor_b32 v13, s77, v13
            v_or3_b32 v8, v8, v11, v12
            v_or_b32 v8, v8, v13
            v_cmp_ne_u32 vcc, 0, v8""")
        else:
            a(f"""{'v_lshlrev_b32 v9, 2, v1' if s.bflag else 'v_and_b32 v9, 3, v1'}
            {'' if s.bflag else 'v_lshlrev_b32 v9, 6, v9'}
            L_cnt:
            global_load_dword v8, v9, s[36:37] sc1
            s_waitcnt vmcnt(0)
            {'v_cmp_ne_u32 vcc, 0x01010101, v8' if s.bflag else 'v_cmp_gt_u32 vcc, 64, v8'}""")
        a(f"""
        s_cbranch_vccz L_cntd
        s_sleep 127
        s_sub_u32 s64, s64, 1
        s_cbranch_scc0 L_cnt
        L_cntd:
        s_waitcnt lgkmcnt(0)
        s_barrier""")
        if s.exp & 16: a('s_endpgm')
        s.stamp(3)
        for half in range(2):
            for w in range(4):
                a(f'ds_read_b128 v[{48+8*w+4*half}:{51+8*w+4*half}], v19 offset:{OP+w*512+16*half}')
        def osum(half):
            r = []
            pa = lambda d, y: f'v_pk_add_f32 v[{d}:{d+1}], v[{d}:{d+1}], v[{y}:{y+1}]'
            for e in range(4*half, 4*half+4, 2): r += [pa(48+e, 56+e), pa(64+e, 72+e)]
            r += [pa(48+e, 64+e) for e in range(4*half, 4*half+4, 2)]
            r += [f'v_cvt_pk_bf16_f32 v{48+e}, v{48+e}, v{48+e}' for e in range(4*half, 4*half+4)]
            return r
        amk = lambda i: [f'v_and_b32 v{28+4*(i&1)+m}, v{48+i}, v{4+m}' for m in range(4)]
        a('s_waitcnt lgkmcnt(4)')
        for x in osum(0) + amk(0): a(x)
        a('s_waitcnt lgkmcnt(0)\ns_nop 0')
        extra = osum(1)
        for i in range(8):
            ar = 28 + 4*(i & 1)
            fill = (amk(i+1) if i < 7 else [])
            if i < 2: fill = fill + extra[5*i:5*i+5]
            per = -(-len(fill) // 4)
            for n in range(5):
                acc = (8, 12, 20, 36, 40)[n]
                a(f'v_mfma_f32_16x16x32_bf16 v[{acc}:{acc+3}], v[{ar}:{ar+3}], {wreg(i*5+n)}, ' + ('0' if i == 0 else f'v[{acc}:{acc+3}]'))
                if n < 4:
                    for x in fill[per*n:per*n+per]: a(x)
            a('s_nop 0')
        a('s_mov_b32 exec_hi, 0\ns_nop 3')
        for n in range(5):
            acc = (8, 12, 20, 36, 40)[n]
            a(f'ds_write_b128 v17, v[{acc}:{acc+3}] offset:{WOP+n*512}')
        a("""s_mov_b64 exec, -1
        s_waitcnt lgkmcnt(0)
        s_barrier
        s_cmp_eq_u32 s9, 3
        s_cbranch_scc1 L_pubd""")
        for w in range(4): a(f'ds_read_b128 v[{48+4*w}:{51+4*w}], v44 offset:{WOP+w*2560}')
        a('s_cmp_eq_u32 s9, 2\ns_cselect_b32 exec_hi, 0, -1')
        a('s_waitcnt lgkmcnt(0)')
        for e in (0, 2):
            a(f'v_pk_add_f32 v[{48+e}:{48+e+1}], v[{48+e}:{48+e+1}], v[{52+e}:{52+e+1}]')
            a(f'v_pk_add_f32 v[{56+e}:{56+e+1}], v[{56+e}:{56+e+1}], v[{60+e}:{60+e+1}]')
        for e in (0, 2): a(f'v_pk_add_f32 v[{48+e}:{48+e+1}], v[{48+e}:{48+e+1}], v[{56+e}:{56+e+1}]')
        for e in range(4): a(f'v_min_u32 v{48+e}, -2, v{48+e}')
        a("""global_store_dwordx4 v45, v[48:51], s[38:39] sc1
        s_mov_b64 exec, -1""")
        s.stamp(4)
        a("""L_pubd:
        s_cmp_ge_u32 s66, 2
        s_cbranch_scc1 L_end""")
        if s.defer: a('s_barrier')
        a('s_barrier')
        s.ffn_wregs(streamer=False)

    def tail(s):
        a = s.a; s.sv = 62
        a(f"""L_tail:
        s_cmp_eq_u32 s66, 0
        s_cbranch_scc0 L_tailB
        s_mul_i32 s7, s3, 1280
        s_add_u32 s7, s7, {WS_H}
        v_lshl_add_u32 v8, v1, 4, s7
        v_lshl_add_u32 v9, v1, 2, s7
        s_mul_i32 s7, s3, {XN2S}
        v_lshl_add_u32 v48, v1, 4, s7
        v_lshl_add_u32 v49, v1, 2, s7
        v_and_b32 v10, 7, v1
        v_mul_u32_u24 v11, {XN2S}, v10
        v_lshrrev_b32 v17, 4, v1
        v_lshl_add_u32 v11, v17, 4, v11
        v_lshlrev_b32 v10, 4, v10
        v_lshl_add_u32 v10, v17, 2, v10
        s_lshl_b32 s7, s67, 1
        s_add_u32 s7, s7, s3
        s_lshl_b32 s7, s7, 7
        s_add_u32 s7, s7, {WS_ACT - 256}
        v_add_u32 v10, s7, v10
        s_mov_b32 s55, {f2u(-L2E):#x}""")
        s.poll(['global_load_dwordx4 v[12:15], v8, s[38:39] sc1', 'global_load_dword v16, v9, s[38:39] offset:1024 sc1'],
               [12, 13, 14, 15, 16], 18)
        s.stamp(6)
        s.layernorm(12, 28, 40, False, 20, True)
        s.stamp(10)
        a(f"""ds_write_b128 v48, v[20:23] offset:{XN2}
        ds_write_b32 v49, v24 offset:{XN2+1024}
        s_waitcnt lgkmcnt(0)
        s_barrier
        s_and_b32 s7, s3, 6
        s_cmp_lg_u32 s7, 2
        s_cbranch_scc1 L_end""")
        for m in range(20): a(f'ds_read_b128 v[{144+4*m}:{147+4*m}], v11 offset:{XN2+m*64}')
        for m in range(20):
            a(f's_waitcnt lgkmcnt({min(15, 19-m)})')
            a(f'v_mfma_f32_16x16x32_bf16 v[20:23], v[{64+4*m}:{67+4*m}], v[{144+4*m}:{147+4*m}], ' + ('0' if m == 0 else 'v[20:23]'))
        a("""s_nop 7
        v_cvt_pk_bf16_f32 v20, v20, v21
        v_cvt_pk_bf16_f32 v22, v22, v23
        v_lshlrev_b32 v24, 16, v20
        v_and_b32 v25, 0xffff0000, v20
        v_mul_f32 v26, s55, v24
        v_mul_f32 v27, s55, v25
        v_exp_f32 v26, v26
        v_exp_f32 v27, v27
        v_lshlrev_b32 v28, 16, v22
        v_add_f32 v26, 1.0, v26
        v_add_f32 v27, 1.0, v27
        v_rcp_f32 v26, v26
        v_rcp_f32 v27, v27
        v_and_b32 v29, 0xffff0000, v22
        v_mul_f32 v24, v24, v26
        v_mul_f32 v25, v25, v27
        v_cvt_pk_bf16_f32 v24, v24, v25
        v_lshlrev_b32 v26, 16, v24
        v_and_b32 v27, 0xffff0000, v24
        v_mul_f32 v26, v26, v28
        v_mul_f32 v27, v27, v29
        v_cvt_pk_bf16_f32 v26, v26, v27
        v_min_u32 v24, -2, v26
        v_min_u32 v25, -2, v26
        s_nop 1
        v_permlane16_swap_b32 v24, v25
        v_mov_b32 v26, v24
        v_mov_b32 v27, v25
        s_nop 0
        v_permlane32_swap_b32 v24, v26
        v_permlane32_swap_b32 v25, v27
        s_mov_b64 exec, 0xff
        global_store_dwordx4 v10, v[24:27], s[38:39] sc1""")
        s.stamp(7)
        a('s_endpgm')
        a(f"""L_tailB:
        {f's_load_dword s77, s[38:39], {WS_EP}' if s.bflag == 2 else ''}
        v_and_b32 v10, 7, v1
        v_lshrrev_b32 v17, 4, v1
        v_lshlrev_b32 v8, 4, v10
        v_lshl_add_u32 v8, v17, 7, v8
        s_lshl_b32 s7, s3, 9
        s_add_u32 s7, s7, {WS_ACT}
        v_add_u32 v8, s7, v8
        v_add_u32 v9, 0x2000, v8
        v_add_u32 v11, 0x4000, v8
        s_movk_i32 s8, 0x5000
        s_cmp_lt_u32 s3, 6
        s_cselect_b32 s8, 0x6000, s8
        v_add_u32 v12, s8, v8
        v_mul_u32_u24 v13, 1280, v10
        v_lshl_add_u32 v13, v17, 3, v13
        s_lshl_b32 s7, s67, 5
        v_add_u32 v13, s7, v13
        v_add_u32 v14, {WS_H}, v13
        v_lshlrev_b32 v60, 6, v10
        v_lshl_add_u32 v60, v17, 4, v60
        s_lshl_b32 s7, s3, 9
        v_add_u32 v61, s7, v60
        s_add_u32 s68, s38, 4096
        s_addc_u32 s69, s39, 0
        s_cmp_lg_u32 s3, 3
        s_cbranch_scc1 L_noh""")
        s.poll(['global_load_dwordx2 v[18:19], v14, s[38:39] sc1'], [18, 19], 15)
        a('L_noh:')
        if s.gate: a(f's_barrier\ns_sleep {s.gate}')
        loads = []
        for i in range(7):
            base = (8, 8, 9, 9, 11, 11, 12)[i]
            sb = 's[68:69]' if (i < 6 and (i & 1)) else 's[38:39]'
            loads.append(f'global_load_dwordx4 v[{96+4*i}:{99+4*i}], v{base}, {sb} sc1')
        s.poll(loads, list(range(96, 124)), 15)
        s.stamp(6)
        a('s_waitcnt lgkmcnt(0)')
        for i in range(7):
            a(f'v_mfma_f32_16x16x32_bf16 v[20:23], v[{64+4*i}:{67+4*i}], v[{96+4*i}:{99+4*i}], ' + ('0' if i == 0 else 'v[20:23]'))
        a(f"""s_mov_b32 exec_lo, 0x00ff00ff
        s_mov_b32 exec_hi, 0x00ff00ff
        v_lshlrev_b32 v56, 16, v18
        v_and_b32 v57, 0xffff0000, v18
        v_lshlrev_b32 v58, 16, v19
        v_and_b32 v59, 0xffff0000, v19
        s_nop 1
        ds_write_b128 v61, v[20:23] offset:{BP}
        s_waitcnt lgkmcnt(0)
        s_barrier
        s_cmp_lg_u32 s3, 3
        s_cbranch_scc1 L_end""")
        for w in range(8): a(f'ds_read_b128 v[{24+4*w}:{27+4*w}], v60 offset:{BP+w*512}')
        a('s_waitcnt lgkmcnt(0)')
        for step in (16, 8, 4):
            for r in range(0, step, 2): a(f'v_pk_add_f32 v[{24+r}:{24+r+1}], v[{24+r}:{24+r+1}], v[{24+step+r}:{24+step+r+1}]')
        a("""v_cvt_pk_bf16_f32 v24, v24, v25
        v_cvt_pk_bf16_f32 v26, v26, v27
        v_lshlrev_b32 v28, 16, v24
        v_and_b32 v29, 0xffff0000, v24
        v_lshlrev_b32 v30, 16, v26
        v_and_b32 v31, 0xffff0000, v26
        v_add_f32 v24, v56, v28
        v_add_f32 v25, v57, v29
        v_add_f32 v26, v58, v30
        v_add_f32 v27, v59, v31
        v_cvt_pk_bf16_f32 v24, v24, v25
        v_cvt_pk_bf16_f32 v25, v26, v27
        global_store_dwordx2 v13, v[24:25], s[34:35] """ + s.opol)
        if s.bflag == 2:
            a(f"""s_cmp_lg_u32 s67, 0
            s_cbranch_scc1 L_noep
            s_add_u32 s77, s77, {TAGC:#x}
            s_mov_b64 exec, 1
            v_mov_b32 v28, {WS_EP}
            v_mov_b32 v29, s77
            global_store_dword v28, v29, s[38:39] sc1
            L_noep:""")
        s.stamp(7)
        s.mstamp(7)

    def text(s):
        s.gen()
        body = '\n'.join(s.L)
        k = NAME + '_kernel'
        return f"""{HEADER}; @launch grid=(256,1,1) block=(512,1,1) lds={LDS_BYTES}
.amdgcn_target "amdgcn-amd-amdhsa--gfx950"
.text
.globl {k}
.p2align 8
.type {k},@function
{k}:
{body}
.section .rodata,"a"
.p2align 6
.amdhsa_kernel {k}
  .amdhsa_next_free_vgpr 256
  .amdhsa_next_free_sgpr 102
  .amdhsa_accum_offset 256
  .amdhsa_group_segment_fixed_size 0
  .amdhsa_kernarg_size 96
  .amdhsa_user_sgpr_count 2
  .amdhsa_user_sgpr_kernarg_segment_ptr 1
  .amdhsa_system_sgpr_workgroup_id_x 1
  .amdhsa_float_denorm_mode_32 3
.end_amdhsa_kernel
"""

def parse_kw(args):
    kw = {}
    for x in args:
        k, v = x.split('=')
        try: v = int(v)
        except ValueError: v = v.replace('+', ' ').replace('-', '')
        kw[k] = v
    return kw

if __name__ == '__main__':
    open(sys.argv[1], 'w').write(G(**parse_kw(sys.argv[2:])).text())
```

```python
import sys, struct

NAME = 'sequential_preLN__mha_block_cached__swiglu_ffn__decode'
def f2u(x): return struct.unpack('<I', struct.pack('<f', x))[0]

HEADER = """; Kernarg layout for this problem (96 bytes, ptrs only, base s[0:1]):
;
"""

WS_P   = 0
WS_H   = 256*2560
WS_ACT = WS_H + 10240
WS_FL  = WS_ACT + 27648
WS_EP  = WS_FL + 32768
TAGC = 0x9e3779b9
WS_STAMP = 1 << 20

XD  = 0
QP  = 5120
OP  = 7168
ST  = 9216
FLG = ST + 64
SC0 = 9344
SCW = 64*64
WOP = SC0 + 4*SCW
XN2 = WOP + 10240
XN2S = 1296
BP  = XN2
IMG = XN2 + 8*XN2S
LDS_BYTES = IMG + 57344
L2E = 1.4426950408889634

DEF = dict(D=5, D0=4, DP=6, DE=8, NE=6, NP=48, N0=8, WB=40, HP=1, FQ=16, kvpol='nt', wpol='', fpol='', opol='',
           stamps=0, spin=1 << 19, psleep=0, defer=3, gate=0, NB1=1, DS=0, flat=1, XE=4, mst=0, exp=0, early=1, fuseA=0, PF=1, PFF=0, CH=1, prio=1, bflag=2, tlb=0, RD=0, KP='', VP='', SG1=0, SG2=0, wofirst=0, latecnt=1, cstag=0, cpol='sc1', nopc=0, nowo=0, nowq=0, noffn=0)

class G:
    def __init__(s, **kw):
        for k, v in DEF.items(): setattr(s, k, v)
        for k, v in kw.items():
            assert k in DEF, k
            setattr(s, k, v)
        s.L = []; s.nl = 0; s.sv = 62
    def a(s, t):
        for line in t.strip('\n').split('\n'):
            line = line.strip()
            if line: s.L.append(line if line.endswith(':') else '    ' + line)
    def lab(s, p):
        s.nl += 1; return f'L_{p}_{s.nl}'
    def stamp_reg(s, r):
        if s.stamps: s.a(f's_memrealtime s[{r}:{r+1}]')
    def stamp(s, idx, r=None):
        if not s.stamps: return
        s.a('s_memrealtime s[92:93]' if r is None else 's_nop 0')
        s.a('s_waitcnt lgkmcnt(0)')
        if r is not None: s.a(f's_mov_b32 s92, s{r}')
        s.a(f"""s_mov_b64 s[94:95], exec
        s_mov_b64 exec, 1
        s_lshl_b32 s93, s2, 3
        s_add_u32 s93, s93, s3
        s_lshl_b32 s93, s93, 6
        s_add_u32 s93, s93, {WS_STAMP + idx*4}
        v_mov_b32 v{s.sv}, s93
        v_mov_b32 v{s.sv+1}, s92
        global_store_dword v{s.sv}, v{s.sv+1}, s[38:39]
        s_mov_b64 exec, s[94:95]""")

    def mstamp(s, idx, r=None):
        if not s.mst: return
        keep = s.stamps; s.stamps = 1
        n0 = len(s.L)
        s.stamp(idx, r)
        s.L[n0:] = [l + ' sc1' if 'global_store' in l else l for l in s.L[n0:]]
        s.stamps = keep
    def wave_sum(s, v, sd):
        for c in ('row_ror:8', 'row_ror:4', 'row_ror:2', 'row_ror:1'):
            s.a(f's_nop 1\nv_add_f32_dpp v{v}, v{v}, v{v} {c} row_mask:0xf bank_mask:0xf')
        s.a(f's_nop 1\nv_add_f32_dpp v{v}, v{v}, v{v} row_bcast:15 row_mask:0xa bank_mask:0xf')
        s.a(f's_nop 1\nv_add_f32_dpp v{v}, v{v}, v{v} row_bcast:31 row_mask:0xc bank_mask:0xf')
        s.a(f's_nop 1\nv_readlane_b32 s{sd}, v{v}, 63')

    def layernorm(s, src, f, t, dup, o, fast):
        a = s.a
        for i in range(5):
            a(f'v_lshlrev_b32 v{f+2*i}, 16, v{src+i}\nv_and_b32 v{f+2*i+1}, 0xffff0000, v{src+i}')
        a(f's_mov_b32 s61, {f2u(1.0/640):#x}')
        if fast:
            a(f'v_readfirstlane_b32 s58, v{f}\nv_readfirstlane_b32 s59, v{f}\ns_nop 1')
            d = o
            a(f'v_pk_add_f32 v[{t}:{t+1}], v[{f}:{f+1}], s[58:59] neg_lo:[0,1] neg_hi:[0,1]')
            a(f'v_pk_mul_f32 v[{t+2}:{t+3}], v[{t}:{t+1}], v[{t}:{t+1}]')
            for i in range(1, 5):
                a(f'v_pk_add_f32 v[{d}:{d+1}], v[{f+2*i}:{f+2*i+1}], s[58:59] neg_lo:[0,1] neg_hi:[0,1]')
                a(f'v_pk_add_f32 v[{t}:{t+1}], v[{t}:{t+1}], v[{d}:{d+1}]')
                a(f'v_pk_fma_f32 v[{t+2}:{t+3}], v[{d}:{d+1}], v[{d}:{d+1}], v[{t+2}:{t+3}]')
            a(f'v_add_f32 v{t}, v{t}, v{t+1}\nv_add_f32 v{t+2}, v{t+2}, v{t+3}')
            for c in ('row_ror:8 row_mask:0xf', 'row_ror:4 row_mask:0xf', 'row_ror:2 row_mask:0xf', 'row_ror:1 row_mask:0xf',
                      'row_bcast:15 row_mask:0xa', 'row_bcast:31 row_mask:0xc'):
                a(f's_nop 0\nv_add_f32_dpp v{t}, v{t}, v{t} {c} bank_mask:0xf\nv_add_f32_dpp v{t+2}, v{t+2}, v{t+2} {c} bank_mask:0xf')
            a(f'v_readlane_b32 s60, v{t}, 63\nv_readlane_b32 s58, v{t+2}, 63\ns_nop 0')
            a(f'v_mov_b32 v{t}, s60\nv_mov_b32 v{t+2}, s58\nv_mul_f32 v{t}, s61, v{t}\nv_mul_f32 v{t+2}, s61, v{t+2}')
            a(f'v_fma_f32 v{t+2}, -v{t}, v{t}, v{t+2}\nv_add_f32 v{t}, s59, v{t}\nv_max_f32 v{t+2}, 0, v{t+2}')
            a(f'v_cvt_pk_bf16_f32 v{t}, v{t}, v{t+2}\nv_and_b32 v{t+2}, 0xffff0000, v{t}\nv_lshlrev_b32 v{t}, 16, v{t}')
        else:
            a(f'v_add_f32 v{t}, v{f}, v{f+1}')
            for i in range(2, 10): a(f'v_add_f32 v{t}, v{t}, v{f+i}')
            s.wave_sum(t, 60)
            a(f's_nop 1\nv_mov_b32 v{t}, s60\nv_mul_f32 v{t}, s61, v{t}')
            a(f'v_sub_f32 v{t+1}, v{f}, v{t}\nv_mul_f32 v{t+2}, v{t+1}, v{t+1}')
            for i in range(1, 10):
                a(f'v_sub_f32 v{t+1}, v{f+i}, v{t}\nv_fmac_f32 v{t+2}, v{t+1}, v{t+1}')
            s.wave_sum(t+2, 60)
            a(f'v_cvt_pk_bf16_f32 v{t}, v{t}, v{t}\nv_lshlrev_b32 v{t}, 16, v{t}')
            a(f'v_mov_b32 v{t+2}, s60\nv_mul_f32 v{t+2}, s61, v{t+2}')
            a(f'v_cvt_pk_bf16_f32 v{t+2}, v{t+2}, v{t+2}\nv_lshlrev_b32 v{t+2}, 16, v{t+2}')
        a(f'v_add_f32 v{t+2}, {f2u(1e-5):#x}, v{t+2}')
        a(f'v_cvt_pk_bf16_f32 v{t+2}, v{t+2}, v{t+2}\nv_lshlrev_b32 v{t+2}, 16, v{t+2}')
        a(f'v_sqrt_f32 v{t+2}, v{t+2}')
        if fast:
            for i in range(5): a(f'v_pk_add_f32 v[{f+2*i}:{f+2*i+1}], v[{f+2*i}:{f+2*i+1}], v[{t}:{t+1}] op_sel_hi:[1,0] neg_lo:[0,1] neg_hi:[0,1]')
        else:
            for i in range(10): a(f'v_sub_f32 v{f+i}, v{f+i}, v{t}')
        a(f'v_cvt_pk_bf16_f32 v{t+2}, v{t+2}, v{t+2}\nv_lshlrev_b32 v{t+2}, 16, v{t+2}')
        a(f'v_rcp_f32 v{t+3}, v{t+2}')
        for i in range(5): a(f'v_cvt_pk_bf16_f32 v{o+i}, v{f+2*i}, v{f+2*i+1}')
        for i in range(5):
            a(f'v_lshlrev_b32 v{f+2*i}, 16, v{o+i}\nv_and_b32 v{f+2*i+1}, 0xffff0000, v{o+i}')
        for i in range(10):
            if fast:
                if i & 1: a(f'v_pk_mul_f32 v[{f+i-1}:{f+i}], v[{f+i-1}:{f+i}], v[{t+2}:{t+3}] op_sel:[0,1] op_sel_hi:[1,1]')
            else: a(f'v_mul_f32 v{t}, v{f+i}, v{t+3}\nv_fma_f32 v{t+1}, -v{t}, v{t+2}, v{f+i}\nv_fma_f32 v{f+i}, v{t+1}, v{t+3}, v{t}')
        if dup:
            for i in range(10): a(f'v_cvt_pk_bf16_f32 v{f+i}, v{f+i}, v{f+i}')
        else:
            for i in range(5): a(f'v_cvt_pk_bf16_f32 v{o+i}, v{f+2*i}, v{f+2*i+1}')

    def poll(s, loads, regs, t, entry=None):
        a = s.a
        lp = s.lab('poll'); ld = s.lab('polld')
        a(f's_mov_b64 s[62:63], exec\ns_mov_b32 s64, {s.spin}')
        a(f'{lp}:')
        for l in loads: a(l)
        if entry: a(f'{entry}:')
        a('s_waitcnt vmcnt(0)')
        r = list(regs)
        if len(r) == 2: a(f'v_max_u32 v{t}, v{r[0]}, v{r[1]}'); r = []
        else:
            a(f'v_max3_u32 v{t}, v{r[0]}, v{r[1]}, v{r[2]}'); r = r[3:]
        while len(r) >= 2:
            a(f'v_max3_u32 v{t}, v{t}, v{r[0]}, v{r[1]}'); r = r[2:]
        if r: a(f'v_max_u32 v{t}, v{t}, v{r[0]}')
        a(f'v_cmpx_eq_u32 vcc, -1, v{t}')
        a(f's_cbranch_execz {ld}')
        if s.psleep: a(f's_sleep {s.psleep}')
        a(f's_sub_u32 s64, s64, 1\ns_cbranch_scc0 {lp}')
        a(f'{ld}:')
        a('s_mov_b64 exec, s[62:63]\ns_nop 2')

    def roles(s):
        s.a("""s_and_b32 s12, s2, 7
        s_lshr_b32 s13, s2, 3
        s_min_u32 s14, s12, 3
        s_lshl_b32 s14, s14, 2
        s_mul_i32 s67, s12, 12
        s_add_u32 s67, s67, s14
        s_add_u32 s67, s67, s13
        s_cmp_lt_u32 s12, 3
        s_cselect_b32 s14, 16, 12
        s_mov_b32 s66, 0
        s_sub_u32 s13, s13, s14
        s_cbranch_scc1 L_role%d
        s_sub_u32 s14, s12, 3
        s_max_i32 s14, s14, 0
        s_min_i32 s14, s14, 2
        s_add_u32 s14, s14, s12
        s_lshl_b32 s14, s14, 2
        s_add_u32 s67, s14, s13
        s_sub_u32 s14, s12, 3
        s_cmp_lt_u32 s14, 2
        s_cselect_b32 s14, 8, 4
        s_mov_b32 s66, 1
        s_sub_u32 s13, s13, s14
        s_cbranch_scc1 L_role%d
        s_mov_b32 s67, s13
        s_mov_b32 s66, 2
        s_cmp_lt_u32 s13, 10
        s_cbranch_scc1 L_role%d
        s_mov_b32 s66, 3
        s_mov_b32 s67, 0
        L_role%d:""" % ((s.nl,)*4))
        s.nl += 1

    def masks(s):
        s.a("""v_and_b32 v8, 15, v1
        v_and_b32 v9, 1, v1
        v_lshlrev_b32 v9, 4, v9
        v_mov_b32 v10, 0xffff
        v_lshlrev_b32 v10, v9, v10
        v_lshrrev_b32 v11, 1, v8""")
        for m in range(4):
            s.a(f'v_cmp_eq_u32 vcc, {m}, v11\ns_nop 1\nv_cndmask_b32 v{4+m}, 0, v10, vcc')

    def gen(s):
        a = s.a
        s.stamp_reg(80)
        if s.mst: a('s_memrealtime s[80:81]')
        a("""s_cmp_ge_u32 s2, 256
        s_cbranch_scc1 L_end
        s_load_dwordx16 s[16:31], s[0:1], 0
        s_load_dwordx8 s[32:39], s[0:1], 64
        v_lshrrev_b32 v2, 6, v0
        v_and_b32 v1, 63, v0
        v_readfirstlane_b32 s3, v2
        s_lshr_b32 s4, s2, 5
        s_and_b32 s5, s2, 31
        s_cmp_ge_u32 s3, 4
        s_cbranch_scc1 L_helper""")
        s.streamer()
        s.helper()
        s.tail()
        a('L_end:\ns_endpgm')

    def stage_setup(s, T):
        a = s.a
        lb = s.lab('sgB'); ld = s.lab('sgD')
        a(f"""v_lshrrev_b32 v8, 1, v{T}
        v_and_b32 v9, 1, v{T}
        s_lshl_b32 s8, s67, 5
        s_mov_b32 s71, 0x20000
        s_mov_b32 s75, 0x20000
        s_sub_u32 s70, 2211840, s8
        s_mov_b32 s74, s70
        s_mov_b32 s76, 0
        s_cmp_eq_u32 s66, 0
        s_cbranch_scc0 {lb}
        s_add_u32 s68, s28, s8
        s_addc_u32 s69, s29, 0
        s_add_u32 s72, s30, s8
        s_addc_u32 s73, s31, 0
        s_mov_b32 s7, 3456
        v_mul_lo_u32 v10, v8, s7
        v_lshl_add_u32 v10, v9, 4, v10
        v_lshlrev_b32 v11, 5, v{T}
        s_branch {ld}
        {lb}:
        s_add_u32 s68, s32, s8
        s_addc_u32 s69, s33, 0
        s_mov_b32 s72, s68
        s_mov_b32 s73, s69
        v_mul_u32_u24 v10, 1280, v8
        v_lshl_add_u32 v10, v9, 4, v10
        v_lshlrev_b32 v11, 4, v{T}
        {ld}:
        v_add_u32 v11, {IMG}, v11""")
    def ldA(s, k, R):
        srd = 's[68:71]' if (k & 1) == 0 else 's[72:75]'
        t = f'buffer_load_dwordx4 v[{R+4*k}:{R+4*k+3}], v10, {srd}, s76 offen {s.fpol}'
        post = f's_add_u32 s76, s76, {128*3456}' if k & 1 else ''
        return t, post
    def ldB(s, k, R):
        return f'buffer_load_dwordx4 v[{R+4*k}:{R+4*k+3}], v10, s[68:71], s76 offen {s.fpol}', f's_add_u32 s76, s76, {128*1280}'
    def wrA(s, kb, R):
        for q in range(4):
            s.a(f'ds_write2_b32 v11, v{R+8*kb+q}, v{R+8*kb+4+q} offset0:{2*q} offset1:{2*q+1}')
        if kb < 4: s.a('v_add_u32 v11, 8192, v11')
    def wrB(s, k, R):
        s.a(f'ds_write_b128 v11, v[{R+4*k}:{R+4*k+3}] offset:{k*4096}')

    def ffn_wregs(s, streamer):
        a = s.a
        la = s.lab('wa'); ld = s.lab('wd')
        a(f"""v_lshrrev_b32 v46, 4, v1
        v_lshlrev_b32 v46, 3, v46
        v_bfe_u32 v47, v1, 2, 2
        v_add_u32 v46, v46, v47
        v_and_b32 v47, 3, v1
        v_lshlrev_b32 v47, 3, v47
        v_add_u32 v47, {IMG}, v47
        s_cmp_eq_u32 s66, 0
        s_cbranch_scc1 {la}
        v_lshl_add_u32 v46, v46, 5, v47
        s_lshl_b32 s7, s3, 10
        v_add_u32 v46, s7, v46""")
        for i in range(7):
            a(f'ds_read_b64_tr_b16 v[{64+4*i}:{65+4*i}], v46 offset:{i*8192}')
            a(f'ds_read_b64_tr_b16 v[{66+4*i}:{67+4*i}], v46 offset:{i*8192+128}')
        a(f's_branch {ld}\n{la}:')
        if streamer:
            a(f"""s_cmp_lt_u32 s3, 2
            s_cbranch_scc1 {ld}
            v_lshl_add_u32 v46, v46, 6, v47
            s_sub_u32 s7, s3, 2
            s_lshl_b32 s7, s7, 5
            v_add_u32 v46, s7, v46""")
            for m in range(20):
                a(f'ds_read_b64_tr_b16 v[{64+4*m}:{65+4*m}], v46 offset:{m*2048}')
                a(f'ds_read_b64_tr_b16 v[{66+4*m}:{67+4*m}], v46 offset:{m*2048+256}')
        a(f'{ld}:')

    def streamer(s):
        a = s.a; D = s.D; R0 = 64; NP = s.NP; R = 16; s.sv = 62
        assert NP % 16 == 0
        slot = lambda p: f'v[{R0+4*p}:{R0+4*p+3}]'
        CH = s.CH; CSH = 12 + {1: 0, 2: 1, 4: 2}[CH]
        def issue(p, t):
            a(f'buffer_load_dwordx4 {slot(p)}, v2, s[40:43], s44 offen offset:{t*1024} {s.kvpol}')
            if t == 3: a(f's_add_u32 s44, s44, {4096 if ((p >> 2) + 1) % CH else 16384*CH - 4096*(CH-1)}')
        a("""v_bfe_u32 v2, v1, 2, 2
        v_lshlrev_b32 v2, 8, v2
        v_lshrrev_b32 v3, 4, v1
        v_lshl_add_u32 v2, v3, 6, v2
        v_and_b32 v3, 3, v1
        v_lshl_add_u32 v2, v3, 4, v2
        s_lshl_b32 s6, s2, 20
        s_lshl_b32 s44, s3, %d
        s_mov_b32 s42, 0x100000
        s_mov_b32 s43, 0x20000
        s_waitcnt lgkmcnt(0)
        s_add_u32 s40, s18, s6
        s_addc_u32 s41, s19, 0""" % CSH)
        s.stamp_reg(82)
        for i in range(s.D0): issue(i, i & 3)
        s.stamp(0); s.stamp(11, 80); s.stamp(12, 82)
        a("""s_add_u32 s48, s20, s6
        s_addc_u32 s49, s21, 0
        v_lshlrev_b32 v3, 4, v1""")
        if s.PF:
            a(f"""s_lshl_b32 s7, s5, 3
            s_add_u32 s7, s7, s4
            s_mul_i32 s7, s7, 20480
            s_mul_i32 s8, s3, 5120
            s_add_u32 s7, s7, s8
            s_add_u32 s10, s24, s7
            s_addc_u32 s11, s25, 0
            global_load_dwordx4 v[56:59], v3, s[10:11]
            global_load_dwordx4 v[56:59], v3, s[10:11] offset:1024
            global_load_dwordx4 v[56:59], v3, s[10:11] offset:2048
            global_load_dwordx4 v[56:59], v3, s[10:11] offset:3072
            v_add_u32 v8, 4096, v3
            global_load_dwordx4 v[56:59], v8, s[10:11]""")
        s.roles()
        if s.PFF:
            a(f"""s_lshr_b32 s13, s2, 3
            s_min_u32 s14, s12, 3
            s_lshl_b32 s14, s14, 2
            s_mul_i32 s7, s12, 12
            s_add_u32 s7, s7, s14
            s_lshl_b32 s7, s7, 5
            s_mul_i32 s8, s13, 20
            s_lshr_b32 s14, s3, 1
            s_mul_i32 s14, s14, 10
            s_add_u32 s8, s8, s14
            s_mul_i32 s8, s8, 3456
            s_add_u32 s7, s7, s8
            v_lshrrev_b32 v8, 2, v1
            v_mul_u32_u24 v8, 3456, v8
            v_and_b32 v9, 3, v1
            v_lshl_add_u32 v8, v9, 7, v8
            v_add_u32 v8, s7, v8
            s_bitcmp1_b32 s3, 0
            s_cselect_b32 s68, s30, s28
            s_cselect_b32 s69, s31, s29
            s_mov_b32 s70, 2211840
            s_mov_b32 s71, 0x20000
            s_cmp_lt_u32 s12, 3
            s_cselect_b32 exec_lo, -1, 0x77777777
            s_movk_i32 s15, 0x77
            s_cselect_b32 exec_hi, 0xff, s15
            buffer_load_dword v56, v8, s[68:71], 0 offen
            s_mov_b64 exec, -1
            s_sub_u32 s14, s12, 3
            s_max_i32 s7, s14, 0
            s_min_i32 s7, s7, 2
            s_add_u32 s7, s7, s12
            s_lshl_b32 s7, s7, 7
            s_mul_i32 s8, s13, 54
            s_mul_i32 s15, s3, 14
            s_add_u32 s8, s8, s15
            s_mul_i32 s8, s8, 1280
            s_add_u32 s7, s7, s8
            v_lshrrev_b32 v8, 1, v1
            v_mul_u32_u24 v8, 1280, v8
            v_and_b32 v9, 1, v1
            v_lshl_add_u32 v8, v9, 7, v8
            v_add_u32 v8, s7, v8
            s_mov_b32 s68, s32
            s_mov_b32 s69, s33
            s_cmp_lt_u32 s14, 2
            s_mov_b32 s15, 0x05555555
            s_cselect_b32 exec_lo, 0x0fffffff, s15
            s_mov_b32 exec_hi, 0
            buffer_load_dword v56, v8, s[68:71], 0 offen
            s_mov_b64 exec, -1""")
        a("""v_and_b32 v8, 15, v1
        v_lshlrev_b32 v8, 3, v8
        s_min_u32 s8, s67, 9
        s_lshl_b32 s8, s8, 7
        s_mul_i32 s7, s12, 1280
        s_add_u32 s7, s7, s8
        v_add_u32 v44, s7, v8
        global_load_dwordx2 v[42:43], v44, s[16:17]""")
        s.masks()
        a(f"""s_mov_b32 s50, 0xaaaaaaaa
        s_mov_b32 s51, 0xaaaaaaaa
        s_mov_b32 s52, 0xcccccccc
        s_mov_b32 s53, 0xcccccccc
        s_mov_b32 s54, {f2u(128**-0.5):#x}
        s_mov_b32 s55, {f2u(L2E):#x}
        v_mov_b32 v34, 0xff7fffff
        v_mov_b32 v36, 0
        s_mul_i32 s7, s3, {SCW}
        s_add_u32 s7, s7, {SC0}
        v_and_b32 v35, 60, v1
        v_add_u32 v35, s7, v35
        v_lshrrev_b32 v8, 4, v1
        v_lshlrev_b32 v8, 2, v8
        v_and_b32 v9, 3, v1
        v_add_u32 v8, v8, v9
        v_lshlrev_b32 v45, 5, v8
        s_lshl_b32 s7, s3, 4
        v_mov_b32 v61, s7
        ds_write_b32 v61, v36 offset:{ST+8}
        ds_write_b32 v36, v36 offset:{FLG}
        v_and_b32 v8, 15, v1
        v_lshlrev_b32 v8, 5, v8
        v_lshrrev_b32 v9, 4, v1
        v_lshl_add_u32 v8, v9, 4, v8
        s_lshl_b32 s7, s3, 9
        v_add_u32 v60, s7, v8
        s_waitcnt lgkmcnt(0)""")
        for i in range(s.D0, NP):
            a(f's_waitcnt vmcnt({s.DP-1})')
            issue(i, i & 3)
        s.stamp(4)
        a('s_barrier')
        s.stamp(1)
        a(f"""ds_read_b128 v[46:49], v45 offset:{QP}
        ds_read_b128 v[50:53], v45 offset:{QP+16}
        ds_read_b128 v[54:57], v45 offset:{QP+512}
        ds_read_b128 v[16:19], v45 offset:{QP+512+16}
        ds_read_b128 v[24:27], v45 offset:{QP+1024}
        ds_read_b128 v[28:31], v45 offset:{QP+1024+16}
        ds_read_b128 v[8:11], v45 offset:{QP+1536}
        ds_read_b128 v[12:15], v45 offset:{QP+1536+16}
        s_waitcnt lgkmcnt(0)""")
        for e in range(8):
            b1 = 54+e if e < 4 else 12+e
            a(f'v_add_f32 v{46+e}, v{46+e}, v{b1}\nv_add_f32 v{24+e}, v{24+e}, v{8+e}')
        for e in range(8): a(f'v_add_f32 v{46+e}, v{46+e}, v{24+e}')
        for m in range(4): a(f'v_cvt_pk_bf16_f32 v{54+m}, v{46+2*m}, v{47+2*m}')
        for t in range(4):
            mk = 0x000f000f << (4*t)
            a(f's_mov_b32 s56, {mk:#x}\ns_mov_b32 s57, {mk:#x}')
            for m in range(4): a(f'v_cndmask_b32 v{8+4*t+m}, 0, v{54+m}, s[56:57]')
        a('s_nop 1')
        Dreg = lambda g: 24 + 4*(g & 1)
        def post1(g):
            if s.exp & 2: return
            d = Dreg(g)
            a(f"""s_nop 1
            v_cndmask_b32 v32, v{d}, v{d+1}, s[50:51]
            v_cndmask_b32 v33, v{d+2}, v{d+3}, s[50:51]
            v_cndmask_b32 v32, v32, v33, s[52:53]
            s_nop 1
            v_add_f32_dpp v32, v32, v32 quad_perm:[1,0,3,2] row_mask:0xf bank_mask:0xf
            s_nop 1
            v_add_f32_dpp v32, v32, v32 quad_perm:[2,3,0,1] row_mask:0xf bank_mask:0xf""")
        def post2a(off):
            if s.exp & 2: return
            a(f"""v_cvt_pk_bf16_f32 v32, v32, v32
            v_lshlrev_b32 v32, 16, v32
            v_mul_f32 v32, s54, v32
            v_cvt_pk_bf16_f32 v32, v32, v32
            v_lshlrev_b32 v32, 16, v32
            v_max_f32 v33, v34, v32
            ds_write_b32 v35, v32 offset:{off}""")
        def post2b():
            if s.exp & 2: return
            a("""v_sub_f32 v40, v34, v33
            v_sub_f32 v46, v32, v33
            v_mul_f32 v40, s55, v40
            v_mul_f32 v46, s55, v46
            v_exp_f32 v40, v40
            v_exp_f32 v46, v46
            v_mov_b32 v34, v33
            v_fma_f32 v36, v36, v40, v46""")
        def post2(off):
            post2a(off); post2b()
        def kcons(p, gi, t):
            d = Dreg(gi)
            c = '0' if t == 0 else f'v[{d}:{d+3}]'
            if not s.exp & 4: a(f'v_mfma_f32_16x16x32_bf16 v[{d}:{d+3}], {slot(p)}, v[{8+4*t}:{11+4*t}], {c}')
        nis = 0
        per = max(1, (NP - 1) // 15)
        for i in range(NP):
            gi, t = i >> 2, i & 3
            need = (NP + nis - 1) - i
            if i >= NP - s.DP: a(f's_waitcnt vmcnt({min(need, 63)})')
            kcons(i, gi, t)
            if gi > 0 and t == 2: a('s_nop 3'); post1(gi - 1)
            if gi > 0 and t == 3: post2((gi - 1) * 64)
            if nis < 15 and i >= nis and (i + 1) % per == 0:
                a(f's_waitcnt vmcnt({D-1})')
                issue(nis, nis & 3); nis += 1
        assert nis == 15, nis
        a(f'v_add_u32 v35, {(NP//4-1)*64}, v35')
        nk = (256 - NP) // R
        a('s_mov_b32 s45, 0')
        if s.RD: a('s_cmp_lt_u32 s66, 2\ns_cselect_b64 vcc, -1, 0')
        a('L_kloop:')
        KP = [int(c) for c in str(s.KP)] or [D]
        VP = [int(c) for c in str(s.VP)] or [D]
        for st in range(R):
            gi, t = st >> 2, st & 3
            if s.RD and st % s.RD == 0:
                l = s.lab('rd'); a(f's_cbranch_vccnz {l}\ns_waitcnt vmcnt({D-1})\n{l}:\ns_waitcnt vmcnt({D})')
            else: a(f's_waitcnt vmcnt({KP[st % len(KP)]-1})')
            issue((st - 1) % R, (st - 1) & 3)
            if st == 0:
                a(f"""s_cmp_lg_u32 s45, {nk-1}
                s_cbranch_scc1 L_nosw
                s_mov_b32 s40, s48
                s_mov_b32 s41, s49
                s_lshl_b32 s44, s3, {CSH}
                v_mov_b32 v2, v3
                L_nosw:""")
            kcons(st, gi, t)
            if s.flat:
                if t == 1: post1(gi - 1)
                if t == 2: post2a(gi * 64)
                if t == 3: post2b()
            else:
                if t == 2: post1(gi - 1)
                if t == 3: post2(gi * 64)
        a(f"""v_add_u32 v35, {R*16}, v35
        s_add_u32 s45, s45, 1
        s_cmp_lt_u32 s45, {nk}
        s_cbranch_scc1 L_kloop""")
        XE = s.XE; RV = 32 if XE else 16; LAG = 15 + XE
        xi = [0]
        def xissue():
            if xi[0] < XE:
                j = 15 + xi[0]; xi[0] += 1
                a(f's_waitcnt vmcnt({D-1})'); issue(j, j & 3)
        xissue()
        post1(1); post2(0)
        xissue()
        a(f"""s_nop 0
        v_max_f32_dpp v33, v34, v34 row_ror:4 row_mask:0xf bank_mask:0xf
        v_subrev_u32 v35, {63*64}, v35
        v_mov_b32 v28, 0
        v_max_f32_dpp v33, v33, v33 row_ror:8 row_mask:0xf bank_mask:0xf
        v_mov_b32 v29, 0
        v_readlane_b32 s56, v33, 0
        v_readlane_b32 s57, v33, 16
        v_readlane_b32 s58, v33, 32
        v_readlane_b32 s59, v33, 48
        v_mov_b32 v30, 0
        v_mov_b32 v48, s56
        v_max_f32 v48, s57, v48
        v_max_f32 v48, s58, v48
        v_max_f32 v48, s59, v48
        v_sub_f32 v40, v34, v48
        v_mul_f32 v40, s55, v40
        v_exp_f32 v40, v40
        v_mov_b32 v31, 0
        v_mul_f32 v36, v36, v40
        v_mov_b32 v50, 1
        v_mov_b32 v51, 1
        v_add_f32_dpp v36, v36, v36 row_ror:4 row_mask:0xf bank_mask:0xf
        s_nop 1
        v_add_f32_dpp v36, v36, v36 row_ror:8 row_mask:0xf bank_mask:0xf
        s_nop 0
        v_readlane_b32 s56, v36, 0
        v_readlane_b32 s57, v36, 16
        v_readlane_b32 s58, v36, 32
        v_readlane_b32 s59, v36, 48
        v_mov_b32 v33, 0
        v_mov_b32 v49, s56
        v_add_f32 v49, s57, v49
        v_add_f32 v49, s58, v49
        v_add_f32 v49, s59, v49
        ds_write_b128 v61, v[48:51] offset:{ST}""")
        xissue()
        a(f"""s_mov_b32 s64, {s.spin}
        L_stw:
        ds_read_b128 v[8:11], v33 offset:{ST}
        ds_read_b128 v[12:15], v33 offset:{ST+16}
        ds_read_b128 v[16:19], v33 offset:{ST+32}
        ds_read_b128 v[20:23], v33 offset:{ST+48}
        ds_read_b32 v39, v35
        s_waitcnt lgkmcnt(0)
        v_and_b32 v40, v10, v14
        v_and_b32 v46, v18, v22
        v_and_b32 v40, v40, v46
        s_nop 0
        v_readfirstlane_b32 s7, v40
        s_cmp_lg_u32 s7, 0
        s_cbranch_scc1 L_stwd
        s_sub_u32 s64, s64, 1
        s_cbranch_scc0 L_stw
        L_stwd:""")
        while xi[0] < XE: xissue()
        a(f"""v_max_f32 v41, v8, v12
        v_max3_f32 v41, v41, v16, v20
        v_sub_f32 v8, v8, v41
        v_sub_f32 v12, v12, v41
        v_sub_f32 v16, v16, v41
        v_sub_f32 v20, v20, v41
        v_mul_f32 v8, s55, v8
        v_mul_f32 v12, s55, v12
        v_mul_f32 v16, s55, v16
        v_mul_f32 v20, s55, v20
        v_exp_f32 v8, v8
        v_exp_f32 v12, v12
        v_exp_f32 v16, v16
        v_exp_f32 v20, v20
        v_mul_f32 v40, v8, v9
        v_fmac_f32 v40, v12, v13
        v_fmac_f32 v40, v16, v17
        v_fmac_f32 v40, v20, v21
        v_rcp_f32 v47, v40
        s_nop 0
        v_fma_f32 v46, -v40, v47, 1.0
        v_fmac_f32 v47, v46, v47""")
        s.stamp(2)
        def prep(g):
            if s.exp & 2: return
            a(f"""s_waitcnt lgkmcnt(0)
            v_sub_f32 v39, v39, v41
            v_mul_f32 v39, s55, v39
            v_exp_f32 v39, v39
            s_nop 0
            v_mul_f32 v39, v39, v47
            v_cvt_pk_bf16_f32 v{37+(g&1)}, v39, v39""")
        prep(0)
        a('s_nop 0')
        def vstep(st, Dv, left=None):
            gi, t = st >> 2, st & 3
            late = left is not None and left <= LAG and left - 1 < Dv
            if left is None or left > LAG:
                a(f's_waitcnt vmcnt({Dv-1})')
                issue((st + LAG) % RV, (st + LAG) & 3)
            fin = left is not None and left <= 4
            if t == 0 and not fin: a(f'ds_read_b32 v39, v35 offset:{(gi+1)*64}')
            for m in range(4):
                a(f'v_and_b32_dpp v{24+m}, v{37+(gi&1)}, v{4+m} row_newbcast:{4*t} row_mask:0xf bank_mask:0xf')
            a(f's_nop 0\ns_waitcnt vmcnt({left-1})' if late else 's_nop 1')
            if not s.exp & 4: a(f'v_mfma_f32_16x16x32_bf16 v[28:31], v[24:27], {slot(st)}, v[28:31]')
            if t == 2 and not fin: prep(gi + 1)
        def vloop(name, n, Dv):
            if n == 0: return
            a(f's_mov_b32 s45, 0\n{name}:')
            for st in range(RV): vstep(st, Dv[st % len(Dv)])
            a(f"""v_add_u32 v35, {RV*16}, v35
            s_add_u32 s45, s45, 1
            s_cmp_lt_u32 s45, {n}
            s_cbranch_scc1 {name}""")
        ne = s.NE * 16 // RV
        vloop('L_vloop', 256//RV - 1 - ne, VP)
        a(f'v_mov_b32 v33, 0\nds_write_b32 v33, v50 offset:{FLG}')
        vloop('L_vloop2', ne, [s.DE])
        a(f"""s_mul_i32 s7, s12, {32*2560}
        s_lshl_b32 s8, s67, 8
        s_add_u32 s7, s7, s8
        v_lshrrev_b32 v8, 4, v1
        v_mul_u32_u24 v8, 2560, v8
        v_and_b32 v9, 15, v1
        v_lshl_add_u32 v8, v9, 4, v8
        v_add_u32 v52, s7, v8""")
        for i in range(1, 8): a(f'v_add_u32 v{52+i}, 10240, v{51+i}')
        a(f'v_add_u32 v44, {WS_H}, v44')
        if s.defer:
            a('s_lshl_b32 s7, s3, 6\nv_add_u32 v18, s7, v1')
            s.stage_setup(18)
        for st in range(RV): vstep(st, s.DE, RV - st)
        a(f"""s_mov_b32 exec_hi, 0
        s_nop 6
        ds_write_b128 v60, v[28:31] offset:{OP}
        s_mov_b64 exec, -1
        s_waitcnt lgkmcnt(0)""")
        s.stamp(3)
        if s.mst: a('s_memrealtime s[82:83]')
        a('s_barrier')
        s.mstamp(11, 80); s.mstamp(3, 82)
        if s.exp & 17: s.mstamp(7); a('s_endpgm')
        SR = 192
        if s.defer and not s.noffn:
            a('s_cmp_eq_u32 s66, 0\ns_cbranch_scc0 L_d1B')
            for k in range(s.NB1 if s.defer & 1 else 0):
                t, p = s.ldA(k, SR); a(t); a(p)
            a('s_branch L_d1D\nL_d1B:\ns_cmp_eq_u32 s66, 1\ns_cbranch_scc0 L_d1D')
            for k in range(s.NB1 if s.defer & 2 else 0):
                t, p = s.ldB(k, SR); a(t); a(p)
            a('L_d1D:')
        a(f"""s_barrier
        s_cmp_lt_u32 s66, 2
        s_cbranch_scc1 L_s_ffn
        s_cmp_eq_u32 s66, 3
        s_cbranch_scc1 L_end
        s_cmp_lg_u32 s3, 0
        s_cbranch_scc1 L_end""")
        s.stamp(8)
        s.poll([f'global_load_dwordx4 v[{160+4*i}:{163+4*i}], v{52+i}, s[38:39] sc1' for i in range(8)], list(range(160, 192)), 32)
        s.stamp(9)
        for step in (16, 8, 4):
            for r in range(0, step, 2): a(f'v_pk_add_f32 v[{160+r}:{160+r+1}], v[{160+r}:{160+r+1}], v[{160+step+r}:{160+step+r+1}]')
        for sw in ('v_permlane16_swap_b32', 'v_permlane32_swap_b32'):
            for r in range(4): a(f'v_mov_b32 v{164+r}, v{160+r}')
            for r in range(4): a(f'{sw} v{160+r}, v{164+r}')
            for r in (0, 2): a(f'v_pk_add_f32 v[{160+r}:{160+r+1}], v[{160+r}:{160+r+1}], v[{164+r}:{164+r+1}]')
            a('s_nop 0')
        a("""v_cvt_pk_bf16_f32 v24, v160, v161
        v_cvt_pk_bf16_f32 v26, v162, v163
        v_lshlrev_b32 v28, 16, v24
        v_and_b32 v29, 0xffff0000, v24
        v_lshlrev_b32 v30, 16, v26
        v_and_b32 v31, 0xffff0000, v26
        v_lshlrev_b32 v24, 16, v42
        v_and_b32 v25, 0xffff0000, v42
        v_lshlrev_b32 v26, 16, v43
        v_and_b32 v27, 0xffff0000, v43
        v_add_f32 v24, v24, v28
        v_add_f32 v25, v25, v29
        v_add_f32 v26, v26, v30
        v_add_f32 v27, v27, v31
        v_cvt_pk_bf16_f32 v24, v24, v25
        v_cvt_pk_bf16_f32 v25, v26, v27
        v_min_u32 v24, -2, v24
        v_min_u32 v25, -2, v25
        s_nop 0
        v_mov_b32_dpp v26, v24 quad_perm:[1,1,3,3] row_mask:0xf bank_mask:0xf
        v_mov_b32_dpp v27, v25 quad_perm:[1,1,3,3] row_mask:0xf bank_mask:0xf
        s_mov_b64 exec, 0x5555
        global_store_dwordx4 v44, v[24:27], s[38:39] sc1""")
        s.stamp(5)
        a('s_endpgm')
        a('L_s_ffn:')
        if s.defer: a('s_barrier')
        if s.defer and not s.noffn:
            a('s_cmp_eq_u32 s66, 0\ns_cbranch_scc0 L_d2B')
            fa = s.fuseA and s.defer & 1
            if s.defer & 1:
                if s.DS: a(f's_sleep {s.DS}')
                for k in range(s.NB1, 10):
                    t, p = s.ldA(k, SR); a(t); a(p)
                if fa:
                    s.tailA_setup()
                    for l in s.H_LOADS: a(l)
                for kb in range(5):
                    a(f's_waitcnt vmcnt({8-2*kb+(2 if fa else 0)})'); s.wrA(kb, SR)
                if fa and s.fuseA == 2:
                    a('s_waitcnt lgkmcnt(0)\ns_barrier\ns_cmp_lt_u32 s3, 2\ns_cbranch_scc1 L_notr')
                    for m in range(20):
                        a(f'ds_read_b64_tr_b16 v[{64+4*m}:{65+4*m}], v46 offset:{m*2048}')
                        a(f'ds_read_b64_tr_b16 v[{66+4*m}:{67+4*m}], v46 offset:{m*2048+256}')
                    a('L_notr:')
                if fa: a(f's_mov_b64 s[62:63], exec\ns_mov_b32 s64, {s.spin}\ns_branch L_hchk')
            a('s_branch L_d2D\nL_d2B:')
            if s.defer & 2:
                if s.DS: a(f's_sleep {s.DS}')
                for k in range(s.NB1, 14):
                    t, p = s.ldB(k, SR); a(t); a(p)
                for k in range(14):
                    a(f's_waitcnt vmcnt({13-k})'); s.wrB(k, SR)
            a('L_d2D:\ns_waitcnt lgkmcnt(0)')
            s.stamp(13)
        a('s_barrier')
        s.ffn_wregs(streamer=True)
        a('s_branch L_tail')

    def helper(s):
        a = s.a; W0 = 96; s.sv = 92
        wreg = lambda i: f'v[{W0+4*i}:{W0+4*i+3}]'
        a('L_helper:')
        if s.exp & 1: a('s_endpgm')
        s.stamp_reg(84)
        a(f"""s_sub_u32 s9, s3, 4
        v_lshrrev_b32 v2, 4, v1
        v_mul_u32_u24 v2, 40, v2
        s_mul_i32 s7, s9, 160
        v_add_u32 v3, s7, v2
        v_lshlrev_b32 v2, 13, v3
        v_and_b32 v8, 15, v1
        v_lshl_add_u32 v2, v8, 4, v2
        v_lshlrev_b32 v3, 3, v3
        s_mul_i32 s49, s4, 5
        s_lshr_b32 s49, s49, 2
        s_lshl_b32 s49, s49, 4
        v_add_u32 v3, s49, v3
        v_lshlrev_b32 v26, 4, v1
        v_lshlrev_b32 v27, 2, v1
        s_mul_i32 s7, s4, 1280
        s_lshl_b32 s8, s5, 8
        s_mov_b32 s47, 0x20000
        s_sub_u32 s46, 5242880, s8
        s_lshl_b32 s48, s49, 11
        s_waitcnt lgkmcnt(0)
        s_add_u32 s10, s16, s7
        s_addc_u32 s11, s17, 0
        s_add_u32 s44, s22, s8
        s_addc_u32 s45, s23, 0""")
        def clears():
            a(f"""v_mov_b32 v20, -1
            v_mov_b32 v21, -1
            v_mov_b32 v22, -1
            v_mov_b32 v23, -1
            s_mul_i32 s7, s2, 2560
            v_add_u32 v24, s7, v26
            s_lshl_b32 s8, s9, 10
            v_add_u32 v45, s8, v24
            s_mul_i32 s7, s12, 1280
            s_lshl_b32 s8, s67, 7
            s_add_u32 s7, s7, s8
            s_add_u32 s7, s7, {WS_H}
            s_lshl_b32 s8, s67, 8
            s_add_u32 s8, s8, {WS_ACT}
            s_cmp_eq_u32 s66, 0
            s_cselect_b32 s7, s8, s7
            v_add_u32 v25, s7, v27
            s_cmp_lg_u32 s9, {9 if s.exp & 8 else 3}
            s_cbranch_scc1 L_clrd
            {'s_branch L_nopc' if s.nopc else ''}
            global_store_dwordx4 v24, v[20:23], s[38:39] {s.cpol}
            global_store_dwordx4 v24, v[20:23], s[38:39] offset:1024 {s.cpol}
            global_store_dwordx4 v24, v[20:23], s[38:39] offset:1536 {s.cpol}
            L_nopc:
            s_bitcmp1_b32 s66, 0
            s_cbranch_scc1 L_clrd
            s_cmp_eq_u32 s66, 0
            s_cselect_b32 exec_hi, -1, 0
            global_store_dword v25, v20, s[38:39] sc1
            s_mov_b64 exec, -1
            L_clrd:""")
        if s.bflag == 2: a(f's_load_dword s77, s[38:39], {WS_EP}')
        s.roles()
        if s.early: clears()
        a("""global_load_dwordx4 v[12:15], v26, s[10:11]
        global_load_dword v16, v27, s[10:11] offset:1024""")
        def wq_issue(i):
            if s.nowq == 1 or (s.nowq == 2 and i >= 5): return
            a(f'buffer_load_dwordx4 {wreg(i)}, v2, s[44:47], s48 offen {s.wpol}')
            if i < 39:
                a('s_add_u32 s48, s48, 8192')
                if (i & 3) == 3: a(f's_cmp_eq_u32 s48, {40*8192}\ns_cselect_b32 s48, 0, s48')
        N0 = s.N0
        for i in range(N0): wq_issue(i)
        s.masks()
        a(f"""v_mul_u32_u24 v8, 52429, v1
        v_lshrrev_b32 v8, 18, v8
        v_mul_u32_u24 v8, 160, v8
        v_lshl_add_u32 v8, v1, 5, v8
        v_add_u32 v9, 256, v1
        v_mul_u32_u24 v10, 52429, v9
        v_lshrrev_b32 v10, 20, v10
        v_mul_u32_u24 v10, 160, v10
        v_lshl_add_u32 v9, v9, 3, v10
        s_waitcnt vmcnt({(0, 0, 5)[s.nowq] if s.nowq else N0})""")
        s.stamp_reg(86)
        s.layernorm(12, 28, 40, True, 20, False)
        a(f"""ds_write_b128 v8, v[28:31] offset:{XD}
        ds_write_b128 v8, v[32:35] offset:{XD+16}
        ds_write_b64 v9, v[36:37] offset:{XD}
        ds_write_b128 v8, v[28:31] offset:{XD+160}
        ds_write_b128 v8, v[32:35] offset:{XD+176}
        ds_write_b64 v9, v[36:37] offset:{XD+160}
        s_waitcnt lgkmcnt(0)""")
        for i in range(10): a(f'ds_read_b128 v[{48+4*i}:{51+4*i}], v3 offset:{XD+16*i}')
        nis = N0
        for i in range(40):
            for _ in range(s.WB + (i == 0)):
                if nis < 40: wq_issue(nis); nis += 1
            if i == 0: a('s_waitcnt lgkmcnt(0)')
            ar = 28 + 4*(i & 1)
            for m in range(4): a(f'v_and_b32 v{ar+m}, v{48+i}, v{4+m}')
            a(f's_waitcnt vmcnt({nis-1-i})')
            if i == 20: s.stamp_reg(88)
            a('s_nop 0')
            a(f'v_mfma_f32_16x16x32_bf16 v[20:23], v[{ar}:{ar+3}], {wreg(i)}, ' + ('0' if i == 0 else 'v[20:23]'))
        a(f"""v_and_b32 v8, 15, v1
        v_lshlrev_b32 v8, 5, v8
        v_lshrrev_b32 v9, 4, v1
        v_lshl_add_u32 v17, v9, 4, v8
        s_lshl_b32 s7, s9, 9
        v_add_u32 v8, s7, v17
        s_nop 3
        s_mov_b32 exec_hi, 0
        ds_write_b128 v8, v[20:23] offset:{QP}
        s_mov_b64 exec, -1
        s_waitcnt lgkmcnt(0)""")
        if s.bflag == 2: a(f's_add_u32 s77, s77, {TAGC:#x}')
        s.stamp(1)
        for i, r in ((0, 84), (13, 86), (11, 88)): s.stamp(i, r)
        a('s_barrier')
        if s.tlb:
            a("""s_lshl_b32 s6, s2, 20
            s_add_u32 s10, s20, s6
            s_addc_u32 s11, s21, 0
            s_lshl_b32 s7, s9, 18
            v_mov_b32 v8, s7
            s_mov_b64 exec, 1
            global_load_dword v9, v8, s[10:11] nt
            s_mov_b64 exec, -1""")
        if not s.early: clears()
        def count():
            a(f"""s_cmp_lg_u32 s9, {9 if s.exp & 72 else 3}
            s_cbranch_scc1 L_cnta
            s_waitcnt vmcnt(0)""")
            if s.cstag:
                a(f"""s_lshr_b32 s7, s2, 2
                L_cst:
                s_sleep {s.cstag}
                s_sub_u32 s7, s7, 1
                s_cbranch_scc0 L_cst""")
            if s.bflag == 2:
                a(f"""s_lshl_b32 s7, s2, 7
                s_add_u32 s7, s7, {WS_FL}
                v_add_u32 v10, s7, v26
                v_mov_b32 v12, s77
                v_mov_b32 v13, s77
                v_mov_b32 v14, s77
                v_mov_b32 v15, s77
                s_mov_b64 exec, 0xff
                global_store_dwordx4 v10, v[12:15], s[38:39] sc1
                s_mov_b64 exec, -1
                L_cnta:""")
            elif s.bflag:
                a("""s_mov_b64 exec, 1
                v_mov_b32 v10, s2
                v_mov_b32 v11, 1
                global_store_byte v10, v11, s[36:37] sc1
                s_mov_b64 exec, -1
                L_cnta:""")
            else:
                a("""s_mov_b64 exec, 1
                s_and_b32 s7, s2, 3
                s_lshl_b32 s7, s7, 6
                v_mov_b32 v10, s7
                v_mov_b32 v11, 1
                global_atomic_add v10, v11, s[36:37] sc1
                s_mov_b64 exec, -1
                L_cnta:""")
        if not s.latecnt: count()
        a("""s_lshl_b32 s7, s9, 6
        v_add_u32 v18, s7, v1""")
        def stagger(expr, unit):
            if not unit: return
            l = s.lab('sg'); e = s.lab('sge')
            a(expr)
            a(f'{l}:\ns_sub_u32 s7, s7, 1\ns_cbranch_scc1 {e}\ns_sleep {unit}\ns_branch {l}\n{e}:')
        def do_ffn():
            stagger('s_and_b32 s7, s67, 3', s.SG1)
            if s.defer != 3 and not s.noffn:
                def split_load(txt, lanes):
                    for q in range(64 // lanes):
                        m = ((1 << lanes) - 1) << (q * lanes)
                        if lanes < 64: a(f's_mov_b32 exec_lo, {m & 0xffffffff:#x}\ns_mov_b32 exec_hi, {m >> 32:#x}')
                        a(txt)
                        a('s_waitcnt vmcnt(0)')
                    a('s_mov_b64 exec, -1')
                a('s_cmp_ge_u32 s66, 2\ns_cbranch_scc1 L_stD')
                s.stage_setup(18)
                a('s_cmp_eq_u32 s66, 0\ns_cbranch_scc0 L_stB')
                for kb in range(0 if s.defer & 1 else 5):
                    for mt in range(2):
                        t, p = s.ldA(mt, 48); split_load(t, min(64, 2*s.FQ)); a(p)
                    s.wrA(0 if kb < 4 else 0, 48)
                    a('s_waitcnt lgkmcnt(0)')
                a('s_branch L_stD\nL_stB:')
                for k in range(0 if s.defer & 2 else 14):
                    t, p = s.ldB(0, 48); split_load(t, min(64, 2*s.FQ)); a(p)
                    a(f'ds_write_b128 v11, v[48:51] offset:{k*4096}\ns_waitcnt lgkmcnt(0)')
                a('L_stD:')
        def do_wo():
            stagger('s_mov_b32 s7, s4', s.SG2)
            a(f"""v_lshrrev_b32 v8, 4, v1
            v_lshlrev_b32 v8, 3, v8
            s_lshl_b32 s7, s9, 5
            v_add_u32 v19, s7, v8
            v_mul_u32_u24 v8, 1280, v19
            v_and_b32 v9, 15, v1
            v_lshl_add_u32 v8, v9, 4, v8
            s_mul_i32 s8, s5, {128*1280}
            s_add_u32 s44, s24, s8
            s_addc_u32 s45, s25, 0
            s_mov_b32 s46, {128*1280}
            s_mov_b32 s48, 3840
            s_mov_b32 s49, 7680""")
            for i in range(8):
                for n in range(5):
                    so = ('0', 's48', 's49')[i // 3]; off = (i % 3)*1280 + n*256
                    if s.nowo: continue
                    a(f's_waitcnt vmcnt({s.HP-1})')
                    a(f'buffer_load_dwordx4 {wreg(i*5+n)}, v8, s[44:47], {so} offen offset:{off} {s.wpol}')
        if s.wofirst: do_wo(); do_ffn()
        else: do_ffn(); do_wo()
        s.stamp(2)
        if s.latecnt: count()
        a(f"""v_lshlrev_b32 v44, 4, v18
        v_lshlrev_b32 v19, 2, v19
        s_mul_i32 s7, s9, 2560
        v_add_u32 v17, s7, v17
        v_mov_b32 v16, 0
        s_waitcnt vmcnt(0)
        s_cmp_lg_u32 s9, {9 if s.exp & 40 else 3}
        s_cbranch_scc1 L_cntd
        s_cmp_eq_u32 s66, 3
        s_cbranch_scc1 L_cntd
        s_mov_b32 s64, {s.spin}
        L_flg:
        s_sleep 32
        ds_read_b32 v8, v16 offset:{FLG}
        s_waitcnt lgkmcnt(0)
        v_readfirstlane_b32 s7, v8
        s_cmp_lg_u32 s7, 0
        s_cbranch_scc1 L_flgd
        s_sub_u32 s64, s64, 1
        s_cbranch_scc0 L_flg
        L_flgd:
        s_mov_b32 s64, {s.spin}
""")
        if s.bflag == 2:
            a(f"""v_lshlrev_b32 v9, 7, v1
            v_add_u32 v9, {WS_FL}, v9
            v_add_u32 v10, 8192, v9
            v_add_u32 v14, 8192, v10
            v_add_u32 v15, 8192, v14
            L_cnt:
            global_load_dword v8, v9, s[38:39] sc1
            global_load_dword v11, v10, s[38:39] sc1
            global_load_dword v12, v14, s[38:39] sc1
            global_load_dword v13, v15, s[38:39] sc1
            s_waitcnt vmcnt(0)
            v_xor_b32 v8, s77, v8
            v_xor_b32 v11, s77, v11
            v_xor_b32 v12, s77, v12
            v_xor_b32 v13, s77, v13
            v_or3_b32 v8, v8, v11, v12
            v_or_b32 v8, v8, v13
            v_cmp_ne_u32 vcc, 0, v8""")
        else:
            a(f"""{'v_lshlrev_b32 v9, 2, v1' if s.bflag else 'v_and_b32 v9, 3, v1'}
            {'' if s.bflag else 'v_lshlrev_b32 v9, 6, v9'}
            L_cnt:
            global_load_dword v8, v9, s[36:37] sc1
            s_waitcnt vmcnt(0)
            {'v_cmp_ne_u32 vcc, 0x01010101, v8' if s.bflag else 'v_cmp_gt_u32 vcc, 64, v8'}""")
        a(f"""
        s_cbranch_vccz L_cntd
        s_sleep 127
        s_sub_u32 s64, s64, 1
        s_cbranch_scc0 L_cnt
        L_cntd:
        {'s_setprio 2' if s.prio else ''}
        s_waitcnt lgkmcnt(0)
        s_barrier""")
        if s.exp & 16: a('s_endpgm')
        s.stamp(3)
        for half in range(2):
            for w in range(4):
                a(f'ds_read_b128 v[{48+8*w+4*half}:{51+8*w+4*half}], v19 offset:{OP+w*512+16*half}')
        def osum(half):
            r = []
            pa = lambda d, y: f'v_pk_add_f32 v[{d}:{d+1}], v[{d}:{d+1}], v[{y}:{y+1}]'
            for e in range(4*half, 4*half+4, 2): r += [pa(48+e, 56+e), pa(64+e, 72+e)]
            r += [pa(48+e, 64+e) for e in range(4*half, 4*half+4, 2)]
            r += [f'v_cvt_pk_bf16_f32 v{48+e}, v{48+e}, v{48+e}' for e in range(4*half, 4*half+4)]
            return r
        amk = lambda i: [f'v_and_b32 v{28+4*(i&1)+m}, v{48+i}, v{4+m}' for m in range(4)]
        a('s_waitcnt lgkmcnt(4)')
        for x in osum(0) + amk(0): a(x)
        a('s_waitcnt lgkmcnt(0)\ns_nop 0')
        extra = osum(1)
        for i in range(8):
            ar = 28 + 4*(i & 1)
            fill = (amk(i+1) if i < 7 else [])
            if i < 2: fill = fill + extra[5*i:5*i+5]
            per = -(-len(fill) // 4)
            for n in range(5):
                acc = (8, 12, 20, 36, 40)[n]
                a(f'v_mfma_f32_16x16x32_bf16 v[{acc}:{acc+3}], v[{ar}:{ar+3}], {wreg(i*5+n)}, ' + ('0' if i == 0 else f'v[{acc}:{acc+3}]'))
                if n < 4:
                    for x in fill[per*n:per*n+per]: a(x)
            a('s_nop 0')
        a('s_mov_b32 exec_hi, 0\ns_nop 3')
        for n in range(5):
            acc = (8, 12, 20, 36, 40)[n]
            a(f'ds_write_b128 v17, v[{acc}:{acc+3}] offset:{WOP+n*512}')
        a("""s_mov_b64 exec, -1
        s_waitcnt lgkmcnt(0)
        s_barrier
        s_cmp_eq_u32 s9, 3
        s_cbranch_scc1 L_pubd""")
        for w in range(4): a(f'ds_read_b128 v[{48+4*w}:{51+4*w}], v44 offset:{WOP+w*2560}')
        a('s_cmp_eq_u32 s9, 2\ns_cselect_b32 exec_hi, 0, -1')
        a('s_waitcnt lgkmcnt(0)')
        for e in (0, 2):
            a(f'v_pk_add_f32 v[{48+e}:{48+e+1}], v[{48+e}:{48+e+1}], v[{52+e}:{52+e+1}]')
            a(f'v_pk_add_f32 v[{56+e}:{56+e+1}], v[{56+e}:{56+e+1}], v[{60+e}:{60+e+1}]')
        for e in (0, 2): a(f'v_pk_add_f32 v[{48+e}:{48+e+1}], v[{48+e}:{48+e+1}], v[{56+e}:{56+e+1}]')
        for e in range(4): a(f'v_min_u32 v{48+e}, -2, v{48+e}')
        a("""global_store_dwordx4 v45, v[48:51], s[38:39] sc1
        s_mov_b64 exec, -1""")
        s.stamp(4)
        a("""L_pubd:
        s_cmp_ge_u32 s66, 2
        s_cbranch_scc1 L_end""")
        if s.defer: a('s_barrier')
        if s.fuseA == 1 and s.defer & 1: a('s_cmp_eq_u32 s66, 0\ns_cbranch_scc1 L_tail')
        if s.fuseA == 2 and s.defer & 1:
            a('s_cmp_eq_u32 s66, 0\ns_cbranch_scc0 L_h3b')
            s.tailA_setup()
            a(f's_barrier\ns_mov_b64 s[62:63], exec\ns_mov_b32 s64, {s.spin}')
            for l in s.H_LOADS: a(l)
            a('s_branch L_hchk\nL_h3b:')
        a('s_barrier')
        s.ffn_wregs(streamer=False)

    H_LOADS = ['global_load_dwordx4 v[12:15], v8, s[38:39] sc1', 'global_load_dword v16, v9, s[38:39] offset:1024 sc1']
    def tailA_setup(s):
        s.a(f"""s_mul_i32 s7, s3, 1280
        s_add_u32 s7, s7, {WS_H}
        v_lshl_add_u32 v8, v1, 4, s7
        v_lshl_add_u32 v9, v1, 2, s7
        s_mul_i32 s7, s3, {XN2S}
        v_lshl_add_u32 v48, v1, 4, s7
        v_lshl_add_u32 v49, v1, 2, s7
        v_and_b32 v50, 7, v1
        v_mul_u32_u24 v51, {XN2S}, v50
        v_lshrrev_b32 v17, 4, v1
        v_lshl_add_u32 v51, v17, 4, v51
        v_lshlrev_b32 v50, 4, v50
        s_lshl_b32 s7, s67, 1
        s_add_u32 s7, s7, s3
        s_lshl_b32 s7, s7, 7
        s_add_u32 s7, s7, {WS_ACT - 256}
        v_add_u32 v50, s7, v50
        v_lshlrev_b32 v46, 3, v17
        v_bfe_u32 v47, v1, 2, 2
        v_add_u32 v46, v46, v47
        v_and_b32 v47, 3, v1
        v_lshlrev_b32 v47, 3, v47
        v_lshl_add_u32 v46, v46, 6, v47
        s_lshl_b32 s7, s3, 5
        s_add_u32 s7, s7, {IMG - 64}
        v_add_u32 v46, s7, v46
        s_mov_b32 s55, {f2u(-L2E):#x}""")

    def tail(s):
        a = s.a; s.sv = 62
        a("""L_tail:
        s_cmp_eq_u32 s66, 0
        s_cbranch_scc0 L_tailB""")
        s.tailA_setup()
        s.poll(s.H_LOADS, [12, 13, 14, 15, 16], 18, entry='L_hchk')
        s.stamp(6)
        s.layernorm(12, 28, 40, False, 20, True)
        s.stamp(10)
        a(f"""ds_write_b128 v48, v[20:23] offset:{XN2}
        ds_write_b32 v49, v24 offset:{XN2+1024}
        s_waitcnt lgkmcnt(0)
        s_barrier
        s_and_b32 s7, s3, 6
        s_cmp_lg_u32 s7, 2
        s_cbranch_scc1 L_end""")
        if s.fuseA == 1 and s.defer & 1:
            def rd(m):
                a(f'ds_read_b64_tr_b16 v[{64+4*m}:{65+4*m}], v46 offset:{m*2048}')
                a(f'ds_read_b64_tr_b16 v[{66+4*m}:{67+4*m}], v46 offset:{m*2048+256}')
                a(f'ds_read_b128 v[{144+4*m}:{147+4*m}], v51 offset:{XN2+m*64}')
            for m in range(5): rd(m)
            for m in range(20):
                a(f's_waitcnt lgkmcnt({3*min(4, 19-m)})')
                a(f'v_mfma_f32_16x16x32_bf16 v[20:23], v[{64+4*m}:{67+4*m}], v[{144+4*m}:{147+4*m}], ' + ('0' if m == 0 else 'v[20:23]'))
                if m + 5 < 20: rd(m + 5)
        else:
            for m in range(20): a(f'ds_read_b128 v[{144+4*m}:{147+4*m}], v51 offset:{XN2+m*64}')
            for m in range(20):
                a(f's_waitcnt lgkmcnt({min(15, 19-m)})')
                a(f'v_mfma_f32_16x16x32_bf16 v[20:23], v[{64+4*m}:{67+4*m}], v[{144+4*m}:{147+4*m}], ' + ('0' if m == 0 else 'v[20:23]'))
        a("""s_nop 7
        v_cvt_pk_bf16_f32 v20, v20, v21
        v_cvt_pk_bf16_f32 v22, v22, v23
        v_lshlrev_b32 v24, 16, v20
        v_and_b32 v25, 0xffff0000, v20
        v_mul_f32 v26, s55, v24
        v_mul_f32 v27, s55, v25
        v_exp_f32 v26, v26
        v_exp_f32 v27, v27
        v_lshlrev_b32 v28, 16, v22
        v_add_f32 v26, 1.0, v26
        v_add_f32 v27, 1.0, v27
        v_rcp_f32 v26, v26
        v_rcp_f32 v27, v27
        v_and_b32 v29, 0xffff0000, v22
        v_mul_f32 v24, v24, v26
        v_mul_f32 v25, v25, v27
        v_cvt_pk_bf16_f32 v24, v24, v25
        v_lshlrev_b32 v26, 16, v24
        v_and_b32 v27, 0xffff0000, v24
        v_mul_f32 v26, v26, v28
        v_mul_f32 v27, v27, v29
        v_cvt_pk_bf16_f32 v26, v26, v27
        v_min_u32 v24, -2, v26
        v_min_u32 v25, -2, v26
        s_nop 1
        v_permlane16_swap_b32 v24, v25
        v_mov_b32 v26, v24
        v_mov_b32 v27, v25
        s_nop 0
        v_permlane32_swap_b32 v24, v26
        v_permlane32_swap_b32 v25, v27
        s_mov_b64 exec, 0xff
        global_store_dwordx4 v50, v[24:27], s[38:39] sc1""")
        s.stamp(7)
        a('s_endpgm')
        a(f"""L_tailB:
        {f's_load_dword s77, s[38:39], {WS_EP}' if s.bflag == 2 else ''}
        v_and_b32 v10, 7, v1
        v_lshrrev_b32 v17, 4, v1
        v_lshlrev_b32 v8, 4, v10
        v_lshl_add_u32 v8, v17, 7, v8
        s_lshl_b32 s7, s3, 9
        s_add_u32 s7, s7, {WS_ACT}
        v_add_u32 v8, s7, v8
        v_add_u32 v9, 0x2000, v8
        v_add_u32 v11, 0x4000, v8
        s_movk_i32 s8, 0x5000
        s_cmp_lt_u32 s3, 6
        s_cselect_b32 s8, 0x6000, s8
        v_add_u32 v12, s8, v8
        v_mul_u32_u24 v13, 1280, v10
        v_lshl_add_u32 v13, v17, 3, v13
        s_lshl_b32 s7, s67, 5
        v_add_u32 v13, s7, v13
        v_add_u32 v14, {WS_H}, v13
        v_lshlrev_b32 v60, 6, v10
        v_lshl_add_u32 v60, v17, 4, v60
        s_lshl_b32 s7, s3, 9
        v_add_u32 v61, s7, v60
        s_add_u32 s68, s38, 4096
        s_addc_u32 s69, s39, 0
        s_cmp_lg_u32 s3, 3
        s_cbranch_scc1 L_noh""")
        s.poll(['global_load_dwordx2 v[18:19], v14, s[38:39] sc1'], [18, 19], 15)
        a('L_noh:')
        if s.gate: a(f's_barrier\ns_sleep {s.gate}')
        loads = []
        for i in range(7):
            base = (8, 8, 9, 9, 11, 11, 12)[i]
            sb = 's[68:69]' if (i < 6 and (i & 1)) else 's[38:39]'
            loads.append(f'global_load_dwordx4 v[{96+4*i}:{99+4*i}], v{base}, {sb} sc1')
        s.poll(loads, list(range(96, 124)), 15)
        s.stamp(6)
        a('s_waitcnt lgkmcnt(0)')
        for i in range(7):
            a(f'v_mfma_f32_16x16x32_bf16 v[20:23], v[{64+4*i}:{67+4*i}], v[{96+4*i}:{99+4*i}], ' + ('0' if i == 0 else 'v[20:23]'))
        a(f"""s_mov_b32 exec_lo, 0x00ff00ff
        s_mov_b32 exec_hi, 0x00ff00ff
        v_lshlrev_b32 v56, 16, v18
        v_and_b32 v57, 0xffff0000, v18
        v_lshlrev_b32 v58, 16, v19
        v_and_b32 v59, 0xffff0000, v19
        s_nop 1
        ds_write_b128 v61, v[20:23] offset:{BP}
        s_waitcnt lgkmcnt(0)
        s_barrier
        s_cmp_lg_u32 s3, 3
        s_cbranch_scc1 L_end""")
        for w in range(8): a(f'ds_read_b128 v[{24+4*w}:{27+4*w}], v60 offset:{BP+w*512}')
        a('s_waitcnt lgkmcnt(0)')
        for step in (16, 8, 4):
            for r in range(0, step, 2): a(f'v_pk_add_f32 v[{24+r}:{24+r+1}], v[{24+r}:{24+r+1}], v[{24+step+r}:{24+step+r+1}]')
        a("""v_cvt_pk_bf16_f32 v24, v24, v25
        v_cvt_pk_bf16_f32 v26, v26, v27
        v_lshlrev_b32 v28, 16, v24
        v_and_b32 v29, 0xffff0000, v24
        v_lshlrev_b32 v30, 16, v26
        v_and_b32 v31, 0xffff0000, v26
        v_add_f32 v24, v56, v28
        v_add_f32 v25, v57, v29
        v_add_f32 v26, v58, v30
        v_add_f32 v27, v59, v31
        v_cvt_pk_bf16_f32 v24, v24, v25
        v_cvt_pk_bf16_f32 v25, v26, v27
        global_store_dwordx2 v13, v[24:25], s[34:35] """ + s.opol)
        if s.bflag == 2:
            a(f"""s_cmp_lg_u32 s67, 0
            s_cbranch_scc1 L_noep
            s_add_u32 s77, s77, {TAGC:#x}
            s_mov_b64 exec, 1
            v_mov_b32 v28, {WS_EP}
            v_mov_b32 v29, s77
            global_store_dword v28, v29, s[38:39] sc1
            L_noep:""")
        s.stamp(7)
        s.mstamp(7)

    def text(s):
        s.gen()
        body = '\n'.join(s.L)
        k = NAME + '_kernel'
        return f"""{HEADER}; @launch grid=(256,1,1) block=(512,1,1) lds={LDS_BYTES}
.amdgcn_target "amdgcn-amd-amdhsa--gfx950"
.text
.globl {k}
.p2align 8
.type {k},@function
{k}:
{body}
.section .rodata,"a"
.p2align 6
.amdhsa_kernel {k}
  .amdhsa_next_free_vgpr 256
  .amdhsa_next_free_sgpr 102
  .amdhsa_accum_offset 256
  .amdhsa_group_segment_fixed_size 0
  .amdhsa_kernarg_size 96
  .amdhsa_user_sgpr_count 2
  .amdhsa_user_sgpr_kernarg_segment_ptr 1
  .amdhsa_system_sgpr_workgroup_id_x 1
  .amdhsa_float_denorm_mode_32 3
.end_amdhsa_kernel
"""

def parse_kw(args):
    kw = {}
    for x in args:
        k, v = x.split('=')
        try: v = int(v)
        except ValueError: v = v.replace('+', ' ').replace('-', '')
        kw[k] = v
    return kw

if __name__ == '__main__':
    open(sys.argv[1], 'w').write(G(**parse_kw(sys.argv[2:])).text())
```

```python
import sys, struct

NAME = 'sequential_preLN__mha_block_cached__swiglu_ffn__decode'
def f2u(x): return struct.unpack('<I', struct.pack('<f', x))[0]

HEADER = """; Kernarg layout for this problem (96 bytes, ptrs only, base s[0:1]):
;
"""

WS_P   = 0
WS_H   = 256*2560
WS_ACT = WS_H + 10240
WS_FL  = WS_ACT + 27648
WS_EP  = WS_FL + 32768
TAGC = 0x9e3779b9
WS_STAMP = 1 << 20

XD  = 0
QP  = 5120
OP  = 7168
ST  = 9216
FLG = ST + 64
SC0 = 9344
SCW = 64*64
WOP = SC0 + 4*SCW
XN2 = WOP + 10240
XN2S = 1296
BP  = XN2
IMG = XN2 + 8*XN2S
LDS_BYTES = IMG + 57344
L2E = 1.4426950408889634

DEF = dict(D=5, D0=4, DP=6, DE=8, NE=6, NP=48, N0=8, WB=40, HP=1, FQ=16, kvpol='nt', wpol='', fpol='', opol='',
           stamps=0, spin=1 << 19, psleep=0, defer=3, gate=0, NB1=1, DS=0, flat=1, XE=4, mst=0, exp=0, early=1, fuseA=0, PF=1, PFF=0, dry=0, halfB=0, PDA=1, PS=3, CH=1, prio=1, bflag=2, tlb=0, RD=0, KP='', VP='', SG1=0, SG2=0, wofirst=0, latecnt=1, cstag=0, cpol='sc1', nopc=0, nowo=0, nowq=0, noffn=0)

class G:
    def __init__(s, **kw):
        for k, v in DEF.items(): setattr(s, k, v)
        for k, v in kw.items():
            assert k in DEF, k
            setattr(s, k, v)
        s.L = []; s.nl = 0; s.sv = 62
    def a(s, t):
        for line in t.strip('\n').split('\n'):
            line = line.strip()
            if line: s.L.append(line if line.endswith(':') and not line.startswith(';') else '    ' + line)
    def lab(s, p):
        s.nl += 1; return f'L_{p}_{s.nl}'
    def stamp_reg(s, r):
        if s.stamps: s.a(f's_memrealtime s[{r}:{r+1}]')
    def stamp(s, idx, r=None):
        if not s.stamps: return
        s.a('s_memrealtime s[92:93]' if r is None else 's_nop 0')
        s.a('s_waitcnt lgkmcnt(0)')
        if r is not None: s.a(f's_mov_b32 s92, s{r}')
        s.a(f"""s_mov_b64 s[94:95], exec
        s_mov_b64 exec, 1
        s_lshl_b32 s93, s2, 3
        s_add_u32 s93, s93, s3
        s_lshl_b32 s93, s93, 6
        s_add_u32 s93, s93, {WS_STAMP + idx*4}
        v_mov_b32 v{s.sv}, s93
        v_mov_b32 v{s.sv+1}, s92
        global_store_dword v{s.sv}, v{s.sv+1}, s[38:39]
        s_mov_b64 exec, s[94:95]""")

    def mstamp(s, idx, r=None):
        if not s.mst: return
        keep = s.stamps; s.stamps = 1
        n0 = len(s.L)
        s.stamp(idx, r)
        s.L[n0:] = [l + ' sc1' if 'global_store' in l else l for l in s.L[n0:]]
        s.stamps = keep
    def wave_sum(s, v, sd):
        for c in ('row_ror:8', 'row_ror:4', 'row_ror:2', 'row_ror:1'):
            s.a(f's_nop 1\nv_add_f32_dpp v{v}, v{v}, v{v} {c} row_mask:0xf bank_mask:0xf')
        s.a(f's_nop 1\nv_add_f32_dpp v{v}, v{v}, v{v} row_bcast:15 row_mask:0xa bank_mask:0xf')
        s.a(f's_nop 1\nv_add_f32_dpp v{v}, v{v}, v{v} row_bcast:31 row_mask:0xc bank_mask:0xf')
        s.a(f's_nop 1\nv_readlane_b32 s{sd}, v{v}, 63')

    def layernorm(s, src, f, t, dup, o, fast):
        a = s.a
        for i in range(5):
            a(f'v_lshlrev_b32 v{f+2*i}, 16, v{src+i}\nv_and_b32 v{f+2*i+1}, 0xffff0000, v{src+i}')
        a(f's_mov_b32 s61, {f2u(1.0/640):#x}')
        if fast:
            a(f'v_readfirstlane_b32 s58, v{f}\nv_readfirstlane_b32 s59, v{f}\ns_nop 1')
            d = o
            a(f'v_pk_add_f32 v[{t}:{t+1}], v[{f}:{f+1}], s[58:59] neg_lo:[0,1] neg_hi:[0,1]')
            a(f'v_pk_mul_f32 v[{t+2}:{t+3}], v[{t}:{t+1}], v[{t}:{t+1}]')
            for i in range(1, 5):
                a(f'v_pk_add_f32 v[{d}:{d+1}], v[{f+2*i}:{f+2*i+1}], s[58:59] neg_lo:[0,1] neg_hi:[0,1]')
                a(f'v_pk_add_f32 v[{t}:{t+1}], v[{t}:{t+1}], v[{d}:{d+1}]')
                a(f'v_pk_fma_f32 v[{t+2}:{t+3}], v[{d}:{d+1}], v[{d}:{d+1}], v[{t+2}:{t+3}]')
            a(f'v_add_f32 v{t}, v{t}, v{t+1}\nv_add_f32 v{t+2}, v{t+2}, v{t+3}')
            for c in ('row_ror:8 row_mask:0xf', 'row_ror:4 row_mask:0xf', 'row_ror:2 row_mask:0xf', 'row_ror:1 row_mask:0xf',
                      'row_bcast:15 row_mask:0xa', 'row_bcast:31 row_mask:0xc'):
                a(f's_nop 0\nv_add_f32_dpp v{t}, v{t}, v{t} {c} bank_mask:0xf\nv_add_f32_dpp v{t+2}, v{t+2}, v{t+2} {c} bank_mask:0xf')
            a(f'v_readlane_b32 s60, v{t}, 63\nv_readlane_b32 s58, v{t+2}, 63\ns_nop 0')
            a(f'v_mov_b32 v{t}, s60\nv_mov_b32 v{t+2}, s58\nv_mul_f32 v{t}, s61, v{t}\nv_mul_f32 v{t+2}, s61, v{t+2}')
            a(f'v_fma_f32 v{t+2}, -v{t}, v{t}, v{t+2}\nv_add_f32 v{t}, s59, v{t}\nv_max_f32 v{t+2}, 0, v{t+2}')
            a(f'v_cvt_pk_bf16_f32 v{t}, v{t}, v{t+2}\nv_and_b32 v{t+2}, 0xffff0000, v{t}\nv_lshlrev_b32 v{t}, 16, v{t}')
        else:
            a(f'v_add_f32 v{t}, v{f}, v{f+1}')
            for i in range(2, 10): a(f'v_add_f32 v{t}, v{t}, v{f+i}')
            s.wave_sum(t, 60)
            a(f's_nop 1\nv_mov_b32 v{t}, s60\nv_mul_f32 v{t}, s61, v{t}')
            a(f'v_sub_f32 v{t+1}, v{f}, v{t}\nv_mul_f32 v{t+2}, v{t+1}, v{t+1}')
            for i in range(1, 10):
                a(f'v_sub_f32 v{t+1}, v{f+i}, v{t}\nv_fmac_f32 v{t+2}, v{t+1}, v{t+1}')
            s.wave_sum(t+2, 60)
            a(f'v_cvt_pk_bf16_f32 v{t}, v{t}, v{t}\nv_lshlrev_b32 v{t}, 16, v{t}')
            a(f'v_mov_b32 v{t+2}, s60\nv_mul_f32 v{t+2}, s61, v{t+2}')
            a(f'v_cvt_pk_bf16_f32 v{t+2}, v{t+2}, v{t+2}\nv_lshlrev_b32 v{t+2}, 16, v{t+2}')
        a(f'v_add_f32 v{t+2}, {f2u(1e-5):#x}, v{t+2}')
        a(f'v_cvt_pk_bf16_f32 v{t+2}, v{t+2}, v{t+2}\nv_lshlrev_b32 v{t+2}, 16, v{t+2}')
        a(f'v_sqrt_f32 v{t+2}, v{t+2}')
        if fast:
            for i in range(5): a(f'v_pk_add_f32 v[{f+2*i}:{f+2*i+1}], v[{f+2*i}:{f+2*i+1}], v[{t}:{t+1}] op_sel_hi:[1,0] neg_lo:[0,1] neg_hi:[0,1]')
        else:
            for i in range(10): a(f'v_sub_f32 v{f+i}, v{f+i}, v{t}')
        a(f'v_cvt_pk_bf16_f32 v{t+2}, v{t+2}, v{t+2}\nv_lshlrev_b32 v{t+2}, 16, v{t+2}')
        a(f'v_rcp_f32 v{t+3}, v{t+2}')
        for i in range(5): a(f'v_cvt_pk_bf16_f32 v{o+i}, v{f+2*i}, v{f+2*i+1}')
        for i in range(5):
            a(f'v_lshlrev_b32 v{f+2*i}, 16, v{o+i}\nv_and_b32 v{f+2*i+1}, 0xffff0000, v{o+i}')
        for i in range(10):
            if fast:
                if i & 1: a(f'v_pk_mul_f32 v[{f+i-1}:{f+i}], v[{f+i-1}:{f+i}], v[{t+2}:{t+3}] op_sel:[0,1] op_sel_hi:[1,1]')
            else: a(f'v_mul_f32 v{t}, v{f+i}, v{t+3}\nv_fma_f32 v{t+1}, -v{t}, v{t+2}, v{f+i}\nv_fma_f32 v{f+i}, v{t+1}, v{t+3}, v{t}')
        if dup:
            for i in range(10): a(f'v_cvt_pk_bf16_f32 v{f+i}, v{f+i}, v{f+i}')
        else:
            for i in range(5): a(f'v_cvt_pk_bf16_f32 v{o+i}, v{f+2*i}, v{f+2*i+1}')

    def poll(s, loads, regs, t, entry=None, depth=1):
        a = s.a
        lp = s.lab('poll'); ld = s.lab('polld')
        a(f's_mov_b64 s[62:63], exec\ns_mov_b32 s64, {s.spin}')
        for _ in range(depth - 1):
            for l in loads: a(l)
            a(f's_sleep {s.PS}')
        a(f'{lp}:')
        for l in loads: a(l)
        if entry: a(f'{entry}:')
        a(f's_waitcnt vmcnt({(depth-1)*len(loads)})')
        r = list(regs)
        if len(r) == 2: a(f'v_max_u32 v{t}, v{r[0]}, v{r[1]}'); r = []
        else:
            a(f'v_max3_u32 v{t}, v{r[0]}, v{r[1]}, v{r[2]}'); r = r[3:]
        while len(r) >= 2:
            a(f'v_max3_u32 v{t}, v{t}, v{r[0]}, v{r[1]}'); r = r[2:]
        if r: a(f'v_max_u32 v{t}, v{t}, v{r[0]}')
        a(f'v_cmpx_eq_u32 vcc, -1, v{t}')
        a(f's_cbranch_execz {ld}')
        if s.psleep: a(f's_sleep {s.psleep}')
        a(f's_sub_u32 s64, s64, 1\ns_cbranch_scc0 {lp}')
        a(f'{ld}:')
        a('s_mov_b64 exec, s[62:63]\ns_nop 2')

    def roles(s):
        s.a("""s_and_b32 s12, s2, 7
        s_lshr_b32 s13, s2, 3
        s_min_u32 s14, s12, 3
        s_lshl_b32 s14, s14, 2
        s_mul_i32 s67, s12, 12
        s_add_u32 s67, s67, s14
        s_add_u32 s67, s67, s13
        s_cmp_lt_u32 s12, 3
        s_cselect_b32 s14, 16, 12
        s_mov_b32 s66, 0
        s_sub_u32 s13, s13, s14
        s_cbranch_scc1 L_role%d
        s_sub_u32 s14, s12, 3
        s_max_i32 s14, s14, 0
        s_min_i32 s14, s14, 2
        s_add_u32 s14, s14, s12
        s_lshl_b32 s14, s14, 2
        s_add_u32 s67, s14, s13
        s_sub_u32 s14, s12, 3
        s_cmp_lt_u32 s14, 2
        s_cselect_b32 s14, 8, 4
        s_mov_b32 s66, 1
        s_sub_u32 s13, s13, s14
        s_cbranch_scc1 L_role%d
        s_mov_b32 s67, s13
        s_mov_b32 s66, 2
        s_cmp_lt_u32 s13, 10
        s_cbranch_scc1 L_role%d
        s_mov_b32 s66, 3
        s_mov_b32 s67, 0
        L_role%d:""" % ((s.nl,)*4))
        s.nl += 1

    def masks(s):
        s.a("""v_and_b32 v8, 15, v1
        v_and_b32 v9, 1, v1
        v_lshlrev_b32 v9, 4, v9
        v_mov_b32 v10, 0xffff
        v_lshlrev_b32 v10, v9, v10
        v_lshrrev_b32 v11, 1, v8""")
        for m in range(4):
            s.a(f'v_cmp_eq_u32 vcc, {m}, v11\ns_nop 1\nv_cndmask_b32 v{4+m}, 0, v10, vcc')

    def gen(s):
        a = s.a
        s.stamp_reg(80)
        if s.mst: a('s_memrealtime s[80:81]')
        a("""s_cmp_ge_u32 s2, 256
        s_cbranch_scc1 L_end
        s_load_dwordx16 s[16:31], s[0:1], 0
        s_load_dwordx8 s[32:39], s[0:1], 64
        v_lshrrev_b32 v2, 6, v0
        v_and_b32 v1, 63, v0
        v_readfirstlane_b32 s3, v2
        s_lshr_b32 s4, s2, 5
        s_and_b32 s5, s2, 31
        s_cmp_ge_u32 s3, 4
        s_cbranch_scc1 L_helper""")
        s.streamer()
        s.helper()
        s.tail()
        a('L_end:\ns_endpgm')

    def stage_setup(s, T):
        a = s.a
        lb = s.lab('sgB'); ld = s.lab('sgD')
        a(f"""v_lshrrev_b32 v8, 1, v{T}
        v_and_b32 v9, 1, v{T}
        s_lshl_b32 s8, s67, 5
        s_mov_b32 s71, 0x20000
        s_mov_b32 s75, 0x20000
        s_sub_u32 s70, 2211840, s8
        s_mov_b32 s74, s70
        s_mov_b32 s76, 0
        s_cmp_eq_u32 s66, 0
        s_cbranch_scc0 {lb}
        s_add_u32 s68, s28, s8
        s_addc_u32 s69, s29, 0
        s_add_u32 s72, s30, s8
        s_addc_u32 s73, s31, 0
        s_mov_b32 s7, 3456
        v_mul_lo_u32 v10, v8, s7
        v_lshl_add_u32 v10, v9, 4, v10
        v_lshlrev_b32 v11, 5, v{T}
        s_branch {ld}
        {lb}:
        s_add_u32 s68, s32, s8
        s_addc_u32 s69, s33, 0
        s_mov_b32 s72, s68
        s_mov_b32 s73, s69
        v_mul_u32_u24 v10, 1280, v8
        v_lshl_add_u32 v10, v9, 4, v10
        v_lshlrev_b32 v11, 4, v{T}
        {ld}:
        v_add_u32 v11, {IMG}, v11""")
    def ldA(s, k, R):
        srd = 's[68:71]' if (k & 1) == 0 else 's[72:75]'
        t = f'buffer_load_dwordx4 v[{R+4*k}:{R+4*k+3}], v10, {srd}, s76 offen {s.fpol}'
        post = f's_add_u32 s76, s76, {128*3456}' if k & 1 else ''
        return t, post
    def ldB(s, k, R):
        return f'buffer_load_dwordx4 v[{R+4*k}:{R+4*k+3}], v10, s[68:71], s76 offen {s.fpol}', f's_add_u32 s76, s76, {128*1280}'
    def wrA(s, kb, R):
        for q in range(4):
            s.a(f'ds_write2_b32 v11, v{R+8*kb+q}, v{R+8*kb+4+q} offset0:{2*q} offset1:{2*q+1}')
        if kb < 4: s.a('v_add_u32 v11, 8192, v11')
    def wrB(s, k, R):
        s.a(f'ds_write_b128 v11, v[{R+4*k}:{R+4*k+3}] offset:{k*4096}')

    def ffn_wregs(s, streamer):
        a = s.a
        la = s.lab('wa'); ld = s.lab('wd')
        a(f"""v_lshrrev_b32 v46, 4, v1
        v_lshlrev_b32 v46, 3, v46
        v_bfe_u32 v47, v1, 2, 2
        v_add_u32 v46, v46, v47
        v_and_b32 v47, 3, v1
        v_lshlrev_b32 v47, 3, v47
        v_add_u32 v47, {IMG}, v47
        s_cmp_eq_u32 s66, 0
        s_cbranch_scc1 {la}
        v_lshl_add_u32 v46, v46, 5, v47
        s_lshl_b32 s7, s3, 10
        v_add_u32 v46, s7, v46""")
        for i in range(7):
            a(f'ds_read_b64_tr_b16 v[{64+4*i}:{65+4*i}], v46 offset:{i*8192}')
            a(f'ds_read_b64_tr_b16 v[{66+4*i}:{67+4*i}], v46 offset:{i*8192+128}')
        a(f's_branch {ld}\n{la}:')
        if streamer:
            a(f"""s_cmp_lt_u32 s3, 2
            s_cbranch_scc1 {ld}
            v_lshl_add_u32 v46, v46, 6, v47
            s_sub_u32 s7, s3, 2
            s_lshl_b32 s7, s7, 5
            v_add_u32 v46, s7, v46""")
            for m in range(20):
                a(f'ds_read_b64_tr_b16 v[{64+4*m}:{65+4*m}], v46 offset:{m*2048}')
                a(f'ds_read_b64_tr_b16 v[{66+4*m}:{67+4*m}], v46 offset:{m*2048+256}')
        a(f'{ld}:')

    def streamer(s):
        a = s.a; D = s.D; R0 = 64; NP = s.NP; R = 16; s.sv = 62
        assert NP % 16 == 0
        slot = lambda p: f'v[{R0+4*p}:{R0+4*p+3}]'
        CH = s.CH; CSH = 12 + {1: 0, 2: 1, 4: 2}[CH]
        def issue(p, t):
            a(f'buffer_load_dwordx4 {slot(p)}, v2, s[40:43], s44 offen offset:{t*1024} {s.kvpol}')
            if t == 3: a(f's_add_u32 s44, s44, {4096 if ((p >> 2) + 1) % CH else 16384*CH - 4096*(CH-1)}')
        a("""v_bfe_u32 v2, v1, 2, 2
        v_lshlrev_b32 v2, 8, v2
        v_lshrrev_b32 v3, 4, v1
        v_lshl_add_u32 v2, v3, 6, v2
        v_and_b32 v3, 3, v1
        v_lshl_add_u32 v2, v3, 4, v2
        s_lshl_b32 s6, s2, 20
        s_lshl_b32 s44, s3, %d
        s_mov_b32 s42, 0x100000
        s_mov_b32 s43, 0x20000
        s_waitcnt lgkmcnt(0)
        s_add_u32 s40, s18, s6
        s_addc_u32 s41, s19, 0""" % CSH)
        s.stamp_reg(82)
        for i in range(s.D0): issue(i, i & 3)
        s.stamp(0); s.stamp(11, 80); s.stamp(12, 82)
        a("""s_add_u32 s48, s20, s6
        s_addc_u32 s49, s21, 0
        v_lshlrev_b32 v3, 4, v1""")
        if s.PF:
            a(f"""s_lshl_b32 s7, s5, 3
            s_add_u32 s7, s7, s4
            s_mul_i32 s7, s7, 20480
            s_mul_i32 s8, s3, 5120
            s_add_u32 s7, s7, s8
            s_add_u32 s10, s24, s7
            s_addc_u32 s11, s25, 0
            global_load_dwordx4 v[56:59], v3, s[10:11]
            global_load_dwordx4 v[56:59], v3, s[10:11] offset:1024
            global_load_dwordx4 v[56:59], v3, s[10:11] offset:2048
            global_load_dwordx4 v[56:59], v3, s[10:11] offset:3072
            v_add_u32 v8, 4096, v3
            global_load_dwordx4 v[56:59], v8, s[10:11]""")
        s.roles()
        if s.PFF:
            a(f"""s_lshr_b32 s13, s2, 3
            s_min_u32 s14, s12, 3
            s_lshl_b32 s14, s14, 2
            s_mul_i32 s7, s12, 12
            s_add_u32 s7, s7, s14
            s_lshl_b32 s7, s7, 5
            s_mul_i32 s8, s13, 20
            s_lshr_b32 s14, s3, 1
            s_mul_i32 s14, s14, 10
            s_add_u32 s8, s8, s14
            s_mul_i32 s8, s8, 3456
            s_add_u32 s7, s7, s8
            v_lshrrev_b32 v8, 2, v1
            v_mul_u32_u24 v8, 3456, v8
            v_and_b32 v9, 3, v1
            v_lshl_add_u32 v8, v9, 7, v8
            v_add_u32 v8, s7, v8
            s_bitcmp1_b32 s3, 0
            s_cselect_b32 s68, s30, s28
            s_cselect_b32 s69, s31, s29
            s_mov_b32 s70, 2211840
            s_mov_b32 s71, 0x20000
            s_cmp_lt_u32 s12, 3
            s_cselect_b32 exec_lo, -1, 0x77777777
            s_movk_i32 s15, 0x77
            s_cselect_b32 exec_hi, 0xff, s15
            buffer_load_dword v56, v8, s[68:71], 0 offen
            s_mov_b64 exec, -1
            s_sub_u32 s14, s12, 3
            s_max_i32 s7, s14, 0
            s_min_i32 s7, s7, 2
            s_add_u32 s7, s7, s12
            s_lshl_b32 s7, s7, 7
            s_mul_i32 s8, s13, 54
            s_mul_i32 s15, s3, 14
            s_add_u32 s8, s8, s15
            s_mul_i32 s8, s8, 1280
            s_add_u32 s7, s7, s8
            v_lshrrev_b32 v8, 1, v1
            v_mul_u32_u24 v8, 1280, v8
            v_and_b32 v9, 1, v1
            v_lshl_add_u32 v8, v9, 7, v8
            v_add_u32 v8, s7, v8
            s_mov_b32 s68, s32
            s_mov_b32 s69, s33
            s_cmp_lt_u32 s14, 2
            s_mov_b32 s15, 0x05555555
            s_cselect_b32 exec_lo, 0x0fffffff, s15
            s_mov_b32 exec_hi, 0
            buffer_load_dword v56, v8, s[68:71], 0 offen
            s_mov_b64 exec, -1""")
        a("""v_and_b32 v8, 15, v1
        v_lshlrev_b32 v8, 3, v8
        s_min_u32 s8, s67, 9
        s_lshl_b32 s8, s8, 7
        s_mul_i32 s7, s12, 1280
        s_add_u32 s7, s7, s8
        v_add_u32 v44, s7, v8
        global_load_dwordx2 v[42:43], v44, s[16:17]""")
        s.masks()
        a(f"""s_mov_b32 s50, 0xaaaaaaaa
        s_mov_b32 s51, 0xaaaaaaaa
        s_mov_b32 s52, 0xcccccccc
        s_mov_b32 s53, 0xcccccccc
        s_mov_b32 s54, {f2u(128**-0.5):#x}
        s_mov_b32 s55, {f2u(L2E):#x}
        v_mov_b32 v34, 0xff7fffff
        v_mov_b32 v36, 0
        s_mul_i32 s7, s3, {SCW}
        s_add_u32 s7, s7, {SC0}
        v_and_b32 v35, 60, v1
        v_add_u32 v35, s7, v35
        v_lshrrev_b32 v8, 4, v1
        v_lshlrev_b32 v8, 2, v8
        v_and_b32 v9, 3, v1
        v_add_u32 v8, v8, v9
        v_lshlrev_b32 v45, 5, v8
        s_lshl_b32 s7, s3, 4
        v_mov_b32 v61, s7
        ds_write_b32 v61, v36 offset:{ST+8}
        ds_write_b32 v36, v36 offset:{FLG}
        v_and_b32 v8, 15, v1
        v_lshlrev_b32 v8, 5, v8
        v_lshrrev_b32 v9, 4, v1
        v_lshl_add_u32 v8, v9, 4, v8
        s_lshl_b32 s7, s3, 9
        v_add_u32 v60, s7, v8
        s_waitcnt lgkmcnt(0)""")
        for i in range(s.D0, NP):
            a(f's_waitcnt vmcnt({s.DP-1})')
            issue(i, i & 3)
        s.stamp(4)
        a('s_barrier')
        s.stamp(1)
        a(f"""ds_read_b128 v[46:49], v45 offset:{QP}
        ds_read_b128 v[50:53], v45 offset:{QP+16}
        ds_read_b128 v[54:57], v45 offset:{QP+512}
        ds_read_b128 v[16:19], v45 offset:{QP+512+16}
        ds_read_b128 v[24:27], v45 offset:{QP+1024}
        ds_read_b128 v[28:31], v45 offset:{QP+1024+16}
        ds_read_b128 v[8:11], v45 offset:{QP+1536}
        ds_read_b128 v[12:15], v45 offset:{QP+1536+16}
        s_waitcnt lgkmcnt(0)""")
        for e in range(8):
            b1 = 54+e if e < 4 else 12+e
            a(f'v_add_f32 v{46+e}, v{46+e}, v{b1}\nv_add_f32 v{24+e}, v{24+e}, v{8+e}')
        for e in range(8): a(f'v_add_f32 v{46+e}, v{46+e}, v{24+e}')
        for m in range(4): a(f'v_cvt_pk_bf16_f32 v{54+m}, v{46+2*m}, v{47+2*m}')
        for t in range(4):
            mk = 0x000f000f << (4*t)
            a(f's_mov_b32 s56, {mk:#x}\ns_mov_b32 s57, {mk:#x}')
            for m in range(4): a(f'v_cndmask_b32 v{8+4*t+m}, 0, v{54+m}, s[56:57]')
        a('s_nop 1')
        Dreg = lambda g: 24 + 4*(g & 1)
        def post1(g):
            if s.exp & 2: return
            d = Dreg(g)
            a(f"""s_nop 1
            v_cndmask_b32 v32, v{d}, v{d+1}, s[50:51]
            v_cndmask_b32 v33, v{d+2}, v{d+3}, s[50:51]
            v_cndmask_b32 v32, v32, v33, s[52:53]
            s_nop 1
            v_add_f32_dpp v32, v32, v32 quad_perm:[1,0,3,2] row_mask:0xf bank_mask:0xf
            s_nop 1
            v_add_f32_dpp v32, v32, v32 quad_perm:[2,3,0,1] row_mask:0xf bank_mask:0xf""")
        def post2a(off):
            if s.exp & 2: return
            a(f"""v_cvt_pk_bf16_f32 v32, v32, v32
            v_lshlrev_b32 v32, 16, v32
            v_mul_f32 v32, s54, v32
            v_cvt_pk_bf16_f32 v32, v32, v32
            v_lshlrev_b32 v32, 16, v32
            v_max_f32 v33, v34, v32
            ds_write_b32 v35, v32 offset:{off}""")
        def post2b():
            if s.exp & 2: return
            a("""v_sub_f32 v40, v34, v33
            v_sub_f32 v46, v32, v33
            v_mul_f32 v40, s55, v40
            v_mul_f32 v46, s55, v46
            v_exp_f32 v40, v40
            v_exp_f32 v46, v46
            v_mov_b32 v34, v33
            v_fma_f32 v36, v36, v40, v46""")
        def post2(off):
            post2a(off); post2b()
        def kcons(p, gi, t):
            d = Dreg(gi)
            c = '0' if t == 0 else f'v[{d}:{d+3}]'
            if not s.exp & 4: a(f'v_mfma_f32_16x16x32_bf16 v[{d}:{d+3}], {slot(p)}, v[{8+4*t}:{11+4*t}], {c}')
        nis = 0
        per = max(1, (NP - 1) // 15)
        for i in range(NP):
            gi, t = i >> 2, i & 3
            need = (NP + nis - 1) - i
            if i >= NP - s.DP: a(f's_waitcnt vmcnt({min(need, 63)})')
            kcons(i, gi, t)
            if gi > 0 and t == 2: a('s_nop 3'); post1(gi - 1)
            if gi > 0 and t == 3: post2((gi - 1) * 64)
            if nis < 15 and i >= nis and (i + 1) % per == 0:
                a(f's_waitcnt vmcnt({D-1})')
                issue(nis, nis & 3); nis += 1
        assert nis == 15, nis
        a(f'v_add_u32 v35, {(NP//4-1)*64}, v35')
        nk = (256 - NP) // R
        a('s_mov_b32 s45, 0')
        if s.RD: a('s_cmp_lt_u32 s66, 2\ns_cselect_b64 vcc, -1, 0')
        a('L_kloop:')
        KP = [int(c) for c in str(s.KP)] or [D]
        VP = [int(c) for c in str(s.VP)] or [D]
        for st in range(R):
            gi, t = st >> 2, st & 3
            if s.RD and st % s.RD == 0:
                l = s.lab('rd'); a(f's_cbranch_vccnz {l}\ns_waitcnt vmcnt({D-1})\n{l}:\ns_waitcnt vmcnt({D})')
            else: a(f's_waitcnt vmcnt({KP[st % len(KP)]-1})')
            issue((st - 1) % R, (st - 1) & 3)
            if st == 0:
                a(f"""s_cmp_lg_u32 s45, {nk-1}
                s_cbranch_scc1 L_nosw
                s_mov_b32 s40, s48
                s_mov_b32 s41, s49
                s_lshl_b32 s44, s3, {CSH}
                v_mov_b32 v2, v3
                L_nosw:""")
            kcons(st, gi, t)
            if s.flat:
                if t == 1: post1(gi - 1)
                if t == 2: post2a(gi * 64)
                if t == 3: post2b()
            else:
                if t == 2: post1(gi - 1)
                if t == 3: post2(gi * 64)
        a(f"""v_add_u32 v35, {R*16}, v35
        s_add_u32 s45, s45, 1
        s_cmp_lt_u32 s45, {nk}
        s_cbranch_scc1 L_kloop""")
        XE = s.XE; RV = 32 if XE else 16; LAG = 15 + XE
        xi = [0]
        def xissue():
            if xi[0] < XE:
                j = 15 + xi[0]; xi[0] += 1
                a(f's_waitcnt vmcnt({D-1})'); issue(j, j & 3)
        xissue()
        post1(1); post2(0)
        xissue()
        a(f"""s_nop 0
        v_max_f32_dpp v33, v34, v34 row_ror:4 row_mask:0xf bank_mask:0xf
        v_subrev_u32 v35, {63*64}, v35
        v_mov_b32 v28, 0
        v_max_f32_dpp v33, v33, v33 row_ror:8 row_mask:0xf bank_mask:0xf
        v_mov_b32 v29, 0
        v_readlane_b32 s56, v33, 0
        v_readlane_b32 s57, v33, 16
        v_readlane_b32 s58, v33, 32
        v_readlane_b32 s59, v33, 48
        v_mov_b32 v30, 0
        v_mov_b32 v48, s56
        v_max_f32 v48, s57, v48
        v_max_f32 v48, s58, v48
        v_max_f32 v48, s59, v48
        v_sub_f32 v40, v34, v48
        v_mul_f32 v40, s55, v40
        v_exp_f32 v40, v40
        v_mov_b32 v31, 0
        v_mul_f32 v36, v36, v40
        v_mov_b32 v50, 1
        v_mov_b32 v51, 1
        v_add_f32_dpp v36, v36, v36 row_ror:4 row_mask:0xf bank_mask:0xf
        s_nop 1
        v_add_f32_dpp v36, v36, v36 row_ror:8 row_mask:0xf bank_mask:0xf
        s_nop 0
        v_readlane_b32 s56, v36, 0
        v_readlane_b32 s57, v36, 16
        v_readlane_b32 s58, v36, 32
        v_readlane_b32 s59, v36, 48
        v_mov_b32 v33, 0
        v_mov_b32 v49, s56
        v_add_f32 v49, s57, v49
        v_add_f32 v49, s58, v49
        v_add_f32 v49, s59, v49
        ds_write_b128 v61, v[48:51] offset:{ST}""")
        xissue()
        a(f"""s_mov_b32 s64, {s.spin}
        L_stw:
        ds_read_b128 v[8:11], v33 offset:{ST}
        ds_read_b128 v[12:15], v33 offset:{ST+16}
        ds_read_b128 v[16:19], v33 offset:{ST+32}
        ds_read_b128 v[20:23], v33 offset:{ST+48}
        ds_read_b32 v39, v35
        s_waitcnt lgkmcnt(0)
        v_and_b32 v40, v10, v14
        v_and_b32 v46, v18, v22
        v_and_b32 v40, v40, v46
        s_nop 0
        v_readfirstlane_b32 s7, v40
        s_cmp_lg_u32 s7, 0
        s_cbranch_scc1 L_stwd
        s_sub_u32 s64, s64, 1
        s_cbranch_scc0 L_stw
        L_stwd:""")
        while xi[0] < XE: xissue()
        a(f"""v_max_f32 v41, v8, v12
        v_max3_f32 v41, v41, v16, v20
        v_sub_f32 v8, v8, v41
        v_sub_f32 v12, v12, v41
        v_sub_f32 v16, v16, v41
        v_sub_f32 v20, v20, v41
        v_mul_f32 v8, s55, v8
        v_mul_f32 v12, s55, v12
        v_mul_f32 v16, s55, v16
        v_mul_f32 v20, s55, v20
        v_exp_f32 v8, v8
        v_exp_f32 v12, v12
        v_exp_f32 v16, v16
        v_exp_f32 v20, v20
        v_mul_f32 v40, v8, v9
        v_fmac_f32 v40, v12, v13
        v_fmac_f32 v40, v16, v17
        v_fmac_f32 v40, v20, v21
        v_rcp_f32 v47, v40
        s_nop 0
        v_fma_f32 v46, -v40, v47, 1.0
        v_fmac_f32 v47, v46, v47""")
        s.stamp(2)
        def prep(g):
            if s.exp & 2: return
            a(f"""s_waitcnt lgkmcnt(0)
            v_sub_f32 v39, v39, v41
            v_mul_f32 v39, s55, v39
            v_exp_f32 v39, v39
            s_nop 0
            v_mul_f32 v39, v39, v47
            v_cvt_pk_bf16_f32 v{37+(g&1)}, v39, v39""")
        prep(0)
        a('s_nop 0')
        def vstep(st, Dv, left=None):
            gi, t = st >> 2, st & 3
            late = left is not None and left <= LAG and left - 1 < Dv
            if left is None or left > LAG:
                a(f's_waitcnt vmcnt({Dv-1})')
                issue((st + LAG) % RV, (st + LAG) & 3)
            fin = left is not None and left <= 4
            if t == 0 and not fin: a(f'ds_read_b32 v39, v35 offset:{(gi+1)*64}')
            for m in range(4):
                a(f'v_and_b32_dpp v{24+m}, v{37+(gi&1)}, v{4+m} row_newbcast:{4*t} row_mask:0xf bank_mask:0xf')
            a(f's_nop 0\ns_waitcnt vmcnt({left-1})' if late else 's_nop 1')
            if not s.exp & 4: a(f'v_mfma_f32_16x16x32_bf16 v[28:31], v[24:27], {slot(st)}, v[28:31]')
            if t == 2 and not fin: prep(gi + 1)
        def vloop(name, n, Dv):
            if n == 0: return
            a(f's_mov_b32 s45, 0\n{name}:')
            for st in range(RV): vstep(st, Dv[st % len(Dv)])
            a(f"""v_add_u32 v35, {RV*16}, v35
            s_add_u32 s45, s45, 1
            s_cmp_lt_u32 s45, {n}
            s_cbranch_scc1 {name}""")
        ne = s.NE * 16 // RV
        vloop('L_vloop', 256//RV - 1 - ne, VP)
        a(f'v_mov_b32 v33, 0\nds_write_b32 v33, v50 offset:{FLG}')
        vloop('L_vloop2', ne, [s.DE])
        a(f"""s_mul_i32 s7, s12, {32*2560}
        s_lshl_b32 s8, s67, 8
        s_add_u32 s7, s7, s8
        v_lshrrev_b32 v8, 4, v1
        v_mul_u32_u24 v8, 2560, v8
        v_and_b32 v9, 15, v1
        v_lshl_add_u32 v8, v9, 4, v8
        v_add_u32 v52, s7, v8""")
        for i in range(1, 8): a(f'v_add_u32 v{52+i}, 10240, v{51+i}')
        a(f'v_add_u32 v44, {WS_H}, v44')
        if s.defer:
            a('s_lshl_b32 s7, s3, 6\nv_add_u32 v18, s7, v1')
            s.stage_setup(18)
        for st in range(RV): vstep(st, s.DE, RV - st)
        a(f"""s_mov_b32 exec_hi, 0
        s_nop 6
        ds_write_b128 v60, v[28:31] offset:{OP}
        s_mov_b64 exec, -1
        s_waitcnt lgkmcnt(0)""")
        s.stamp(3)
        if s.mst: a('s_memrealtime s[82:83]')
        a('s_barrier')
        s.mstamp(11, 80); s.mstamp(3, 82)
        if s.exp & 17: s.mstamp(7); a('s_endpgm')
        SR = 192
        if s.defer and not s.noffn:
            a('s_cmp_eq_u32 s66, 0\ns_cbranch_scc0 L_d1B')
            for k in range(s.NB1 if s.defer & 1 else 0):
                t, p = s.ldA(k, SR); a(t); a(p)
            a('s_branch L_d1D\nL_d1B:\ns_cmp_eq_u32 s66, 1\ns_cbranch_scc0 L_d1D')
            for k in range(s.NB1 if s.defer & 2 else 0):
                t, p = s.ldB(k, SR); a(t); a(p)
            a('L_d1D:')
        a(f"""s_barrier
        s_cmp_lt_u32 s66, 2
        s_cbranch_scc1 L_s_ffn
        s_cmp_eq_u32 s66, 3
        s_cbranch_scc1 L_end
        s_cmp_lg_u32 s3, 0
        s_cbranch_scc1 L_end""")
        s.stamp(8)
        s.poll([f'global_load_dwordx4 v[{160+4*i}:{163+4*i}], v{52+i}, s[38:39] sc1' for i in range(8)], list(range(160, 192)), 32)
        s.stamp(9)
        for step in (16, 8, 4):
            for r in range(0, step, 2): a(f'v_pk_add_f32 v[{160+r}:{160+r+1}], v[{160+r}:{160+r+1}], v[{160+step+r}:{160+step+r+1}]')
        for sw in ('v_permlane16_swap_b32', 'v_permlane32_swap_b32'):
            for r in range(4): a(f'v_mov_b32 v{164+r}, v{160+r}')
            for r in range(4): a(f'{sw} v{160+r}, v{164+r}')
            for r in (0, 2): a(f'v_pk_add_f32 v[{160+r}:{160+r+1}], v[{160+r}:{160+r+1}], v[{164+r}:{164+r+1}]')
            a('s_nop 0')
        a("""v_cvt_pk_bf16_f32 v24, v160, v161
        v_cvt_pk_bf16_f32 v26, v162, v163
        v_lshlrev_b32 v28, 16, v24
        v_and_b32 v29, 0xffff0000, v24
        v_lshlrev_b32 v30, 16, v26
        v_and_b32 v31, 0xffff0000, v26
        v_lshlrev_b32 v24, 16, v42
        v_and_b32 v25, 0xffff0000, v42
        v_lshlrev_b32 v26, 16, v43
        v_and_b32 v27, 0xffff0000, v43
        v_add_f32 v24, v24, v28
        v_add_f32 v25, v25, v29
        v_add_f32 v26, v26, v30
        v_add_f32 v27, v27, v31
        v_cvt_pk_bf16_f32 v24, v24, v25
        v_cvt_pk_bf16_f32 v25, v26, v27
        v_min_u32 v24, -2, v24
        v_min_u32 v25, -2, v25
        s_nop 0
        v_mov_b32_dpp v26, v24 quad_perm:[1,1,3,3] row_mask:0xf bank_mask:0xf
        v_mov_b32_dpp v27, v25 quad_perm:[1,1,3,3] row_mask:0xf bank_mask:0xf
        s_mov_b64 exec, 0x5555
        global_store_dwordx4 v44, v[24:27], s[38:39] sc1""")
        s.stamp(5)
        a('s_endpgm')
        a('L_s_ffn:')
        if s.defer: a('s_barrier')
        if s.defer and not s.noffn:
            a('s_cmp_eq_u32 s66, 0\ns_cbranch_scc0 L_d2B')
            fa = s.fuseA and s.defer & 1
            if s.defer & 1:
                if s.DS: a(f's_sleep {s.DS}')
                for k in range(s.NB1, 10):
                    t, p = s.ldA(k, SR); a(t); a(p)
                if fa:
                    s.tailA_setup()
                    for l in s.H_LOADS: a(l)
                for kb in range(5):
                    a(f's_waitcnt vmcnt({8-2*kb+(2 if fa else 0)})'); s.wrA(kb, SR)
                if fa and s.fuseA == 2:
                    a('s_waitcnt lgkmcnt(0)\ns_barrier\ns_cmp_lt_u32 s3, 2\ns_cbranch_scc1 L_notr')
                    for m in range(20):
                        a(f'ds_read_b64_tr_b16 v[{64+4*m}:{65+4*m}], v46 offset:{m*2048}')
                        a(f'ds_read_b64_tr_b16 v[{66+4*m}:{67+4*m}], v46 offset:{m*2048+256}')
                    a('L_notr:')
                if fa: a(f's_mov_b64 s[62:63], exec\ns_mov_b32 s64, {s.spin}\ns_branch L_hchk')
            a('s_branch L_d2D\nL_d2B:')
            if s.defer & 2:
                if s.DS: a(f's_sleep {s.DS}')
                for k in range(s.NB1, 14):
                    t, p = s.ldB(k, SR); a(t); a(p)
                for k in range(14):
                    a(f's_waitcnt vmcnt({13-k})'); s.wrB(k, SR)
            a('L_d2D:\ns_waitcnt lgkmcnt(0)')
            s.stamp(13)
        a('s_barrier')
        s.ffn_wregs(streamer=True)
        a('s_branch L_tail')

    def helper(s):
        a = s.a; W0 = 96; s.sv = 92
        wreg = lambda i: f'v[{W0+4*i}:{W0+4*i+3}]'
        a('L_helper:')
        if s.exp & 1: a('s_endpgm')
        s.stamp_reg(84)
        a(f"""s_sub_u32 s9, s3, 4
        v_lshrrev_b32 v2, 4, v1
        v_mul_u32_u24 v2, 40, v2
        s_mul_i32 s7, s9, 160
        v_add_u32 v3, s7, v2
        v_lshlrev_b32 v2, 13, v3
        v_and_b32 v8, 15, v1
        v_lshl_add_u32 v2, v8, 4, v2
        v_lshlrev_b32 v3, 3, v3
        s_mul_i32 s49, s4, 5
        s_lshr_b32 s49, s49, 2
        s_lshl_b32 s49, s49, 4
        v_add_u32 v3, s49, v3
        v_lshlrev_b32 v26, 4, v1
        v_lshlrev_b32 v27, 2, v1
        s_mul_i32 s7, s4, 1280
        s_lshl_b32 s8, s5, 8
        s_mov_b32 s47, 0x20000
        s_sub_u32 s46, 5242880, s8
        s_lshl_b32 s48, s49, 11
        s_waitcnt lgkmcnt(0)
        s_add_u32 s10, s16, s7
        s_addc_u32 s11, s17, 0
        s_add_u32 s44, s22, s8
        s_addc_u32 s45, s23, 0""")
        def clears():
            a(f"""v_mov_b32 v20, -1
            v_mov_b32 v21, -1
            v_mov_b32 v22, -1
            v_mov_b32 v23, -1
            s_mul_i32 s7, s2, 2560
            v_add_u32 v24, s7, v26
            s_lshl_b32 s8, s9, 10
            v_add_u32 v45, s8, v24
            s_mul_i32 s7, s12, 1280
            s_lshl_b32 s8, s67, 7
            s_add_u32 s7, s7, s8
            s_add_u32 s7, s7, {WS_H}
            s_lshl_b32 s8, s67, 8
            s_add_u32 s8, s8, {WS_ACT}
            s_cmp_eq_u32 s66, 0
            s_cselect_b32 s7, s8, s7
            v_add_u32 v25, s7, v27
            s_cmp_lg_u32 s9, {9 if s.exp & 8 else 3}
            s_cbranch_scc1 L_clrd
            {'s_branch L_nopc' if s.nopc else ''}
            global_store_dwordx4 v24, v[20:23], s[38:39] {s.cpol}
            global_store_dwordx4 v24, v[20:23], s[38:39] offset:1024 {s.cpol}
            global_store_dwordx4 v24, v[20:23], s[38:39] offset:1536 {s.cpol}
            L_nopc:
            s_bitcmp1_b32 s66, 0
            s_cbranch_scc1 L_clrd
            s_cmp_eq_u32 s66, 0
            s_cselect_b32 exec_hi, -1, 0
            global_store_dword v25, v20, s[38:39] sc1
            s_mov_b64 exec, -1
            L_clrd:""")
        if s.bflag == 2: a(f's_load_dword s77, s[38:39], {WS_EP}')
        s.roles()
        if s.early: clears()
        a("""global_load_dwordx4 v[12:15], v26, s[10:11]
        global_load_dword v16, v27, s[10:11] offset:1024""")
        def wq_issue(i):
            if s.nowq == 1 or (s.nowq == 2 and i >= 5): return
            a(f'buffer_load_dwordx4 {wreg(i)}, v2, s[44:47], s48 offen {s.wpol}')
            if i < 39:
                a('s_add_u32 s48, s48, 8192')
                if (i & 3) == 3: a(f's_cmp_eq_u32 s48, {40*8192}\ns_cselect_b32 s48, 0, s48')
        N0 = s.N0
        for i in range(N0): wq_issue(i)
        s.masks()
        a(f"""v_mul_u32_u24 v8, 52429, v1
        v_lshrrev_b32 v8, 18, v8
        v_mul_u32_u24 v8, 160, v8
        v_lshl_add_u32 v8, v1, 5, v8
        v_add_u32 v9, 256, v1
        v_mul_u32_u24 v10, 52429, v9
        v_lshrrev_b32 v10, 20, v10
        v_mul_u32_u24 v10, 160, v10
        v_lshl_add_u32 v9, v9, 3, v10
        s_waitcnt vmcnt({(0, 0, 5)[s.nowq] if s.nowq else N0})""")
        s.stamp_reg(86)
        s.layernorm(12, 28, 40, True, 20, False)
        a(f"""ds_write_b128 v8, v[28:31] offset:{XD}
        ds_write_b128 v8, v[32:35] offset:{XD+16}
        ds_write_b64 v9, v[36:37] offset:{XD}
        ds_write_b128 v8, v[28:31] offset:{XD+160}
        ds_write_b128 v8, v[32:35] offset:{XD+176}
        ds_write_b64 v9, v[36:37] offset:{XD+160}
        s_waitcnt lgkmcnt(0)""")
        for i in range(10): a(f'ds_read_b128 v[{48+4*i}:{51+4*i}], v3 offset:{XD+16*i}')
        nis = N0
        for i in range(40):
            for _ in range(s.WB + (i == 0)):
                if nis < 40: wq_issue(nis); nis += 1
            if i == 0: a('s_waitcnt lgkmcnt(0)')
            ar = 28 + 4*(i & 1)
            for m in range(4): a(f'v_and_b32 v{ar+m}, v{48+i}, v{4+m}')
            a(f's_waitcnt vmcnt({nis-1-i})')
            if i == 20: s.stamp_reg(88)
            a('s_nop 0')
            a(f'v_mfma_f32_16x16x32_bf16 v[20:23], v[{ar}:{ar+3}], {wreg(i)}, ' + ('0' if i == 0 else 'v[20:23]'))
        a(f"""v_and_b32 v8, 15, v1
        v_lshlrev_b32 v8, 5, v8
        v_lshrrev_b32 v9, 4, v1
        v_lshl_add_u32 v17, v9, 4, v8
        s_lshl_b32 s7, s9, 9
        v_add_u32 v8, s7, v17
        s_nop 3
        s_mov_b32 exec_hi, 0
        ds_write_b128 v8, v[20:23] offset:{QP}
        s_mov_b64 exec, -1
        s_waitcnt lgkmcnt(0)""")
        if s.bflag == 2: a(f's_add_u32 s77, s77, {TAGC:#x}')
        s.stamp(1)
        for i, r in ((0, 84), (13, 86), (11, 88)): s.stamp(i, r)
        a('s_barrier')
        if s.tlb:
            a("""s_lshl_b32 s6, s2, 20
            s_add_u32 s10, s20, s6
            s_addc_u32 s11, s21, 0
            s_lshl_b32 s7, s9, 18
            v_mov_b32 v8, s7
            s_mov_b64 exec, 1
            global_load_dword v9, v8, s[10:11] nt
            s_mov_b64 exec, -1""")
        if not s.early: clears()
        def count():
            a(f"""s_cmp_lg_u32 s9, {9 if s.exp & 72 else 3}
            s_cbranch_scc1 L_cnta
            s_waitcnt vmcnt(0)""")
            if s.cstag:
                a(f"""s_lshr_b32 s7, s2, 2
                L_cst:
                s_sleep {s.cstag}
                s_sub_u32 s7, s7, 1
                s_cbranch_scc0 L_cst""")
            if s.bflag == 2:
                a(f"""s_lshl_b32 s7, s2, 7
                s_add_u32 s7, s7, {WS_FL}
                v_add_u32 v10, s7, v26
                v_mov_b32 v12, s77
                v_mov_b32 v13, s77
                v_mov_b32 v14, s77
                v_mov_b32 v15, s77
                s_mov_b64 exec, 0xff
                global_store_dwordx4 v10, v[12:15], s[38:39] sc1
                s_mov_b64 exec, -1
                L_cnta:""")
            elif s.bflag:
                a("""s_mov_b64 exec, 1
                v_mov_b32 v10, s2
                v_mov_b32 v11, 1
                global_store_byte v10, v11, s[36:37] sc1
                s_mov_b64 exec, -1
                L_cnta:""")
            else:
                a("""s_mov_b64 exec, 1
                s_and_b32 s7, s2, 3
                s_lshl_b32 s7, s7, 6
                v_mov_b32 v10, s7
                v_mov_b32 v11, 1
                global_atomic_add v10, v11, s[36:37] sc1
                s_mov_b64 exec, -1
                L_cnta:""")
        if not s.latecnt: count()
        a("""s_lshl_b32 s7, s9, 6
        v_add_u32 v18, s7, v1""")
        def stagger(expr, unit):
            if not unit: return
            l = s.lab('sg'); e = s.lab('sge')
            a(expr)
            a(f'{l}:\ns_sub_u32 s7, s7, 1\ns_cbranch_scc1 {e}\ns_sleep {unit}\ns_branch {l}\n{e}:')
        def do_ffn():
            stagger('s_and_b32 s7, s67, 3', s.SG1)
            if s.defer != 3 and not s.noffn:
                def split_load(txt, lanes):
                    for q in range(64 // lanes):
                        m = ((1 << lanes) - 1) << (q * lanes)
                        if lanes < 64: a(f's_mov_b32 exec_lo, {m & 0xffffffff:#x}\ns_mov_b32 exec_hi, {m >> 32:#x}')
                        a(txt)
                        a('s_waitcnt vmcnt(0)')
                    a('s_mov_b64 exec, -1')
                a('s_cmp_ge_u32 s66, 2\ns_cbranch_scc1 L_stD')
                s.stage_setup(18)
                a('s_cmp_eq_u32 s66, 0\ns_cbranch_scc0 L_stB')
                for kb in range(0 if s.defer & 1 else 5):
                    for mt in range(2):
                        t, p = s.ldA(mt, 48); split_load(t, min(64, 2*s.FQ)); a(p)
                    s.wrA(0 if kb < 4 else 0, 48)
                    a('s_waitcnt lgkmcnt(0)')
                a('s_branch L_stD\nL_stB:')
                for k in range(0 if s.defer & 2 else 14):
                    t, p = s.ldB(0, 48); split_load(t, min(64, 2*s.FQ)); a(p)
                    a(f'ds_write_b128 v11, v[48:51] offset:{k*4096}\ns_waitcnt lgkmcnt(0)')
                a('L_stD:')
        def do_wo():
            stagger('s_mov_b32 s7, s4', s.SG2)
            a(f"""v_lshrrev_b32 v8, 4, v1
            v_lshlrev_b32 v8, 3, v8
            s_lshl_b32 s7, s9, 5
            v_add_u32 v19, s7, v8
            v_mul_u32_u24 v8, 1280, v19
            v_and_b32 v9, 15, v1
            v_lshl_add_u32 v8, v9, 4, v8
            s_mul_i32 s8, s5, {128*1280}
            s_add_u32 s44, s24, s8
            s_addc_u32 s45, s25, 0
            s_mov_b32 s46, {128*1280}
            s_mov_b32 s48, 3840
            s_mov_b32 s49, 7680""")
            for i in range(8):
                for n in range(5):
                    so = ('0', 's48', 's49')[i // 3]; off = (i % 3)*1280 + n*256
                    if s.nowo: continue
                    a(f's_waitcnt vmcnt({s.HP-1})')
                    a(f'buffer_load_dwordx4 {wreg(i*5+n)}, v8, s[44:47], {so} offen offset:{off} {s.wpol}')
        if s.wofirst: do_wo(); do_ffn()
        else: do_ffn(); do_wo()
        s.stamp(2)
        if s.latecnt: count()
        a(f"""v_lshlrev_b32 v44, 4, v18
        v_lshlrev_b32 v19, 2, v19
        s_mul_i32 s7, s9, 2560
        v_add_u32 v17, s7, v17
        v_mov_b32 v16, 0
        s_waitcnt vmcnt(0)
        {'s_mov_b32 s78, 1' if s.dry else ''}
        {'s_branch L_mrg' if s.dry else ''}
        L_wet:
        s_cmp_lg_u32 s9, {9 if s.exp & 40 else 3}
        s_cbranch_scc1 L_cntd
        s_cmp_eq_u32 s66, 3
        s_cbranch_scc1 L_cntd
        s_mov_b32 s64, {s.spin}
        L_flg:
        s_sleep 32
        ds_read_b32 v8, v16 offset:{FLG}
        s_waitcnt lgkmcnt(0)
        v_readfirstlane_b32 s7, v8
        s_cmp_lg_u32 s7, 0
        s_cbranch_scc1 L_flgd
        s_sub_u32 s64, s64, 1
        s_cbranch_scc0 L_flg
        L_flgd:
        s_mov_b32 s64, {s.spin}
""")
        if s.bflag == 2:
            a(f"""v_lshlrev_b32 v9, 7, v1
            v_add_u32 v9, {WS_FL}, v9
            v_add_u32 v10, 8192, v9
            v_add_u32 v14, 8192, v10
            v_add_u32 v15, 8192, v14
            L_cnt:
            global_load_dword v8, v9, s[38:39] sc1
            global_load_dword v11, v10, s[38:39] sc1
            global_load_dword v12, v14, s[38:39] sc1
            global_load_dword v13, v15, s[38:39] sc1
            s_waitcnt vmcnt(0)
            v_xor_b32 v8, s77, v8
            v_xor_b32 v11, s77, v11
            v_xor_b32 v12, s77, v12
            v_xor_b32 v13, s77, v13
            v_or3_b32 v8, v8, v11, v12
            v_or_b32 v8, v8, v13
            v_cmp_ne_u32 vcc, 0, v8""")
        else:
            a(f"""{'v_lshlrev_b32 v9, 2, v1' if s.bflag else 'v_and_b32 v9, 3, v1'}
            {'' if s.bflag else 'v_lshlrev_b32 v9, 6, v9'}
            L_cnt:
            global_load_dword v8, v9, s[36:37] sc1
            s_waitcnt vmcnt(0)
            {'v_cmp_ne_u32 vcc, 0x01010101, v8' if s.bflag else 'v_cmp_gt_u32 vcc, 64, v8'}""")
        a(f"""
        s_cbranch_vccz L_cntd
        s_sleep 127
        s_sub_u32 s64, s64, 1
        s_cbranch_scc0 L_cnt
        L_cntd:
        {'s_setprio 2' if s.prio else ''}
        s_waitcnt lgkmcnt(0)
        s_barrier""")
        if s.exp & 16: a('s_endpgm')
        s.stamp(3)
        a('L_mrg:')
        for half in range(2):
            for w in range(4):
                a(f'ds_read_b128 v[{48+8*w+4*half}:{51+8*w+4*half}], v19 offset:{OP+w*512+16*half}')
        def osum(half):
            r = []
            pa = lambda d, y: f'v_pk_add_f32 v[{d}:{d+1}], v[{d}:{d+1}], v[{y}:{y+1}]'
            for e in range(4*half, 4*half+4, 2): r += [pa(48+e, 56+e), pa(64+e, 72+e)]
            r += [pa(48+e, 64+e) for e in range(4*half, 4*half+4, 2)]
            r += [f'v_cvt_pk_bf16_f32 v{48+e}, v{48+e}, v{48+e}' for e in range(4*half, 4*half+4)]
            return r
        amk = lambda i: [f'v_and_b32 v{28+4*(i&1)+m}, v{48+i}, v{4+m}' for m in range(4)]
        a('s_waitcnt lgkmcnt(4)')
        for x in osum(0) + amk(0): a(x)
        a('s_waitcnt lgkmcnt(0)\ns_nop 0')
        extra = osum(1)
        for i in range(8):
            ar = 28 + 4*(i & 1)
            fill = (amk(i+1) if i < 7 else [])
            if i < 2: fill = fill + extra[5*i:5*i+5]
            per = -(-len(fill) // 4)
            for n in range(5):
                acc = (8, 12, 20, 36, 40)[n]
                a(f'v_mfma_f32_16x16x32_bf16 v[{acc}:{acc+3}], v[{ar}:{ar+3}], {wreg(i*5+n)}, ' + ('0' if i == 0 else f'v[{acc}:{acc+3}]'))
                if n < 4:
                    for x in fill[per*n:per*n+per]: a(x)
            a('s_nop 0')
        a('s_mov_b32 exec_hi, 0\ns_nop 3')
        for n in range(5):
            acc = (8, 12, 20, 36, 40)[n]
            a(f'ds_write_b128 v17, v[{acc}:{acc+3}] offset:{WOP+n*512}')
        a('s_mov_b64 exec, -1\ns_waitcnt lgkmcnt(0)')
        if s.dry: a('s_cmp_eq_u32 s78, 1\ns_cbranch_scc1 L_nob3')
        a("""s_barrier
        s_cmp_eq_u32 s9, 3
        s_cbranch_scc1 L_pubd
        L_nob3:""")
        for w in range(4): a(f'ds_read_b128 v[{48+4*w}:{51+4*w}], v44 offset:{WOP+w*2560}')
        a('s_cmp_eq_u32 s9, 2\ns_cselect_b32 exec_hi, 0, -1')
        a('s_waitcnt lgkmcnt(0)')
        for e in (0, 2):
            a(f'v_pk_add_f32 v[{48+e}:{48+e+1}], v[{48+e}:{48+e+1}], v[{52+e}:{52+e+1}]')
            a(f'v_pk_add_f32 v[{56+e}:{56+e+1}], v[{56+e}:{56+e+1}], v[{60+e}:{60+e+1}]')
        for e in (0, 2): a(f'v_pk_add_f32 v[{48+e}:{48+e+1}], v[{48+e}:{48+e+1}], v[{56+e}:{56+e+1}]')
        for e in range(4): a(f'v_min_u32 v{48+e}, -2, v{48+e}')
        if s.dry: a('s_cmp_eq_u32 s78, 1\ns_cbranch_scc0 L_pub\ns_mov_b32 s78, 0\ns_mov_b64 exec, -1\ns_branch L_wet\nL_pub:')
        a("""global_store_dwordx4 v45, v[48:51], s[38:39] sc1
        s_mov_b64 exec, -1""")
        s.stamp(4)
        a("""L_pubd:
        s_cmp_ge_u32 s66, 2
        s_cbranch_scc1 L_end""")
        if s.defer: a('s_barrier')
        if s.fuseA == 1 and s.defer & 1: a('s_cmp_eq_u32 s66, 0\ns_cbranch_scc1 L_tail')
        if s.fuseA == 2 and s.defer & 1:
            a('s_cmp_eq_u32 s66, 0\ns_cbranch_scc0 L_h3b')
            s.tailA_setup()
            a(f's_barrier\ns_mov_b64 s[62:63], exec\ns_mov_b32 s64, {s.spin}')
            for l in s.H_LOADS: a(l)
            a('s_branch L_hchk\nL_h3b:')
        a('s_barrier')
        s.ffn_wregs(streamer=False)

    H_LOADS = ['global_load_dwordx4 v[12:15], v8, s[38:39] sc1', 'global_load_dword v16, v9, s[38:39] offset:1024 sc1']
    def tailA_setup(s):
        s.a(f"""s_mul_i32 s7, s3, 1280
        s_add_u32 s7, s7, {WS_H}
        v_lshl_add_u32 v8, v1, 4, s7
        v_lshl_add_u32 v9, v1, 2, s7
        s_mul_i32 s7, s3, {XN2S}
        v_lshl_add_u32 v48, v1, 4, s7
        v_lshl_add_u32 v49, v1, 2, s7
        v_and_b32 v50, 7, v1
        v_mul_u32_u24 v51, {XN2S}, v50
        v_lshrrev_b32 v17, 4, v1
        v_lshl_add_u32 v51, v17, 4, v51
        v_lshlrev_b32 v50, 4, v50
        s_lshl_b32 s7, s67, 1
        s_add_u32 s7, s7, s3
        s_lshl_b32 s7, s7, 7
        s_add_u32 s7, s7, {WS_ACT - 256}
        v_add_u32 v50, s7, v50
        v_lshlrev_b32 v46, 3, v17
        v_bfe_u32 v47, v1, 2, 2
        v_add_u32 v46, v46, v47
        v_and_b32 v47, 3, v1
        v_lshlrev_b32 v47, 3, v47
        v_lshl_add_u32 v46, v46, 6, v47
        s_lshl_b32 s7, s3, 5
        s_add_u32 s7, s7, {IMG - 64}
        v_add_u32 v46, s7, v46
        s_mov_b32 s55, {f2u(-L2E):#x}""")

    def tail(s):
        a = s.a; s.sv = 62
        a("""L_tail:
        s_cmp_eq_u32 s66, 0
        s_cbranch_scc0 L_tailB""")
        s.tailA_setup()
        s.poll(s.H_LOADS, [12, 13, 14, 15, 16], 18, entry='L_hchk')
        s.stamp(6)
        s.layernorm(12, 28, 40, False, 20, True)
        s.stamp(10)
        a(f"""ds_write_b128 v48, v[20:23] offset:{XN2}
        ds_write_b32 v49, v24 offset:{XN2+1024}
        s_waitcnt lgkmcnt(0)
        s_barrier
        s_and_b32 s7, s3, 6
        s_cmp_lg_u32 s7, 2
        s_cbranch_scc1 L_end""")
        if s.fuseA == 1 and s.defer & 1:
            def rd(m):
                a(f'ds_read_b64_tr_b16 v[{64+4*m}:{65+4*m}], v46 offset:{m*2048}')
                a(f'ds_read_b64_tr_b16 v[{66+4*m}:{67+4*m}], v46 offset:{m*2048+256}')
                a(f'ds_read_b128 v[{144+4*m}:{147+4*m}], v51 offset:{XN2+m*64}')
            for m in range(5): rd(m)
            for m in range(20):
                a(f's_waitcnt lgkmcnt({3*min(4, 19-m)})')
                a(f'v_mfma_f32_16x16x32_bf16 v[20:23], v[{64+4*m}:{67+4*m}], v[{144+4*m}:{147+4*m}], ' + ('0' if m == 0 else 'v[20:23]'))
                if m + 5 < 20: rd(m + 5)
        else:
            for m in range(20): a(f'ds_read_b128 v[{144+4*m}:{147+4*m}], v51 offset:{XN2+m*64}')
            for m in range(20):
                a(f's_waitcnt lgkmcnt({min(15, 19-m)})')
                a(f'v_mfma_f32_16x16x32_bf16 v[20:23], v[{64+4*m}:{67+4*m}], v[{144+4*m}:{147+4*m}], ' + ('0' if m == 0 else 'v[20:23]'))
        a("""s_nop 7
        v_cvt_pk_bf16_f32 v20, v20, v21
        v_cvt_pk_bf16_f32 v22, v22, v23
        v_lshlrev_b32 v24, 16, v20
        v_and_b32 v25, 0xffff0000, v20
        v_mul_f32 v26, s55, v24
        v_mul_f32 v27, s55, v25
        v_exp_f32 v26, v26
        v_exp_f32 v27, v27
        v_lshlrev_b32 v28, 16, v22
        v_add_f32 v26, 1.0, v26
        v_add_f32 v27, 1.0, v27
        v_rcp_f32 v26, v26
        v_rcp_f32 v27, v27
        v_and_b32 v29, 0xffff0000, v22
        v_mul_f32 v24, v24, v26
        v_mul_f32 v25, v25, v27
        v_cvt_pk_bf16_f32 v24, v24, v25
        v_lshlrev_b32 v26, 16, v24
        v_and_b32 v27, 0xffff0000, v24
        v_mul_f32 v26, v26, v28
        v_mul_f32 v27, v27, v29
        v_cvt_pk_bf16_f32 v26, v26, v27
        v_min_u32 v24, -2, v26
        v_min_u32 v25, -2, v26
        s_nop 1
        v_permlane16_swap_b32 v24, v25
        v_mov_b32 v26, v24
        v_mov_b32 v27, v25
        s_nop 0
        v_permlane32_swap_b32 v24, v26
        v_permlane32_swap_b32 v25, v27
        s_mov_b64 exec, 0xff
        global_store_dwordx4 v50, v[24:27], s[38:39] sc1""")
        s.stamp(7)
        a('s_endpgm')
        a(f"""L_tailB:
        {f's_load_dword s77, s[38:39], {WS_EP}' if s.bflag == 2 else ''}
        v_and_b32 v10, 7, v1
        v_lshrrev_b32 v17, 4, v1
        v_lshlrev_b32 v8, 4, v10
        v_lshl_add_u32 v8, v17, 7, v8
        s_lshl_b32 s7, s3, 9
        s_add_u32 s7, s7, {WS_ACT}
        v_add_u32 v8, s7, v8
        v_add_u32 v9, 0x2000, v8
        v_add_u32 v11, 0x4000, v8
        s_movk_i32 s8, 0x5000
        s_cmp_lt_u32 s3, 6
        s_cselect_b32 s8, 0x6000, s8
        v_add_u32 v12, s8, v8
        v_mul_u32_u24 v13, 1280, v10
        v_lshl_add_u32 v13, v17, 3, v13
        s_lshl_b32 s7, s67, 5
        v_add_u32 v13, s7, v13
        v_add_u32 v14, {WS_H}, v13
        v_lshlrev_b32 v60, 6, v10
        v_lshl_add_u32 v60, v17, 4, v60
        s_lshl_b32 s7, s3, 9
        v_add_u32 v61, s7, v60
        s_add_u32 s68, s38, 4096
        s_addc_u32 s69, s39, 0
        s_cmp_lg_u32 s3, 3
        s_cbranch_scc1 L_noh""")
        s.poll(['global_load_dwordx2 v[18:19], v14, s[38:39] sc1'], [18, 19], 15)
        a('L_noh:')
        if s.gate: a(f's_barrier\ns_sleep {s.gate}')
        loads = []
        for i in range(7):
            base = (8, 8, 9, 9, 11, 11, 12)[i]
            sb = 's[68:69]' if (i < 6 and (i & 1)) else 's[38:39]'
            loads.append(f'global_load_dwordx4 v[{96+4*i}:{99+4*i}], v{base}, {sb} sc1')
        if s.halfB:
            for r in range(96, 124): a(f'v_mov_b32 v{r}, 0')
            a('s_mov_b32 exec_lo, 0x00ff00ff\ns_mov_b32 exec_hi, 0x00ff00ff')
        s.poll(loads, list(range(96, 124)), 15, depth=s.PDA)
        if s.halfB: a('s_mov_b64 exec, -1')
        s.stamp(6)
        a('s_waitcnt lgkmcnt(0)')
        for i in range(7):
            a(f'v_mfma_f32_16x16x32_bf16 v[20:23], v[{64+4*i}:{67+4*i}], v[{96+4*i}:{99+4*i}], ' + ('0' if i == 0 else 'v[20:23]'))
        a(f"""s_mov_b32 exec_lo, 0x00ff00ff
        s_mov_b32 exec_hi, 0x00ff00ff
        v_lshlrev_b32 v56, 16, v18
        v_and_b32 v57, 0xffff0000, v18
        v_lshlrev_b32 v58, 16, v19
        v_and_b32 v59, 0xffff0000, v19
        s_nop 1
        ds_write_b128 v61, v[20:23] offset:{BP}
        s_waitcnt lgkmcnt(0)
        s_barrier
        s_cmp_lg_u32 s3, 3
        s_cbranch_scc1 L_end""")
        for w in range(8): a(f'ds_read_b128 v[{24+4*w}:{27+4*w}], v60 offset:{BP+w*512}')
        a('s_waitcnt lgkmcnt(0)')
        for step in (16, 8, 4):
            for r in range(0, step, 2): a(f'v_pk_add_f32 v[{24+r}:{24+r+1}], v[{24+r}:{24+r+1}], v[{24+step+r}:{24+step+r+1}]')
        a("""v_cvt_pk_bf16_f32 v24, v24, v25
        v_cvt_pk_bf16_f32 v26, v26, v27
        v_lshlrev_b32 v28, 16, v24
        v_and_b32 v29, 0xffff0000, v24
        v_lshlrev_b32 v30, 16, v26
        v_and_b32 v31, 0xffff0000, v26
        v_add_f32 v24, v56, v28
        v_add_f32 v25, v57, v29
        v_add_f32 v26, v58, v30
        v_add_f32 v27, v59, v31
        v_cvt_pk_bf16_f32 v24, v24, v25
        v_cvt_pk_bf16_f32 v25, v26, v27
        global_store_dwordx2 v13, v[24:25], s[34:35] """ + s.opol)
        if s.bflag == 2:
            a(f"""s_cmp_lg_u32 s67, 0
            s_cbranch_scc1 L_noep
            s_add_u32 s77, s77, {TAGC:#x}
            s_mov_b64 exec, 1
            v_mov_b32 v28, {WS_EP}
            v_mov_b32 v29, s77
            global_store_dword v28, v29, s[38:39] sc1
            L_noep:""")
        s.stamp(7)
        s.mstamp(7)

    def text(s):
        s.gen()
        body = '\n'.join(s.L)
        k = NAME + '_kernel'
        return f"""{HEADER}; @launch grid=(256,1,1) block=(512,1,1) lds={LDS_BYTES}
.amdgcn_target "amdgcn-amd-amdhsa--gfx950"
.text
.globl {k}
.p2align 8
.type {k},@function
{k}:
{body}
.section .rodata,"a"
.p2align 6
.amdhsa_kernel {k}
  .amdhsa_next_free_vgpr 256
  .amdhsa_next_free_sgpr 102
  .amdhsa_accum_offset 256
  .amdhsa_group_segment_fixed_size 0
  .amdhsa_kernarg_size 96
  .amdhsa_user_sgpr_count 2
  .amdhsa_user_sgpr_kernarg_segment_ptr 1
  .amdhsa_system_sgpr_workgroup_id_x 1
  .amdhsa_float_denorm_mode_32 3
.end_amdhsa_kernel
"""

def parse_kw(args):
    kw = {}
    for x in args:
        k, v = x.split('=')
        try: v = int(v)
        except ValueError: v = v.replace('+', ' ').replace('-', '')
        kw[k] = v
    return kw

if __name__ == '__main__':
    open(sys.argv[1], 'w').write(G(**parse_kw(sys.argv[2:])).text())
```
